```python
import torch

def _softmax(x, axis=-1):
    return torch.softmax(x, dim=axis)

def _gelu(x):
    return torch.nn.functional.gelu(x, approximate='tanh')

def _silu(x):
    return torch.nn.functional.silu(x)

def _sigmoid(x):
    return torch.sigmoid(x)

def _layernorm(x, axis=-1, eps=1e-05):
    m = x.mean(dim=axis, keepdim=True)
    v = x.var(dim=axis, keepdim=True, unbiased=False)
    return (x - m) / torch.sqrt(v + eps)

def _scatter_add(tgt, idx, src, axis=0):
    return tgt.clone().index_add_(axis, idx, src)

def _segment_sum(src, seg, n):
    out = torch.zeros((n,) + src.shape[1:], dtype=src.dtype)
    return out.index_add_(0, seg, src)

def _pad(x, pw):
    flat = tuple((v for pair in reversed(pw) for v in pair))
    return torch.nn.functional.pad(x, flat)
kernel_name = 'adaLN_cond__spectral_gfnet__glu_gated_bilinear__prompt'

def setup_inputs():

    _w = lambda a: (lambda t: t.to(torch.bfloat16) if t.is_floating_point() else t)(torch.as_tensor(a))

    def _A_setup():
        B, S, D = (1, 2048, 512)
        Df = D // 2 + 1
        return {'x': _w((lambda *s: torch.randn(*s, dtype=torch.bfloat16) * 0.05)(B, S, D)), 'w_r': _w((lambda *s: torch.randn(*s, dtype=torch.bfloat16) * 1.6)(S, Df) * 0.02), 'w_i': _w((lambda *s: torch.randn(*s, dtype=torch.bfloat16) * 1.6)(S, Df) * 0.02)}
    _A_in = _A_setup()

    def _B_setup():
        B, S, D, F = (1, 2048, 512, 1792)
        return {'x': _w((lambda *s: torch.randn(*s, dtype=torch.bfloat16) * 0.05)(B, S, D)), 'w_gate': _w((lambda *s: torch.randn(*s, dtype=torch.bfloat16) * 0.4)(D, F) * D ** (-0.5)), 'w_up': _w((lambda *s: torch.randn(*s, dtype=torch.bfloat16) * 0.4)(D, F) * D ** (-0.5)), 'w_down': _w((lambda *s: torch.randn(*s, dtype=torch.bfloat16) * 0.4)(F, D) * F ** (-0.5))}
    _B_in = _B_setup()
    return {'A_x': _A_in['x'], 'A_w_r': _A_in['w_r'], 'A_w_i': _A_in['w_i'], 'B_x': _B_in['x'], 'B_w_gate': _B_in['w_gate'], 'B_w_up': _B_in['w_up'], 'B_w_down': _B_in['w_down'], 'c': _w((lambda *s: torch.randn(*s, dtype=torch.bfloat16) * 0.2)(1, 512) * 8.0), 'w_mod': _w((lambda *s: torch.randn(*s, dtype=torch.bfloat16) * 0.2)(512, 6 * 512) * 512 ** (-0.5) * 8.0)}

def reference(A_x, A_w_r, A_w_i, B_x, B_w_gate, B_w_up, B_w_down, c, w_mod):

    def _A_ref(x, w_r, w_i):
        B, S, D = x.shape
        X = (lambda x, axes=(-2, -1): torch.fft.rfft2(x.float(), dim=axes))(x, axes=(-2, -1))
        W = w_r + 1j * w_i
        X = X * W
        y = (lambda x, s, axes=(-2, -1): torch.fft.irfft2(x, s=s, dim=axes).to(torch.bfloat16))(X, (S, D), axes=(-2, -1))
        return y

    def _B_ref(x, w_gate, w_up, w_down):
        g = torch.einsum('bsd,df->bsf', x, w_gate)
        u = torch.einsum('bsd,df->bsf', x, w_up)
        h = g * u
        return torch.einsum('bsf,fd->bsd', h, w_down)
    x = A_x
    mod = (_silu(c) @ w_mod).reshape(c.shape[0], 6, 1, -1)
    sa, ca, ga, sb, cb, gb = (mod[:, 0].clone(), mod[:, 1].clone(), mod[:, 2].clone(), mod[:, 3].clone(), mod[:, 4].clone(), mod[:, 5].clone())
    h = _layernorm(x, axis=-1) * (1 + ca) + sa
    x = x + ga * _A_ref(h, A_w_r, A_w_i)
    h = _layernorm(x, axis=-1) * (1 + cb) + sb
    x = x + gb * _B_ref(h, B_w_gate, B_w_up, B_w_down)
    return x
```

```python
import re, sys

class Reg:
    __slots__=('kind','idx','n')
    def __init__(self, kind, idx, n=1):
        self.kind=kind; self.idx=idx; self.n=n
    def __str__(self):
        if self.n==1: return f"{self.kind}{self.idx}"
        return f"{self.kind}[{self.idx}:{self.idx+self.n-1}]"
    __repr__=__str__
    def __format__(self, spec): return str(self)
    def __getitem__(self, i):
        if isinstance(i, slice):
            a=i.start or 0; b=self.n if i.stop is None else i.stop
            assert 0<=a<b<=self.n, (a,b,self.n)
            return Reg(self.kind, self.idx+a, b-a)
        assert 0<=i<self.n, (i,self.n)
        return Reg(self.kind, self.idx+i, 1)
    def sub(self, a, n): return self[a:a+n]
    def __len__(self): return self.n

class Alloc:
    def __init__(self, kind, start, limit):
        self.kind=kind; self.limit=limit; self.used=[False]*limit
        for i in range(start): self.used[i]=True
        self.hi=start
    def __call__(self, n=1, align=None):
        if align is None:
            align = 1 if n==1 else (2 if self.kind in 'va' else (2 if n==2 else 4))
        i=0
        while i+n<=self.limit:
            if i%align==0 and not any(self.used[i:i+n]):
                for j in range(i,i+n): self.used[j]=True
                self.hi=max(self.hi,i+n)
                return Reg(self.kind,i,n)
            i+=1
        raise RuntimeError(f"out of {self.kind} regs (want {n})")
    def at(self, i, n=1):
        assert not any(self.used[i:i+n]), (self.kind,i,n)
        for j in range(i,i+n): self.used[j]=True
        self.hi=max(self.hi,i+n)
        return Reg(self.kind,i,n)
    def free(self, *regs):
        for r in regs:
            for j in range(r.idx,r.idx+r.n):
                assert self.used[j], (r,)
                self.used[j]=False

REG_RE=re.compile(r'^(-|\|)?(?:abs\()?([vas])(?:(\d+)|\[(\d+):(\d+)\])\)?\|?$')
def parse_reg(tok):
    t=tok.strip()
    m=re.match(r'^-?\|?(?:abs\()?(?:neg\()?([vas])(?:(\d+)|\[(\d+):(\d+)\])\)?\|?$',t)
    if m:
        k=m.group(1)
        if m.group(2) is not None: return [(k,int(m.group(2)))]
        return [(k,i) for i in range(int(m.group(3)),int(m.group(4))+1)]
    if t in('vcc','-vcc'): return [('s','vcc_lo'),('s','vcc_hi')]
    if t=='vcc_lo': return [('s','vcc_lo')]
    if t=='vcc_hi': return [('s','vcc_hi')]
    if t=='exec': return [('s','exec_lo'),('s','exec_hi')]
    if t=='exec_lo': return [('s','exec_lo')]
    if t=='exec_hi': return [('s','exec_hi')]
    if t=='m0': return [('s','m0')]
    return []

TRANS=('v_exp_f32','v_log_f32','v_rcp_f32','v_rsq_f32','v_sqrt_f32','v_sin_f32','v_cos_f32','v_rcp_iflag_f32',
       'v_exp_f16','v_log_f16','v_rcp_f16','v_rsq_f16','v_sqrt_f16','v_sin_f16','v_cos_f16')
VCC=[('s','vcc_lo'),('s','vcc_hi')]
EXEC=[('s','exec_lo'),('s','exec_hi')]

class Ins:
    def __init__(self, text):
        self.text=text
        t=text.split(';')[0].split('//')[0].strip()
        self.label=None; self.op=None
        self.vr=set(); self.vw=set(); self.sr=set(); self.sw=set()
        self.cls=None; self.nop=0
        if not t:
            self.cls='empty'; return
        if t.endswith(':'):
            self.cls='label'; self.label=t[:-1]; return
        if t.startswith('.'):
            self.cls='directive'; return
        parts=t.split(None,1)
        op=parts[0]; self.op=op
        rest=parts[1] if len(parts)>1 else ''
        ops=[];depth=0;cur=''
        for ch in rest:
            if ch in '[(': depth+=1
            if ch in '])': depth-=1
            if ch==',' and depth==0: ops.append(cur.strip()); cur=''
            else: cur+=ch
        if cur.strip(): ops.append(cur.strip())
        mods=''
        if ops:
            last=ops[-1].split(None,1)
            if len(last)>1:
                ops[-1]=last[0]; mods=last[1]
        self.ops=ops; self.mods=mods
        R=lambda i: parse_reg(ops[i]) if i<len(ops) else []
        def rd(regs):
            for r in regs: (self.vr if r[0] in 'va' else self.sr).add(r)
        def wr(regs):
            for r in regs: (self.vw if r[0] in 'va' else self.sw).add(r)
        base=op
        for suf in ('_e32','_e64','_dpp','_sdwa'):
            if base.endswith(suf): base=base[:-len(suf)]
        self.base=base
        self.dpp = op.endswith('_dpp') or any(k in mods for k in ('row_shr','row_shl','row_ror','quad_perm','row_mirror','row_half_mirror','row_bcast','row_newbcast','wave_sh','wave_ro'))
        self.sdwa = op.endswith('_sdwa') or 'dst_sel' in mods
        if op.startswith('v_mfma') or op.startswith('v_smfmac'):
            self.cls='mfma'
            wr(R(0)); self.D=set(R(0)); self.A=set(R(1)); self.B=set(R(2)); self.C=set(R(3))
            rd(R(1)); rd(R(2)); rd(R(3))
            self.Dfirst=R(0)[0]; self.Cfirst=R(3)[0] if R(3) else None
            if '32x32' in op: self.passes=8
            elif '16x16' in op: self.passes=4
            elif '4x4' in op: self.passes=2
            else: raise ValueError(op)
            if op.endswith('_f32') and re.search(r'x\d+_f32$',op) and not 'bf16' in op and not 'f16' in op:
                raise ValueError('SGEMM mfma not modelled '+op)
        elif op.startswith('v_'):
            self.cls='valu'
            self.trans = base in TRANS
            if base.startswith('v_cmpx'):
                wr(EXEC); wr(R(0));
                for i in range(1,len(ops)): rd(R(i))
            elif base.startswith('v_cmp'):
                wr(R(0))
                for i in range(1,len(ops)): rd(R(i))
            elif base in('v_readfirstlane_b32','v_readlane_b32'):
                wr(R(0))
                for i in range(1,len(ops)): rd(R(i))
            elif base in('v_add_co_u32','v_sub_co_u32','v_subrev_co_u32','v_addc_co_u32','v_subb_co_u32','v_div_scale_f32','v_mad_u64_u32'):
                wr(R(0)); wr(R(1))
                for i in range(2,len(ops)): rd(R(i))
            elif base in('v_permlane32_swap_b32','v_permlane16_swap_b32','v_swap_b32'):
                wr(R(0)); wr(R(1)); rd(R(0)); rd(R(1))
            elif base=='v_nop':
                pass
            else:
                wr(R(0))
                for i in range(1,len(ops)): rd(R(i))
                if base in('v_fmac_f32','v_fmac_f16','v_pk_fmac_f16','v_dot2c_f32_bf16','v_dot2c_f32_f16','v_writelane_b32','v_fmamk_f32x') or self.dpp or self.sdwa or 'op_sel' in mods and base.startswith('v_cvt'):
                    rd(R(0))
                if base=='v_cndmask_b32' and len(ops)==3: rd(VCC)
                if base=='v_bitop3_b32': pass
            self.opselshift = self.sdwa or ('op_sel' in mods and not base.startswith('v_pk_'))
        elif op.startswith('ds_'):
            self.cls='ds'
            if op.startswith('ds_read') or op.startswith('ds_bpermute') or op.startswith('ds_permute') or op.startswith('ds_swizzle'):
                wr(R(0))
                for i in range(1,len(ops)): rd(R(i))
                self.dsread=True
            elif op.startswith('ds_write'):
                for i in range(len(ops)): rd(R(i))
                self.dsread=False
            elif op.startswith('ds_add') or op.startswith('ds_min') or op.startswith('ds_max'):
                if '_rtn' in op:
                    wr(R(0))
                    for i in range(1,len(ops)): rd(R(i))
                    self.dsread=True
                else:
                    for i in range(len(ops)): rd(R(i))
                    self.dsread=False
            else: raise ValueError('ds op '+op)
            if 'addtid' in op: rd([('s','m0')])
        elif op.startswith('buffer_') or op.startswith('global_'):
            self.cls='vmem'
            self.lds = ('lds' in mods.split()) or ('_lds_' in op)
            self.store=False; self.wide=False
            if op.startswith('buffer_wbl2') or op.startswith('buffer_inv'):
                pass
            elif self.lds:
                for i in range(len(ops)): rd(R(i))
                rd([('s','m0')])
            elif '_load' in op:
                wr(R(0))
                if 'd16' in op: rd(R(0))
                for i in range(1,len(ops)): rd(R(i))
            elif '_store' in op:
                self.store=True
                for i in range(len(ops)): rd(R(i))
                self.wide = op.endswith('x3') or op.endswith('x4')
                if op.startswith('buffer'): self.sdata=set(R(0))
                else: self.sdata=set(R(1))
            elif '_atomic' in op:
                self.store=True
                for i in range(len(ops)): rd(R(i))
                if 'sc0' in mods.split(): wr(R(0))
            else: raise ValueError(op)
        elif op.startswith('s_'):
            if op in('s_nop',):
                self.cls='nop'; self.nop=int(ops[0],0)+1
            elif op=='s_waitcnt':
                self.cls='wait'
                s=rest
                m=re.search(r'vmcnt\((\d+)\)',s); self.vm=int(m.group(1)) if m else None
                m=re.search(r'lgkmcnt\((\d+)\)',s); self.lgkm=int(m.group(1)) if m else None
            elif op=='s_barrier': self.cls='barrier'
            elif op=='s_endpgm': self.cls='end'
            elif op=='s_branch': self.cls='branch'; self.target=ops[0]
            elif op.startswith('s_cbranch'):
                self.cls='cbranch'; self.target=ops[0]
                if 'vcc' in op: rd(VCC)
                if 'exec' in op: rd(EXEC)
            elif op.startswith('s_load') or op.startswith('s_buffer_load') or op in('s_memtime','s_memrealtime'):
                self.cls='smem'; wr(R(0))
                for i in range(1,len(ops)): rd(R(i))
            else:
                self.cls='salu'
                if op.startswith('s_cmp') or op in('s_setprio','s_sleep','s_bitcmp0_b32','s_bitcmp1_b32'):
                    for i in range(len(ops)): rd(R(i))
                elif op=='s_getreg_b32':
                    wr(R(0))
                else:
                    wr(R(0))
                    for i in range(1,len(ops)): rd(R(i))
                    if 'saveexec' in op: wr(EXEC); rd(EXEC)
                    if op in('s_addk_i32','s_mulk_i32'): rd(R(0))
        else:
            raise ValueError('unknown instruction: '+text)

    def is_real(self): return self.cls not in ('empty','label','directive')
    def states(self): return self.nop if self.cls=='nop' else 1


def hazard_need(p, c):
    need=0
    pc, cc = p.cls, c.cls
    if pc=='valu':
        ov = p.vw & c.vr
        if cc=='mfma' and ov: need=max(need,2)
        if cc=='valu':
            if ov and c.dpp: need=max(need,2)
            if ov and c.base.startswith('v_permlane'): need=max(need,2)
            if p.vw & c.vw and c.base.startswith('v_permlane'): need=max(need,2)
            if ov and c.base in('v_readlane_b32','v_readfirstlane_b32'): need=max(need,1)
            if p.trans and ov: need=max(need,1)
            if p.opselshift and (ov or p.vw & c.vw): need=max(need,1)
        if cc in('vmem','ds') and p.trans and ov: need=max(need,1)
        so = p.sw & c.sr
        if so:
            if cc=='vmem': need=max(need,5)
            if cc=='valu':
                need=max(need,2)
                if c.base in('v_readlane_b32','v_writelane_b32'): need=max(need,4)
                if c.base=='v_div_fmas_f32': need=max(need,4)
            if cc in('salu','cbranch','smem'): need=max(need,1)
        if p.sw & set(VCC) and cc=='cbranch' and 'vcc' in c.op: need=max(need,5) if False else max(need,1)
        if p.sw & set(EXEC):
            if cc=='mfma': need=max(need,4)
            if cc=='valu' and c.dpp: need=max(need,5)
            if cc=='valu' and (c.base.startswith('v_permlane') or c.base in('v_readlane_b32','v_readfirstlane_b32','v_writelane_b32')): need=max(need,4)
    if pc=='salu':
        if ('s','m0') in p.sw and ('s','m0') in c.sr and cc in('vmem','ds'): need=max(need,1)
    if pc=='vmem' and p.store and getattr(p,'wide',False):
        if p.sdata & c.vw:
            need=max(need, 2 if cc=='valu' else 1)
    if pc=='mfma':
        P=p.passes
        if cc=='mfma':
            if p.D & c.C:
                exact = (p.D==c.C) and p.passes==c.passes
                if not exact: need=max(need,P+2)
                elif P==2: need=max(need,2)
            if p.D & (c.A|c.B): need=max(need,P+4 if P>2 else 5)
            if (p.D & c.D) and not (p.D & c.C):
                if p.passes!=c.passes or p.D!=c.D: need=max(need,P+2)
        elif cc in('valu','vmem','ds'):
            if p.D & (c.vr|c.vw): need=max(need,P+4 if P>2 else 5)
            if cc=='valu' and (p.C & c.vw): need=max(need,P-1)
            if cc in('vmem','ds') and (p.C & c.vw): need=max(need,P-1)
    return need

MAXD=21
def insert_nops(lines):
    ins=[Ins(l) for l in lines]
    labels={x.label:i for i,x in enumerate(ins) if x.cls=='label'}
    preds_branch={}
    for i,x in enumerate(ins):
        if x.cls in('branch','cbranch'):
            preds_branch.setdefault(labels[x.target],[]).append(i)
    extra=[0]*len(ins)
    sys.setrecursionlimit(100000)
    def need_for(ci):
        c=ins[ci]; best=0
        seen={}
        stack=[(ci,0)]
        while stack:
            i,d=stack.pop()
            if d>=MAXD: continue
            if seen.get(i,99)<=d: continue
            seen[i]=d
            ps=[]
            if i>0:
                q=ins[i-1]
                if q.cls not in('branch','end'): ps.append(i-1)
            if ins[i].cls=='label': ps+=preds_branch.get(i,[])
            for j in ps:
                p=ins[j]
                if p.is_real():
                    n=hazard_need(p,c)
                    if n>d: best=max(best,n-d)
                    stack.append((j,d+p.states()+extra[j]))
                else:
                    stack.append((j,d))
        return best
    out=[]; total=0
    for i,x in enumerate(ins):
        if x.is_real() and x.cls in('valu','mfma','vmem','ds','salu','cbranch','smem'):
            n=need_for(i)
            if n>0:
                extra[i]=n; total+=n
    for i,x in enumerate(ins):
        n=extra[i]
        while n>0:
            k=min(n,16); out.append(f"    s_nop {k-1}"); n-=k
        out.append(x.text)
    return out,total

def check_waits(lines, name='', maxback=1, verbose=True):
    ins=[Ins(l) for l in lines]
    labels={x.label:i for i,x in enumerate(ins) if x.cls=='label'}
    problems=[]
    seen_states=set()
    stack=[(0,(),(),())]
    steps=0
    while stack:
        pc,vm,lg,bc=stack.pop()
        vm=list(vm); lg=list(lg); bc=dict(bc)
        while pc<len(ins):
            x=ins[pc]; steps+=1
            if steps>5_000_000: raise RuntimeError('check_waits: too many paths')
            if x.cls=='label':
                key=(pc,tuple(vm),tuple(lg),tuple(sorted(bc.items())))
                if key in seen_states: break
                seen_states.add(key)
            if x.is_real():
                touched=(x.vr|x.vw|x.sr|x.sw)
                for d in vm:
                    if d & touched:
                        if x.cls=='vmem' and not (d & (x.vr|x.sr)) and not 'd16' in x.op:
                            pass
                        else:
                            problems.append((pc,x.text.strip(),'vmcnt outstanding '+str(sorted(d&touched)[:4])))
                for kind,d in lg:
                    if d & touched:
                        if x.cls=='ds' and kind=='ds' and not (d & (x.vr|x.sr)): pass
                        else: problems.append((pc,x.text.strip(),'lgkmcnt outstanding '+str(sorted(d&touched,key=str)[:4])))
                if x.cls=='vmem':
                    if not (x.op.startswith('buffer_wbl2') and False):
                        vm.append(frozenset(x.vw))
                    if len(vm)>63: problems.append((pc,x.text.strip(),'vmcnt overflow >63'))
                elif x.cls=='ds':
                    lg.append(('ds',frozenset(x.vw)))
                elif x.cls=='smem':
                    lg.append(('s',frozenset(x.sw)))
                elif x.cls=='wait':
                    if x.vm is not None:
                        while len(vm)>x.vm: vm.pop(0)
                    if x.lgkm is not None:
                        if x.lgkm==0: lg=[]
                        elif any(k=='s' for k,_ in lg):
                            pass
                        else:
                            while len(lg)>x.lgkm: lg.pop(0)
                elif x.cls=='barrier':
                    if any(k=='ds' for k,_ in lg) and 'nowarn' not in x.text:
                        problems.append((pc,x.text.strip(),'barrier with outstanding DS ops'))
                elif x.cls=='end': break
                elif x.cls=='branch':
                    t=labels[x.target]
                    if t<=pc:
                        bc[pc]=bc.get(pc,0)+1
                        if bc[pc]>maxback: break
                    pc=t; continue
                elif x.cls=='cbranch':
                    t=labels[x.target]
                    if t<=pc:
                        n=bc.get(pc,0)
                        if n<maxback:
                            b2=dict(bc); b2[pc]=n+1
                            stack.append((t,tuple(vm),tuple(lg),tuple(sorted(b2.items()))))
                    else:
                        stack.append((t,tuple(vm),tuple(lg),tuple(sorted(bc.items()))))
            pc+=1
    uniq=[];s=set()
    for p in problems:
        if p[:2] not in s: s.add(p[:2]); uniq.append(p)
    if verbose:
        for p in uniq[:40]: print(f"[waitcheck {name}] line {p[0]}: {p[1]}  -> {p[2]}")
    return uniq

class Kernel:
    def __init__(self, name, grid, block, lds=0):
        self.name=name; self.grid=grid; self.block=block; self.lds=lds
        self.lines=[]
        self.v=Alloc('v',1,256); self.a=Alloc('a',0,256); self.s=Alloc('s',3,100)
        self._lab=0
    def __call__(self, text):
        for l in text.split('\n'):
            l=l.strip()
            if not l: continue
            if l.endswith(':'): self.lines.append(l)
            else: self.lines.append('    '+l)
    def label(self, base='L'):
        self._lab+=1
        return f"{self.name}_{base}{self._lab}"
    def comment(self, t): self.lines.append('    ; '+t)
    def finish(self, vgpr=None, agpr=None, check=True):
        lines,total=insert_nops(self.lines)
        if check:
            pr=check_waits(lines,self.name)
            if pr: print(f"!! {self.name}: {len(pr)} wait problems")
        nv=vgpr or self.v.hi; na=agpr if agpr is not None else self.a.hi
        acc=max(4,(nv+3)//4*4)
        tot=acc+na if na else nv
        self.nv,self.na=nv,na
        ns=max(self.s.hi,16)
        n_ins=sum(1 for l in lines if Ins(l).is_real())
        print(f"[{self.name}] instrs={n_ins} nops_states={total} vgpr={nv} agpr={na} sgpr={ns}")
        code=f".globl {self.name}\n.p2align 8\n.type {self.name},@function\n{self.name}:\n"+'\n'.join(lines)+"\n"
        desc=f""".p2align 6
.amdhsa_kernel {self.name}
  .amdhsa_next_free_vgpr {tot}
  .amdhsa_next_free_sgpr {ns}
  .amdhsa_accum_offset {acc}
  .amdhsa_group_segment_fixed_size 0
  .amdhsa_kernarg_size 96
  .amdhsa_user_sgpr_count 2
  .amdhsa_user_sgpr_kernarg_segment_ptr 1
  .amdhsa_system_sgpr_workgroup_id_x 1
.end_amdhsa_kernel
"""
        return code,desc

HEADER=""";  Kernarg layout (96 bytes, ptrs only, base s[0:1]):
"""
def build_file(kernels, path):
    s=HEADER
    for k,_,_ in kernels:
        s+=f"; @launch kernel={k.name} grid=({k.grid},1,1) block=({k.block},1,1) lds={k.lds}\n"
    s+='.amdgcn_target "amdgcn-amd-amdhsa--gfx950"\n.text\n'
    done=set()
    for k,code,_ in kernels:
        if k.name in done: continue
        done.add(k.name); s+=code
    s+='.section .rodata,"a"\n'
    done=set()
    for k,_,desc in kernels:
        if k.name in done: continue
        done.add(k.name); s+=desc
    open(path,'w').write(s)
    return s
```

```python
from asmlib import *
NAME='adaLN_cond__spectral_gfnet__glu_gated_bilinear__prompt_kernel'
WS_WT   = 0x000000
WS_MOD  = 0x210000
WS_X1   = 0x220000
WS_Y    = 0x430000
WS_X1R  = 0x640000
WS_H2F  = 0x840000
WS_HHF  = 0xA40000
WS_END  = 0x1140000
COLB = 257*8192
ARG = dict(x=0,wr=8,wi=16,bx=24,wg=32,wu=40,wd=48,c=56,wm=64,out=72,dbg=80,ws=88)

def srd(k, dst, base, nbytes, off=0):
    if off:
        k(f"s_add_u32 {dst[0]}, {base[0]}, {off:#x}")
        k(f"s_addc_u32 {dst[1]}, {base[1]}, 0")
    else:
        k(f"s_mov_b32 {dst[0]}, {base[0]}")
        k(f"s_mov_b32 {dst[1]}, {base[1]}")
    k(f"s_mov_b32 {dst[2]}, {nbytes:#x}")
    k(f"s_mov_b32 {dst[3]}, 0x00020000")

def beta_of_wg(k, dst, tmp):
    k(f"s_and_b32 {dst}, s2, 7")
    k(f"s_lshl_b32 {dst}, {dst}, 5")
    k(f"s_lshr_b32 {tmp}, s2, 3")
    k(f"s_add_u32 {dst}, {dst}, {tmp}")

def wave_allreduce_add(k, x, t):
    for r in (8,4,2,1):
        k(f"v_add_f32_dpp {x}, {x}, {x} row_ror:{r} row_mask:0xf bank_mask:0xf")
    k(f"v_mov_b32 {t}, {x}")
    k(f"v_permlane16_swap_b32 {x}, {t}")
    k(f"v_add_f32 {x}, {x}, {t}")
    k(f"v_mov_b32 {t}, {x}")
    k(f"v_permlane32_swap_b32 {x}, {t}")
    k(f"v_add_f32 {x}, {x}, {t}")

def row_of_pos(k, dst, beta, w, t0, t1):
    k(f"""
s_bfe_u32 {t0}, {beta}, 0x20005
s_lshl_b32 {dst}, {t0}, 9
s_bfe_u32 {t0}, {beta}, 0x20003
s_lshl_b32 {t0}, {t0}, 7
s_add_u32 {dst}, {dst}, {t0}
s_and_b32 {t0}, {w}, 3
s_lshl_b32 {t0}, {t0}, 5
s_add_u32 {dst}, {dst}, {t0}
s_lshr_b32 {t0}, {beta}, 7
s_lshl_b32 {t0}, {t0}, 4
s_add_u32 {dst}, {dst}, {t0}
s_and_b32 {t0}, {beta}, 7
s_lshl_b32 {t0}, {t0}, 1
s_add_u32 {dst}, {dst}, {t0}
s_lshr_b32 {t0}, {w}, 2
s_add_u32 {dst}, {dst}, {t0}
""")
```

```python
from common import *
def build_k0(name='k0_kernel'):
    k=Kernel(name,256,256,lds=16*16*4)
    v,s=k.v,k.s
    END=k.label('END'); NOG=k.label('NOG'); NOG2=k.label('NOG2')
    pwr,pwi,pc,pwm,pws=s(2),s(2),s(2),s(2),s(2)
    k(f"""
s_cmp_ge_u32 s2, 256
s_cbranch_scc1 {END}
s_load_dwordx2 {pwr}, s[0:1], {ARG['wr']}
s_load_dwordx2 {pwi}, s[0:1], {ARG['wi']}
s_load_dwordx2 {pc}, s[0:1], {ARG['c']}
s_load_dwordx2 {pwm}, s[0:1], {ARG['wm']}
s_load_dwordx2 {pws}, s[0:1], {ARG['ws']}
""")
    beta,t0,t1,slot=s(),s(),s(),s()
    beta_of_wg(k,beta,t0)
    ks0=s()
    k(f"""
s_lshr_b32 {t0}, {beta}, 6
s_lshl_b32 {ks0}, {t0}, 4
s_and_b32 {t0}, {beta}, 7
s_lshl_b32 {t0}, {t0}, 1
s_add_u32 {ks0}, {ks0}, {t0}
s_bfe_u32 {t0}, {beta}, 0x10005
s_lshl_b32 {t0}, {t0}, 10
s_add_u32 {ks0}, {ks0}, {t0}
s_bfe_u32 {t0}, {beta}, 0x20003
s_lshl_b32 {t0}, {t0}, 8
s_add_u32 {ks0}, {ks0}, {t0}
s_mul_i32 {ks0}, {ks0}, 514
""")
    so=s(8,align=1)
    for e in range(8):
        k(f"s_add_u32 {so[e]}, {ks0}, {(e&3)*32896+(e>>2)*514}")
    m=s()
    k(f"""
s_lshr_b32 {slot}, s2, 3
s_and_b32 {m}, s2, 7
s_mul_i32 {m}, {m}, 24
s_add_u32 {m}, {m}, {slot}
""")
    vt2=v(); vg=v(); vc2=v()
    k(f"""
v_lshlrev_b32 {vt2}, 1, v0          ; t*2
v_lshrrev_b32 {vg}, 1, v0           ; row0 = t>>1
v_and_b32 {vc2}, 0x1fe, v0
""")
    tmpv=v()
    k(f"s_lshl_b32 {t1}, {m}, 5")
    k(f"""
v_mul_u32_u24 {vg}, 0x1800, {vg}
v_and_b32 {tmpv}, 1, v0
v_lshl_add_u32 {vg}, {tmpv}, 4, {vg}
v_add_u32 {vg}, {t1}, {vg}
""")
    Rwr,Rwi,Rc,Rwm,Rwt,Rmod=s(4),s(4),s(4),s(4),s(4),s(4)
    k("s_waitcnt lgkmcnt(0)")
    srd(k,Rwm,pwm,512*6144); srd(k,Rc,pc,1024)
    srd(k,Rwr,pwr,2048*514); srd(k,Rwi,pwi,2048*514)
    srd(k,Rwt,pws,COLB,WS_WT); srd(k,Rmod,pws,6*512*4,WS_MOD)
    wmr=v(16,align=4); cv=v(4)
    sj=s(3,align=1)
    for j in range(1,4): k(f"s_mov_b32 {sj[j-1]}, {j*128*6144}")
    k(f"s_cmp_ge_u32 {slot}, 24")
    k(f"s_cbranch_scc1 {NOG}")
    for j in range(4):
        k(f"buffer_load_short_d16_hi {cv[j]}, {vc2}, {Rc}, 0 offen offset:{256*j}")
    for j in range(4):
        so_=0 if j==0 else sj[j-1]
        k(f"buffer_load_dwordx4 {wmr[4*j:4*j+4]}, {vg}, {Rwm}, {so_} offen")
    k(f"{NOG}:")
    a=v(8,align=4); b=v(8,align=4)
    for e in range(8):
        k(f"buffer_load_ushort {a[e]}, {vt2}, {Rwr}, {so[e]} offen")
        k(f"buffer_load_short_d16_hi {b[e]}, {vt2}, {Rwi}, {so[e]} offen")
    vx=v(); va=v(); vb=v()
    k(f"""
v_and_b32 {vx}, 3, v0
v_mul_u32_u24 {vx}, 32896, {vx}
v_bfe_u32 {tmpv}, v0, 2, 1
v_mul_u32_u24 {tmpv}, 514, {tmpv}
v_add3_u32 {vx}, {vx}, {tmpv}, {ks0}
v_add_u32 {vx}, 512, {vx}
buffer_load_ushort {va}, {vx}, {Rwr}, 0 offen
buffer_load_short_d16_hi {vb}, {vx}, {Rwi}, 0 offen
""")
    vst=v()
    k(f"""
s_lshl_b32 {t0}, {beta}, 5
v_lshlrev_b32 {vst}, 13, v0
v_add_u32 {vst}, {t0}, {vst}
""")
    k(f"s_cmp_ge_u32 {slot}, 24")
    k(f"s_cbranch_scc1 {NOG2}")
    k("s_waitcnt vmcnt(22)")
    sc=v(4); te=v()
    for j in range(4):
        k(f"v_mul_f32 {te}, 0xbfb8aa3b, {cv[j]}")
        k(f"v_exp_f32 {te}, {te}")
        k(f"v_add_f32 {te}, 1.0, {te}")
        k(f"v_rcp_f32 {te}, {te}")
        k(f"v_mul_f32 {te}, {cv[j]}, {te}")
        k(f"v_cvt_pk_bf16_f32 {te}, {te}, {te}")
        k(f"v_and_b32 {sc[j]}, 0xffff0000, {te}")
    acc=v(8,align=4); u=v()
    k("s_waitcnt vmcnt(18)")
    for j in range(4):
        for p in range(4):
            src=wmr[4*j+p]
            k(f"v_lshlrev_b32 {u}, 16, {src}")
            if j==0: k(f"v_mul_f32 {acc[2*p]}, {sc[j]}, {u}")
            else: k(f"v_fmac_f32 {acc[2*p]}, {sc[j]}, {u}")
            k(f"v_and_b32 {u}, 0xffff0000, {src}")
            if j==0: k(f"v_mul_f32 {acc[2*p+1]}, {sc[j]}, {u}")
            else: k(f"v_fmac_f32 {acc[2*p+1]}, {sc[j]}, {u}")
    for sh in (2,4,8):
        for c in range(8):
            k(f"v_add_f32_dpp {acc[c]}, {acc[c]}, {acc[c]} row_shr:{sh} row_mask:0xf bank_mask:0xf bound_ctrl:0")
    vl=v()
    k(f"""
v_lshrrev_b32 {vl}, 4, v0
v_lshlrev_b32 {vl}, 6, {vl}
v_and_b32 {u}, 1, v0
v_lshl_add_u32 {vl}, {u}, 5, {vl}
v_and_b32 {u}, 14, v0
v_cmp_eq_u32 vcc, 14, {u}
""")
    sv=s(2)
    k(f"s_and_saveexec_b64 {sv}, vcc")
    k(f"ds_write_b128 {vl}, {acc[0:4]}")
    k(f"ds_write_b128 {vl}, {acc[4:8]} offset:16")
    k(f"s_mov_b64 exec, {sv}")
    k("s_waitcnt lgkmcnt(0)")
    k("s_barrier")
    rd=v(16,align=4)
    k(f"v_and_b32 {u}, 15, v0")
    k(f"v_lshlrev_b32 {vl}, 2, {u}")
    for r in range(16):
        k(f"ds_read_b32 {rd[r]}, {vl} offset:{64*r}")
    k("s_waitcnt lgkmcnt(0)")
    for st in (1,2,4,8):
        for r in range(0,16,2*st):
            k(f"v_add_f32 {rd[r]}, {rd[r]}, {rd[r+st]}")
    ch=s(); one=s()
    k(f"""
s_lshr_b32 {ch}, {m}, 5
v_cvt_pk_bf16_f32 {rd[0]}, {rd[0]}, {rd[0]}
v_and_b32 {rd[0]}, 0xffff0000, {rd[0]}
s_mov_b32 {one}, 0
s_cmp_eq_u32 {ch}, 1
s_cselect_b32 {one}, 1.0, {one}
s_cmp_eq_u32 {ch}, 4
s_cselect_b32 {one}, 1.0, {one}
v_add_f32 {rd[0]}, {one}, {rd[0]}
v_cvt_pk_bf16_f32 {rd[0]}, {rd[0]}, {rd[0]}
v_and_b32 {rd[0]}, 0xffff0000, {rd[0]}
""")
    d0=s(); ib=s(); st_=s()
    k(f"""
s_and_b32 {d0}, {m}, 31
s_lshr_b32 {t0}, {d0}, 3
s_lshl_b32 {t0}, {t0}, 7
s_and_b32 {t1}, {d0}, 7
s_add_u32 {t0}, {t0}, {t1}
s_lshl_b32 {t1}, {d0}, 4
s_cmp_lt_u32 {ch}, 2
s_cselect_b32 {ib}, {t0}, {t1}
s_cselect_b32 {st_}, 5, 2
s_lshl_b32 {ib}, {ib}, 2
s_lshl_b32 {t0}, {ch}, 11
s_add_u32 {ib}, {ib}, {t0}
v_lshlrev_b32 {vl}, {st_}, {u}
v_add_u32 {vl}, {ib}, {vl}
v_cmp_gt_u32 vcc, 16, v0
s_and_saveexec_b64 {sv}, vcc
buffer_store_dword {rd[0]}, {vl}, {Rmod}, 0 offen
s_mov_b64 exec, {sv}
""")
    k(f"{NOG2}:")
    k("s_waitcnt vmcnt(0)")
    for e in range(8): k(f"v_or_b32 {a[e]}, {a[e]}, {b[e]}")
    k(f"buffer_store_dwordx4 {a[0:4]}, {vst}, {Rwt}, 0 offen")
    k(f"buffer_store_dwordx4 {a[4:8]}, {vst}, {Rwt}, 0 offen offset:16")
    k(f"""
v_or_b32 {va}, {va}, {vb}
s_lshl_b32 {t0}, {beta}, 5
s_add_u32 {t0}, {t0}, {256*8192}
v_lshlrev_b32 {vx}, 2, v0
v_add_u32 {vx}, {t0}, {vx}
v_cmp_gt_u32 vcc, 8, v0
s_and_saveexec_b64 {sv}, vcc
buffer_store_dword {va}, {vx}, {Rwt}, 0 offen
{END}:
s_endpgm
""")
    code,desc=k.finish()
    return (k,code,desc)
if __name__=='__main__':
    build_file([build_k0(NAME)],'t_k0.s')
```

```python
from common import *
def build_k1(name='k1_kernel'):
    k=Kernel(name,256,512,lds=8*260*4)
    v,s=k.v,k.s
    END=k.label('END')
    px,pws=s(2),s(2)
    beta,t0,t1,w,row=s(),s(),s(),s(),s()
    lane,vi,vg,tv=v(),v(),v(),v()
    k(f"""
s_cmp_ge_u32 s2, 256
s_cbranch_scc1 {END}
s_load_dwordx2 {px}, s[0:1], {ARG['x']}
s_load_dwordx2 {pws}, s[0:1], {ARG['ws']}
v_lshrrev_b32 {tv}, 6, v0
v_and_b32 {lane}, 63, v0
v_readfirstlane_b32 {w}, {tv}
v_and_b32 {vi}, 15, v0
v_bfe_u32 {vg}, v0, 4, 2
""")
    beta_of_wg(k,beta,t0)
    row_of_pos(k,row,beta,w,t0,t1)
    k(f"s_lshl_b32 {row}, {row}, 10")
    vxo=v(); vmo=v()
    k(f"""
v_lshlrev_b32 {vxo}, 8, {vg}
v_lshl_add_u32 {vxo}, {vi}, 1, {vxo}     ; 256 g + 2 i
v_lshlrev_b32 {vmo}, 5, {lane}           ; lane*32
""")
    Rx,Rmod,Rx1=s(4),s(4),s(4)
    k("s_waitcnt lgkmcnt(0)")
    srd(k,Rx,px,2048*1024); srd(k,Rmod,pws,6*2048,WS_MOD); srd(k,Rx1,pws,COLB,WS_X1)
    x=v(8,align=4); ma=v(8,align=4); mb=v(8,align=4)
    for j in range(8):
        k(f"buffer_load_short_d16_hi {x[j]}, {vxo}, {Rx}, {row} offen offset:{32*j}")
    k(f"buffer_load_dwordx4 {ma[0:4]}, {vmo}, {Rmod}, 0 offen offset:2048")
    k(f"buffer_load_dwordx4 {ma[4:8]}, {vmo}, {Rmod}, 0 offen offset:2064")
    k(f"buffer_load_dwordx4 {mb[0:4]}, {vmo}, {Rmod}, 0 offen")
    k(f"buffer_load_dwordx4 {mb[4:8]}, {vmo}, {Rmod}, 0 offen offset:16")
    fi,fg,f,arg,c0,c1=v(),v(),v(),v(),v(),v()
    k(f"v_cvt_f32_u32 {fi}, {vi}")
    k(f"v_cvt_f32_u32 {fg}, {vg}")
    BC=v(4,align=4); BS=v(4,align=4); BC1=v(4,align=4); BS1=v(4,align=4)
    k(f"v_mul_f32 {f}, 0x3d000000, {fi}")
    k(f"v_mul_f32 {arg}, 0x41000000, {fg}")
    k(f"v_mul_f32 {arg}, {arg}, {f}")
    s0,s1=v(),v()
    for p in range(4):
        k(f"v_cos_f32 {c0}, {arg}")
        k(f"v_sin_f32_e64 {s0}, -{arg}")
        k(f"v_add_f32 {arg}, {arg}, {f}")
        k(f"v_cos_f32 {c1}, {arg}")
        k(f"v_sin_f32_e64 {s1}, -{arg}")
        k(f"v_add_f32 {arg}, {arg}, {f}")
        k(f"v_cvt_pk_bf16_f32 {BC[p]}, {c0}, {c1}")
        k(f"v_cvt_pk_bf16_f32 {BS[p]}, {s0}, {s1}")
    for p in range(4):
        k(f"v_xor_b32 {BC1[p]}, 0x80000000, {BC[p]}")
        k(f"v_xor_b32 {BS1[p]}, 0x80000000, {BS[p]}")
    TC=v(8,align=4); TS=v(8,align=4); n0=v()
    k(f"v_mul_f32 {n0}, 4.0, {fg}")
    for u in range(2):
        if u==0: k(f"v_mul_f32 {f}, 0x3b000000, {fi}")
        else: k(f"v_add_f32 {f}, 0x3d000000, {f}")
        k(f"v_mul_f32 {arg}, {n0}, {f}")
        for r in range(4):
            k(f"v_cos_f32 {TC[4*u+r]}, {arg}")
            k(f"v_sin_f32 {TS[4*u+r]}, {arg}")
            if r<3: k(f"v_add_f32 {arg}, {arg}, {f}")
    A2=v(4,align=4); A3=v(4,align=4); sh0,sh1=v(),v()
    k(f"""
v_lshrrev_b32 {tv}, 1, {vi}
v_cvt_f32_u32 {f}, {tv}
v_mul_f32 {f}, 0x3d800000, {f}          ; k2/16
v_and_b32 {tv}, 1, {vi}
v_cvt_f32_u32 {sh0}, {tv}
v_mul_f32 {sh0}, 0x3e800000, {sh0}      ; 0.25 c
v_add_f32 {sh1}, 0xbe800000, {sh0}      ; 0.25 (c-1)
v_mul_f32 {arg}, {n0}, {f}
""")
    aa=v(4,align=2)
    for r in range(4):
        k(f"v_mov_b32 {aa[r]}, {arg}")
        if r<3: k(f"v_add_f32 {arg}, {arg}, {f}")
    for half,sh in ((0,sh0),(1,sh1)):
        for p in range(2):
            k(f"v_add_f32 {c0}, {aa[2*p]}, {sh}")
            k(f"v_add_f32 {c1}, {aa[2*p+1]}, {sh}")
            k(f"v_cos_f32 {c0}, {c0}")
            k(f"v_cos_f32 {c1}, {c1}")
            k(f"v_cvt_pk_bf16_f32 {A2[2*half+p]}, {c0}, {c1}")
    k(f"""
v_cmp_eq_u32 vcc, 0, {vi}
v_mov_b32 {tv}, 0xbf803f80
v_cndmask_b32 {A3[0]}, 0, {tv}, vcc
v_cndmask_b32 {A3[1]}, 0, {tv}, vcc
v_mov_b32 {A3[2]}, 0
v_mov_b32 {A3[3]}, 0
""")
    vlw,vlr,vst=v(),v(),v()
    k(f"""
s_mul_i32 {t0}, {w}, 1040
v_lshlrev_b32 {vlw}, 8, {vg}
v_lshl_add_u32 {vlw}, {vi}, 2, {vlw}
v_add_u32 {vlw}, {t0}, {vlw}            ; w*1040 + (i+64g)*4
v_and_b32 {tv}, 1, v0
v_mul_u32_u24 {vlr}, 4160, {tv}
v_lshrrev_b32 {c0}, 1, v0               ; k
v_lshl_add_u32 {vlr}, {c0}, 2, {vlr}
v_lshlrev_b32 {vst}, 13, {c0}
v_lshl_add_u32 {vst}, {tv}, 4, {vst}
s_lshl_b32 {t0}, {beta}, 5
v_add_u32 {vst}, {t0}, {vst}
""")
    sm,tt=v(),v()
    k("s_waitcnt vmcnt(4)")
    k(f"v_add_f32 {sm}, {x[0]}, {x[1]}")
    k(f"v_add_f32 {tt}, {x[2]}, {x[3]}")
    k(f"v_add_f32 {c0}, {x[4]}, {x[5]}")
    k(f"v_add_f32 {c1}, {x[6]}, {x[7]}")
    k(f"v_add_f32 {sm}, {sm}, {tt}")
    k(f"v_add_f32 {c0}, {c0}, {c1}")
    k(f"v_add_f32 {sm}, {sm}, {c0}")
    wave_allreduce_add(k,sm,tt)
    k(f"v_mul_f32 {sm}, 0xbb000000, {sm}")
    for j in range(8): k(f"v_add_f32 {x[j]}, {x[j]}, {sm}")
    k(f"v_mul_f32 {sm}, {x[0]}, {x[0]}")
    k(f"v_mul_f32 {c0}, {x[1]}, {x[1]}")
    for j in range(2,8,2):
        k(f"v_fmac_f32 {sm}, {x[j]}, {x[j]}")
        k(f"v_fmac_f32 {c0}, {x[j+1]}, {x[j+1]}")
    k(f"v_add_f32 {sm}, {sm}, {c0}")
    wave_allreduce_add(k,sm,tt)
    k(f"v_mov_b32 {tt}, 0x3727c5ac")
    k(f"v_fmac_f32 {tt}, 0x3b000000, {sm}")
    k(f"v_rsq_f32 {tt}, {tt}")
    k("s_waitcnt vmcnt(0)")
    for j in range(8): k(f"v_mul_f32 {x[j]}, {x[j]}, {tt}")
    for j in range(8): k(f"v_fma_f32 {x[j]}, {x[j]}, {ma[j]}, {mb[j]}")
    A1=v(4,align=4)
    for p in range(4): k(f"v_cvt_pk_bf16_f32 {A1[p]}, {x[2*p]}, {x[2*p+1]}")
    Tr=[v(4,align=4),v(4,align=4)]; Ti=[v(4,align=4),v(4,align=4)]
    k(f"v_mfma_f32_16x16x32_bf16 {Tr[0]}, {A1}, {BC}, 0")
    k(f"v_mfma_f32_16x16x32_bf16 {Ti[0]}, {A1}, {BS}, 0")
    k(f"v_mfma_f32_16x16x32_bf16 {Tr[1]}, {A1}, {BC1}, 0")
    k(f"v_mfma_f32_16x16x32_bf16 {Ti[1]}, {A1}, {BS1}, 0")
    B2=[v(4,align=4),v(4,align=4)]
    Ur=v(4,align=4); Ui=v(4,align=4)
    D=[v(4,align=4),v(4,align=4)]; DN=v(4,align=4)
    for u in range(2):
        for r in range(4):
            k(f"v_mul_f32 {Ur[r]}, {Tr[u][r]}, {TC[4*u+r]}")
            k(f"v_mul_f32 {Ui[r]}, {Ti[u][r]}, {TC[4*u+r]}")
        for r in range(4):
            k(f"v_fmac_f32 {Ur[r]}, {Ti[u][r]}, {TS[4*u+r]}")
            k(f"v_fma_f32 {Ui[r]}, -{Tr[u][r]}, {TS[4*u+r]}, {Ui[r]}")
        k(f"v_cvt_pk_bf16_f32 {B2[u][0]}, {Ur[0]}, {Ur[1]}")
        k(f"v_cvt_pk_bf16_f32 {B2[u][1]}, {Ur[2]}, {Ur[3]}")
        k(f"v_cvt_pk_bf16_f32 {B2[u][2]}, {Ui[0]}, {Ui[1]}")
        k(f"v_cvt_pk_bf16_f32 {B2[u][3]}, {Ui[2]}, {Ui[3]}")
        k(f"v_mfma_f32_16x16x32_bf16 {D[u]}, {A2}, {B2[u]}, 0")
        if u==0: k(f"v_mfma_f32_16x16x32_bf16 {DN}, {A3}, {B2[0]}, 0")
    o=v(4,align=4)
    for u in range(2):
        for b in range(2):
            k(f"v_cvt_pk_bf16_f32 {o[2*u+b]}, {D[u][2*b]}, {D[u][2*b+1]}")
    for u in range(2):
        for b in range(2):
            k(f"ds_write_b32 {vlw}, {o[2*u+b]} offset:{64*u+128*b}")
    sv=s(2)
    k(f"""
v_cvt_pk_bf16_f32 {tt}, {DN[0]}, 0
s_lshl_b32 {t0}, {beta}, 3
s_add_u32 {t0}, {t0}, {w}
s_lshl_b32 {t0}, {t0}, 2
s_add_u32 {t0}, {t0}, {256*8192}
v_mov_b32 {c0}, {t0}
v_cmp_eq_u32 vcc, 0, {lane}
s_and_saveexec_b64 {sv}, vcc
buffer_store_dword {tt}, {c0}, {Rx1}, 0 offen
s_mov_b64 exec, {sv}
s_waitcnt lgkmcnt(0)
s_barrier
""")
    for e in range(4): k(f"ds_read_b32 {o[e]}, {vlr} offset:{1040*e}")
    k("s_waitcnt lgkmcnt(0)")
    k(f"buffer_store_dwordx4 {o}, {vst}, {Rx1}, 0 offen")
    k(f"{END}:\ns_endpgm")
    code,desc=k.finish()
    return (k,code,desc)
if __name__=='__main__':
    from k0 import build_k0
    build_file([build_k0(),build_k1(NAME)],'t_k1.s')
```

```python
from common import *
MF="v_mfma_f32_16x16x32_bf16"
def interleave(k, mf, va, ratio=2):
    vi=0
    for m in mf:
        k(m)
        for _ in range(ratio):
            if vi<len(va): k(va[vi]); vi+=1
    while vi<len(va): k(va[vi]); vi+=1

def build_k2(name='k2_kernel'):
    k=Kernel(name,257,256,lds=8192)
    v,s=k.v,k.s
    END=k.label('END')
    pws=s(2); w,t0,t1,so1,so2=s(),s(),s(),s(),s()
    lane,vi,vg,tv=v(),v(),v(),v()
    k(f"""
s_cmp_ge_u32 s2, 257
s_cbranch_scc1 {END}
s_load_dwordx2 {pws}, s[0:1], {ARG['ws']}
v_lshrrev_b32 {tv}, 6, v0
v_and_b32 {lane}, 63, v0
v_readfirstlane_b32 {w}, {tv}
v_and_b32 {vi}, 15, v0
v_bfe_u32 {vg}, v0, 4, 2
s_lshl_b32 {so1}, s2, 13
s_lshl_b32 {t0}, {w}, 11
s_add_u32 {so2}, {so1}, {t0}
""")
    vo,vo2=v(),v()
    k(f"v_lshlrev_b32 {vo}, 4, {lane}")
    k(f"v_add_u32 {vo2}, 4096, {vo}")
    Rx1,Rwt,Ry=s(4),s(4),s(4)
    k("s_waitcnt lgkmcnt(0)")
    srd(k,Rx1,pws,COLB,WS_X1); srd(k,Rwt,pws,COLB,WS_WT); srd(k,Ry,pws,COLB,WS_Y)
    X=[[v(4,align=4) for kap in range(4)] for t in range(2)]
    W=[v(4,align=4),v(4,align=4)]
    for t in range(2):
        for kap in range(4):
            k(f"buffer_load_dwordx4 {X[t][kap]}, {vo if t==0 else vo2}, {Rx1}, {so1} offen offset:{kap*1024}")
    for t2 in range(2):
        k(f"buffer_load_dwordx4 {W[t2]}, {vo}, {Rwt}, {so2} offen offset:{t2*1024}")
    fi,fg4,k1f,f,f13,arg,c0,s0=v(),v(),v(),v(),v(),v(),v(),v()
    mi=v()
    k(f"""
v_cvt_f32_u32 {fi}, {vi}
v_cvt_f32_u32 {fg4}, {vg}
v_mul_f32 {fg4}, 4.0, {fg4}              ; 4g
s_lshl_b32 {t0}, {w}, 4
v_add_u32 {tv}, {t0}, {vi}
v_cvt_f32_u32 {k1f}, {tv}                ; 16w+i
v_and_b32 {tv}, 1, {vi}
v_mul_u32_u24 {mi}, 0x8000, {tv}
v_lshl_or_b32 {mi}, {mi}, 16, {mi}        ; (i&1) ? 0x80008000 : 0
""")
    BR=[v(4,align=4) for _ in range(4)]; BI=[v(4,align=4) for _ in range(4)]
    k(f"v_mul_f32 {f}, 0x3c800000, {k1f}")
    k(f"v_mul_f32 {f13}, 0x41500000, {f}")
    k(f"v_mul_f32 {arg}, {fg4}, {f}")
    c1,s1=v(),v()
    for kap in range(2):
        for e in range(4):
            cc,ss=(c0,s0) if e&1==0 else (c1,s1)
            k(f"v_cos_f32 {cc}, {arg}")
            k(f"v_sin_f32 {ss}, {arg}")
            if not(kap==1 and e==3): k(f"v_add_f32 {arg}, {arg}, {f if e<3 else f13}")
            k(f"v_cvt_pk_bf16_f32 {BR[kap][e]}, {cc}, {ss}")
            k(f"v_cvt_pk_bf16_f32 {BI[kap][e]}, -{ss}, {cc}")
    for kap in range(2,4):
        for e in range(4):
            k(f"v_xor_b32 {BR[kap][e]}, {mi}, {BR[kap-2][e]}")
            k(f"v_xor_b32 {BI[kap][e]}, {mi}, {BI[kap-2][e]}")
    T1C=v(8,align=4); T1S=v(8,align=4)
    k(f"v_mul_f32 {f}, 0x3a000000, {k1f}")
    k(f"v_mul_f32 {f13}, 0x41500000, {f}")
    k(f"v_mul_f32 {arg}, {fg4}, {f}")
    for t in range(2):
        for r in range(4):
            k(f"v_cos_f32 {T1C[4*t+r]}, {arg}")
            k(f"v_sin_f32 {T1S[4*t+r]}, {arg}")
            if not(t==1 and r==3): k(f"v_add_f32 {arg}, {arg}, {f if r<3 else f13}")
    CS=[[v(6,align=2) for b in range(2)] for a in range(2)]
    cc4=v(4,align=2); ss4=v(4,align=2)
    k(f"v_mul_f32 {f}, 0x3d000000, {fi}")
    k(f"v_mul_f32 {arg}, {fg4}, {f}")
    for j in range(4):
        k(f"v_cos_f32 {cc4[j]}, {arg}")
        k(f"v_sin_f32 {ss4[j]}, {arg}")
        if j<3: k(f"v_add_f32 {arg}, {arg}, {f}")
    c00=CS[0][0]
    k(f"v_cvt_pk_bf16_f32 {c00[0]}, -{ss4[0]}, -{ss4[1]}")
    k(f"v_cvt_pk_bf16_f32 {c00[1]}, -{ss4[2]}, -{ss4[3]}")
    k(f"v_cvt_pk_bf16_f32 {c00[2]}, {cc4[0]}, {cc4[1]}")
    k(f"v_cvt_pk_bf16_f32 {c00[3]}, {cc4[2]}, {cc4[3]}")
    k(f"v_cvt_pk_bf16_f32 {c00[4]}, {ss4[0]}, {ss4[1]}")
    k(f"v_cvt_pk_bf16_f32 {c00[5]}, {ss4[2]}, {ss4[3]}")
    for j in range(6): k(f"v_xor_b32 {CS[0][1][j]}, {mi}, {c00[j]}")
    for j in range(6): k(f"v_xor_b32 {CS[1][0][j]}, 0x80000000, {c00[j]}")
    for j in range(6): k(f"v_xor_b32 {CS[1][1][j]}, 0x80000000, {CS[0][1][j]}")
    T2C=v(8,align=4); T2S=v(8,align=4); scl=s(); kb=v()
    k(f"""
s_and_b32 {t0}, s2, 0xff
s_cmp_eq_u32 {t0}, 0
s_mov_b32 {scl}, 0x36000000
s_cselect_b32 {scl}, 0x35800000, {scl}
s_lshl_b32 {t0}, {w}, 4
v_cvt_f32_u32 {kb}, {t0}
v_add_f32 {kb}, {kb}, {fg4}              ; 16w+4g
""")
    for t in range(2):
        if t==0: k(f"v_mul_f32 {f}, 0x3a000000, {fi}")
        else: k(f"v_add_f32 {f}, 0x3c000000, {f}")
        k(f"v_mul_f32 {arg}, {kb}, {f}")
        for r in range(4):
            k(f"v_cos_f32 {T2C[4*t+r]}, {arg}")
            k(f"v_sin_f32 {T2S[4*t+r]}, {arg}")
            if r<3: k(f"v_add_f32 {arg}, {arg}, {f}")
    for j in range(8):
        k(f"v_mul_f32 {T2C[j]}, {scl}, {T2C[j]}")
        k(f"v_mul_f32 {T2S[j]}, {scl}, {T2S[j]}")
    vlw=v()
    k(f"s_lshl_b32 {t0}, {w}, 10")
    k(f"v_add_u32 {vlw}, {t0}, {vo}")
    so3=s()
    k(f"s_add_u32 {so3}, {so1}, {t0}")
    Ar=[v(4,align=4),v(4,align=4)]; Ai=[v(4,align=4),v(4,align=4)]
    def cmul_tw(dst_r,dst_i,xr,xi,tc,ts):
        out=[]
        for r in range(4):
            out.append(f"v_mul_f32 {dst_r[r]}, {xr[r]}, {tc[r]}")
            out.append(f"v_mul_f32 {dst_i[r]}, {xi[r]}, {tc[r]}")
        for r in range(4):
            out.append(f"v_fmac_f32 {dst_r[r]}, {xi[r]}, {ts[r]}")
            out.append(f"v_fma_f32 {dst_i[r]}, -{xr[r]}, {ts[r]}, {dst_i[r]}")
        return out
    Ur=v(4,align=4); Ui=v(4,align=4)
    B2=[v(4,align=4),v(4,align=4)]
    def pack_split(dst,ur,ui):
        return [f"v_cvt_pk_bf16_f32 {dst[0]}, {ur[0]}, {ur[1]}",f"v_cvt_pk_bf16_f32 {dst[1]}, {ur[2]}, {ur[3]}",
                f"v_cvt_pk_bf16_f32 {dst[2]}, {ui[0]}, {ui[1]}",f"v_cvt_pk_bf16_f32 {dst[3]}, {ui[2]}, {ui[3]}"]
    for kap in range(4):
        k(f"s_waitcnt vmcnt({9-kap})")
        k(f"{MF} {Ar[0]}, {X[0][kap]}, {BR[kap]}, {0 if kap==0 else Ar[0]}")
        k(f"{MF} {Ai[0]}, {X[0][kap]}, {BI[kap]}, {0 if kap==0 else Ai[0]}")
    k("s_waitcnt vmcnt(2)")
    mf=[]
    for kap in range(4):
        mf.append(f"{MF} {Ar[1]}, {X[1][kap]}, {BR[kap]}, {0 if kap==0 else Ar[1]}")
        mf.append(f"{MF} {Ai[1]}, {X[1][kap]}, {BI[kap]}, {0 if kap==0 else Ai[1]}")
    va=cmul_tw(Ur,Ui,Ar[0],Ai[0],T1C[0:4],T1S[0:4])+pack_split(B2[0],Ur,Ui)
    k(mf[0]); k(mf[1]); k(mf[2])
    interleave(k,mf[3:],va,ratio=3)
    Fr=[v(4,align=4),v(4,align=4)]; Fi=[v(4,align=4),v(4,align=4)]
    mf=[]
    for t2 in range(2):
        mf.append(f"{MF} {Fr[t2]}, {CS[t2][0][2:6]}, {B2[0]}, 0")
        mf.append(f"{MF} {Fi[t2]}, {CS[t2][0][0:4]}, {B2[0]}, 0")
    va=cmul_tw(Ur,Ui,Ar[1],Ai[1],T1C[4:8],T1S[4:8])+pack_split(B2[1],Ur,Ui)
    for m in mf[:2]: k(m)
    interleave(k,mf[2:],va,ratio=4)
    for t2 in range(2):
        k(f"{MF} {Fr[t2]}, {CS[t2][1][2:6]}, {B2[1]}, {Fr[t2]}")
        k(f"{MF} {Fi[t2]}, {CS[t2][1][0:4]}, {B2[1]}, {Fi[t2]}")
    k("s_waitcnt vmcnt(0)")
    wr4=v(4,align=4); wi4=v(4,align=4)
    A3=[v(4,align=4),v(4,align=4)]
    unp=[]
    Wr=[wr4,T1C[0:4]]; Wi=[wi4,T1S[0:4]]
    for t2 in range(2):
        for r in range(4):
            k(f"v_lshlrev_b32 {Wr[t2][r]}, 16, {W[t2][r]}")
            k(f"v_and_b32 {Wi[t2][r]}, 0xffff0000, {W[t2][r]}")
    def filt(t2):
        out=[]
        for r in range(4):
            out.append(f"v_mul_f32 {Ur[r]}, {Fr[t2][r]}, {Wr[t2][r]}")
            out.append(f"v_mul_f32_e64 {Ui[r]}, -{Fr[t2][r]}, {Wi[t2][r]}")
        for r in range(4):
            out.append(f"v_fma_f32 {Ur[r]}, -{Fi[t2][r]}, {Wi[t2][r]}, {Ur[r]}")
            out.append(f"v_fma_f32 {Ui[r]}, -{Fi[t2][r]}, {Wr[t2][r]}, {Ui[r]}")
        return out+pack_split(A3[t2],Ur,Ui)
    for x in filt(0): k(x)
    Vr=Ar; Vi=Ai
    mf=[]
    for t in range(2):
        mf.append(f"{MF} {Vr[t]}, {A3[0]}, {CS[t][0][2:6]}, 0")
        mf.append(f"{MF} {Vi[t]}, {A3[0]}, {CS[t][0][0:4]}, 0")
    interleave(k,mf,filt(1),ratio=4)
    for t in range(2):
        k(f"{MF} {Vr[t]}, {A3[1]}, {CS[t][1][2:6]}, {Vr[t]}")
        k(f"{MF} {Vi[t]}, {A3[1]}, {CS[t][1][0:4]}, {Vi[t]}")
    G=[B2[0],B2[1]]
    for t in range(2):
        for x in cmul_tw(Ur,Ui,Vr[t],Vi[t],T2C[4*t:4*t+4],T2S[4*t:4*t+4]): k(x)
        for r in range(4): k(f"v_cvt_pk_bf16_f32 {G[t][r]}, {Ur[r]}, {Ui[r]}")
        k(f"ds_write_b128 {vlw}, {G[t]} offset:{t*4096}")
    k("s_waitcnt lgkmcnt(0)")
    k("s_barrier")
    for t in range(2):
        for kap in range(4):
            k(f"ds_read_b128 {X[t][kap]}, {vo} offset:{(t*4+kap)*1024}")
    Yr=Fr; Yi=Fi
    for t in range(2):
        for kap in range(4):
            k(f"s_waitcnt lgkmcnt({7-(t*4+kap)})")
            k(f"{MF} {Yr[t]}, {BR[kap]}, {X[t][kap]}, {0 if kap==0 else Yr[t]}")
            k(f"{MF} {Yi[t]}, {BI[kap]}, {X[t][kap]}, {0 if kap==0 else Yi[t]}")
    for t in range(2):
        for r in range(4): k(f"v_cvt_pk_bf16_f32 {G[t][r]}, {Yr[t][r]}, -{Yi[t][r]}")
        k(f"buffer_store_dwordx4 {G[t]}, {vo if t==0 else vo2}, {Ry}, {so3} offen")
    k(f"{END}:\ns_endpgm")
    code,desc=k.finish()
    return (k,code,desc)
if __name__=='__main__':
    from k0 import build_k0
    from k1 import build_k1
    build_file([build_k0(),build_k1(),build_k2(NAME)],'t_k2.s')
```

```python
from common import *
MF="v_mfma_f32_16x16x32_bf16"; MF16="v_mfma_f32_16x16x16_bf16"
def build_k3(name='k3_kernel'):
    L2=8320
    k=Kernel(name,256,512,lds=L2+32*272)
    v,s=k.v,k.s
    END=k.label('END')
    px,pws=s(2),s(2)
    beta,t0,t1,w,row=s(),s(),s(),s(),s()
    lane,vi,vg,tv=v(),v(),v(),v()
    k(f"""
s_cmp_ge_u32 s2, 256
s_cbranch_scc1 {END}
s_load_dwordx2 {px}, s[0:1], {ARG['x']}
s_load_dwordx2 {pws}, s[0:1], {ARG['ws']}
v_lshrrev_b32 {tv}, 6, v0
v_and_b32 {lane}, 63, v0
v_readfirstlane_b32 {w}, {tv}
v_and_b32 {vi}, 15, v0
v_bfe_u32 {vg}, v0, 4, 2
""")
    beta_of_wg(k,beta,t0)
    row_of_pos(k,row,beta,w,t0,t1)
    k(f"s_lshl_b32 {row}, {row}, 10")
    vy,vhalf,vk,vxo,vmo=v(),v(),v(),v(),v()
    sny,stau=s(),s()
    k(f"""
v_and_b32 {vhalf}, 1, v0
v_lshrrev_b32 {vk}, 1, v0
v_lshlrev_b32 {vy}, 13, {vk}
v_lshl_add_u32 {vy}, {vhalf}, 4, {vy}
s_lshl_b32 {t0}, {beta}, 5
v_add_u32 {vy}, {t0}, {vy}
s_lshl_b32 {stau}, {beta}, 3
s_add_u32 {stau}, {stau}, {w}            ; tau
s_lshl_b32 {sny}, {stau}, 2
s_add_u32 {sny}, {sny}, {256*8192}
v_lshlrev_b32 {vxo}, 5, {vi}
v_lshl_add_u32 {vxo}, {vg}, 3, {vxo}
v_lshlrev_b32 {vmo}, 1, {vxo}
s_lshl_b32 {stau}, {stau}, 10
""")
    Rx,Rmod,Ry,Rx1,Rh=s(4),s(4),s(4),s(4),s(4)
    k("s_waitcnt lgkmcnt(0)")
    srd(k,Ry,pws,COLB,WS_Y); srd(k,Rx,px,2048*1024); srd(k,Rmod,pws,6*2048,WS_MOD)
    srd(k,Rx1,pws,2048*1024,WS_X1R); srd(k,Rh,pws,2048*1024,WS_H2F)
    yv=v(4,align=4); ny=v(); zero=v()
    xr=[v(2),v(2)]
    ga=[v(4,align=4),v(4,align=4)]; sb=[v(4,align=4),v(4,align=4)]; cb=[v(4,align=4),v(4,align=4)]
    k(f"buffer_load_dwordx4 {yv}, {vy}, {Ry}, 0 offen")
    k(f"v_mov_b32 {zero}, 0")
    k(f"buffer_load_short_d16_hi {ny}, {zero}, {Ry}, {sny} offen")
    for t in range(2): k(f"buffer_load_dwordx2 {xr[t]}, {vxo}, {Rx}, {row} offen offset:{512*t}")
    vmo2,vmo3=v(),v()
    k(f"v_add_u32 {vmo2}, 4096, {vmo}")
    k(f"v_add_u32 {vmo3}, 8192, {vmo}")
    for t in range(2): k(f"buffer_load_dwordx4 {ga[t]}, {vmo2}, {Rmod}, 0 offen offset:{1024*t}")
    for t in range(2): k(f"buffer_load_dwordx4 {sb[t]}, {vmo2}, {Rmod}, 0 offen offset:{2048+1024*t}")
    for t in range(2): k(f"buffer_load_dwordx4 {cb[t]}, {vmo3}, {Rmod}, 0 offen offset:{1024*t}")
    fi,fg,f,arg,c0,s0,c1,s1,mi=v(),v(),v(),v(),v(),v(),v(),v(),v()
    k(f"""
v_cvt_f32_u32 {fi}, {vi}
v_cvt_f32_u32 {fg}, {vg}
v_and_b32 {tv}, 1, {vi}
v_mul_u32_u24 {mi}, 0x8000, {tv}
v_lshl_or_b32 {mi}, {mi}, 16, {mi}
""")
    BAr=v(2); BAi=v(2)
    k(f"v_mul_f32 {f}, 0x3d800000, {fi}")
    k(f"v_add_f32 {arg}, {fg}, {fg}")
    k(f"v_mul_f32 {arg}, {arg}, {f}")
    for b in range(2):
        k(f"v_cos_f32 {c0}, {arg}")
        k(f"v_sin_f32 {s0}, {arg}")
        if b==0: k(f"v_add_f32 {arg}, {arg}, {f}")
        k(f"v_cvt_pk_bf16_f32 {BAr[b]}, {c0}, -{s0}")
        k(f"v_cvt_pk_bf16_f32 {BAi[b]}, {s0}, {c0}")
    TC=v(8,align=4); TS=v(8,align=4); f13,g4=v(),v()
    k(f"v_mul_f32 {g4}, 4.0, {fg}")
    k(f"v_mul_f32 {f}, 0x3b000000, {fi}")
    k(f"v_mul_f32 {f13}, 0x41500000, {f}")
    k(f"v_mul_f32 {arg}, {g4}, {f}")
    for u in range(2):
        for r in range(4):
            k(f"v_cos_f32 {TC[4*u+r]}, {arg}")
            k(f"v_sin_f32 {TS[4*u+r]}, {arg}")
            if not(u==1 and r==3): k(f"v_add_f32 {arg}, {arg}, {f if r<3 else f13}")
    BB=[[v(4,align=4) for u in range(2)] for t in range(2)]
    cc4=v(4,align=2); ss4=v(4,align=2)
    k(f"v_mul_f32 {f}, 0x3d000000, {fi}")
    k(f"v_mul_f32 {arg}, {g4}, {f}")
    for j in range(4):
        k(f"v_cos_f32 {cc4[j]}, {arg}")
        k(f"v_sin_f32 {ss4[j]}, {arg}")
        if j<3: k(f"v_add_f32 {arg}, {arg}, {f}")
    b00=BB[0][0]
    k(f"v_cvt_pk_bf16_f32 {b00[0]}, {cc4[0]}, {cc4[1]}")
    k(f"v_cvt_pk_bf16_f32 {b00[1]}, {cc4[2]}, {cc4[3]}")
    k(f"v_cvt_pk_bf16_f32 {b00[2]}, -{ss4[0]}, -{ss4[1]}")
    k(f"v_cvt_pk_bf16_f32 {b00[3]}, -{ss4[2]}, -{ss4[3]}")
    for j in range(4): k(f"v_xor_b32 {BB[0][1][j]}, {mi}, {b00[j]}")
    for j in range(4): k(f"v_xor_b32 {BB[1][0][j]}, 0x80000000, {b00[j]}")
    for j in range(4): k(f"v_xor_b32 {BB[1][1][j]}, 0x80000000, {BB[0][1][j]}")
    cny=v()
    k(f"""
v_lshlrev_b32 {tv}, 31, {vi}
v_or_b32 {tv}, 1.0, {tv}
v_cmp_eq_u32 vcc, 0, {vg}
v_cndmask_b32 {cny}, 0, {tv}, vcc
""")
    vlw,vlr,vl2w,vl2r,vst=v(),v(),v(),v(),v()
    k(f"""
v_mul_u32_u24 {vlw}, 4160, {vhalf}
v_lshl_add_u32 {vlw}, {vk}, 2, {vlw}       ; half*4160 + k*4
s_mul_i32 {t0}, {w}, 1040
v_lshlrev_b32 {vlr}, 8, {vg}
v_lshl_add_u32 {vlr}, {vi}, 2, {vlr}
v_add_u32 {vlr}, {t0}, {vlr}               ; w*1040 + (i+64g)*4
s_lshl_b32 {t0}, {w}, 4
s_add_u32 {t0}, {t0}, {L2}
v_mul_u32_u24 {vl2w}, 272, {vi}
v_lshrrev_b32 {tv}, 1, {vg}
v_lshl_add_u32 {vl2w}, {tv}, 7, {vl2w}
v_and_b32 {tv}, 1, {vg}
v_lshl_add_u32 {vl2w}, {tv}, 3, {vl2w}
v_add_u32 {vl2w}, {t0}, {vl2w}             ; L2 + i*272 + (g>>1)*128 + w*16 + (g&1)*8   (+ t*16*272)
v_lshrrev_b32 {tv}, 4, v0                  ; p>>1
v_mul_u32_u24 {vl2r}, 272, {tv}
v_and_b32 {tv}, 15, v0                     ; (p&1)*8 + row
v_lshl_add_u32 {vl2r}, {tv}, 4, {vl2r}
v_add_u32 {vl2r}, {L2}, {vl2r}
v_lshrrev_b32 {tv}, 3, v0                  ; p
v_lshlrev_b32 {vst}, 9, {tv}
v_and_b32 {tv}, 7, v0
v_lshl_add_u32 {vst}, {tv}, 4, {vst}
s_lshr_b32 {t0}, {beta}, 2
s_lshl_b32 {t0}, {t0}, 15
s_and_b32 {t1}, {beta}, 3
s_lshl_b32 {t1}, {t1}, 7
s_add_u32 {t0}, {t0}, {t1}
v_add_u32 {vst}, {t0}, {vst}
""")
    k("s_waitcnt vmcnt(9)")
    for e in range(4): k(f"ds_write_b32 {vlw}, {yv[e]} offset:{1040*e}")
    k("s_waitcnt lgkmcnt(0)")
    k("s_barrier")
    Ad=[v(2),v(2)]
    for u in range(2):
        for b in range(2):
            k(f"ds_read_b32 {Ad[u][b]}, {vlr} offset:{64*u+128*b}")
    Dr=[v(4,align=4),v(4,align=4)]; Di=[v(4,align=4),v(4,align=4)]
    k("s_waitcnt lgkmcnt(2)")
    k(f"{MF16} {Dr[0]}, {Ad[0]}, {BAr}, 0")
    k(f"{MF16} {Di[0]}, {Ad[0]}, {BAi}, 0")
    k("s_waitcnt lgkmcnt(0)")
    k(f"{MF16} {Dr[1]}, {Ad[1]}, {BAr}, 0")
    k(f"{MF16} {Di[1]}, {Ad[1]}, {BAi}, 0")
    k("s_waitcnt vmcnt(8)")
    k(f"v_fmac_f32 {Dr[0][0]}, {cny}, {ny}")
    Ur=v(4,align=4); Ui=v(4,align=4); AB=[v(4,align=4),v(4,align=4)]
    Yo=[v(4,align=4),v(4,align=4)]
    for u in range(2):
        for r in range(4):
            k(f"v_mul_f32 {Ur[r]}, {Dr[u][r]}, {TC[4*u+r]}")
            k(f"v_mul_f32 {Ui[r]}, {Di[u][r]}, {TC[4*u+r]}")
        for r in range(4):
            k(f"v_fma_f32 {Ur[r]}, -{Di[u][r]}, {TS[4*u+r]}, {Ur[r]}")
            k(f"v_fmac_f32 {Ui[r]}, {Dr[u][r]}, {TS[4*u+r]}")
        k(f"v_cvt_pk_bf16_f32 {AB[u][0]}, {Ur[0]}, {Ur[1]}")
        k(f"v_cvt_pk_bf16_f32 {AB[u][1]}, {Ur[2]}, {Ur[3]}")
        k(f"v_cvt_pk_bf16_f32 {AB[u][2]}, {Ui[0]}, {Ui[1]}")
        k(f"v_cvt_pk_bf16_f32 {AB[u][3]}, {Ui[2]}, {Ui[3]}")
        for t in range(2):
            k(f"{MF} {Yo[t]}, {AB[u]}, {BB[t][u]}, {0 if u==0 else Yo[t]}")
    k("s_waitcnt vmcnt(4)")
    x1=v(8,align=4)
    for t in range(2):
        k(f"v_lshlrev_b32 {x1[4*t+0]}, 16, {xr[t][0]}")
        k(f"v_and_b32 {x1[4*t+1]}, 0xffff0000, {xr[t][0]}")
        k(f"v_lshlrev_b32 {x1[4*t+2]}, 16, {xr[t][1]}")
        k(f"v_and_b32 {x1[4*t+3]}, 0xffff0000, {xr[t][1]}")
    for t in range(2):
        for r in range(4): k(f"v_fmac_f32 {x1[4*t+r]}, {ga[t][r]}, {Yo[t][r]}")
    for t in range(2):
        k(f"v_cvt_pk_bf16_f32 {xr[t][0]}, {x1[4*t+0]}, {x1[4*t+1]}")
        k(f"v_cvt_pk_bf16_f32 {xr[t][1]}, {x1[4*t+2]}, {x1[4*t+3]}")
    for t in range(2):
        k(f"buffer_store_dwordx2 {xr[t]}, {vxo}, {Rx1}, {stau} offen offset:{512*t}")
    for t in range(2):
        k(f"v_lshlrev_b32 {x1[4*t+0]}, 16, {xr[t][0]}")
        k(f"v_and_b32 {x1[4*t+1]}, 0xffff0000, {xr[t][0]}")
        k(f"v_lshlrev_b32 {x1[4*t+2]}, 16, {xr[t][1]}")
        k(f"v_and_b32 {x1[4*t+3]}, 0xffff0000, {xr[t][1]}")
    sm,tt=v(),v()
    k(f"v_add_f32 {sm}, {x1[0]}, {x1[1]}")
    k(f"v_add_f32 {tt}, {x1[2]}, {x1[3]}")
    k(f"v_add_f32 {c0}, {x1[4]}, {x1[5]}")
    k(f"v_add_f32 {c1}, {x1[6]}, {x1[7]}")
    k(f"v_add_f32 {sm}, {sm}, {tt}")
    k(f"v_add_f32 {c0}, {c0}, {c1}")
    k(f"v_add_f32 {sm}, {sm}, {c0}")
    wave_allreduce_add(k,sm,tt)
    k(f"v_mul_f32 {sm}, 0xbb000000, {sm}")
    for j in range(8): k(f"v_add_f32 {x1[j]}, {x1[j]}, {sm}")
    k(f"v_mul_f32 {sm}, {x1[0]}, {x1[0]}")
    k(f"v_mul_f32 {c0}, {x1[1]}, {x1[1]}")
    for j in range(2,8,2):
        k(f"v_fmac_f32 {sm}, {x1[j]}, {x1[j]}")
        k(f"v_fmac_f32 {c0}, {x1[j+1]}, {x1[j+1]}")
    k(f"v_add_f32 {sm}, {sm}, {c0}")
    wave_allreduce_add(k,sm,tt)
    k(f"v_mov_b32 {tt}, 0x3727c5ac")
    k(f"v_fmac_f32 {tt}, 0x3b000000, {sm}")
    k(f"v_rsq_f32 {tt}, {tt}")
    k("s_waitcnt vmcnt(2)")
    for j in range(8): k(f"v_mul_f32 {x1[j]}, {x1[j]}, {tt}")
    for t in range(2):
        for r in range(4): k(f"v_fma_f32 {x1[4*t+r]}, {x1[4*t+r]}, {cb[t][r]}, {sb[t][r]}")
    hp=[v(2),v(2)]
    for t in range(2):
        k(f"v_cvt_pk_bf16_f32 {hp[t][0]}, {x1[4*t+0]}, {x1[4*t+1]}")
        k(f"v_cvt_pk_bf16_f32 {hp[t][1]}, {x1[4*t+2]}, {x1[4*t+3]}")
        k(f"ds_write_b64 {vl2w}, {hp[t]} offset:{t*16*272}")
    k("s_waitcnt lgkmcnt(0)")
    k("s_barrier")
    k(f"ds_read_b128 {yv}, {vl2r}")
    k("s_waitcnt lgkmcnt(0)")
    k(f"buffer_store_dwordx4 {yv}, {vst}, {Rh}, 0 offen")
    k(f"{END}:\ns_endpgm")
    code,desc=k.finish()
    return (k,code,desc)
if __name__=='__main__':
    from k0 import build_k0
    from k1 import build_k1
    from k2 import build_k2
    build_file([build_k0(),build_k1(),build_k2(),build_k3(NAME)],'t_k3.s')
```

```python
from common import *
MF="v_mfma_f32_32x32x16_bf16"
MAT=14464; CHUNK=2*MAT; NB=5
def build_k4(name='k4_kernel'):
    k=Kernel(name,256,256,lds=NB*CHUNK)
    v,s,a=k.v,k.s,k.a
    END=k.label('END')
    pg,pu,pws=s(2),s(2),s(2)
    w,t0,t1,tb,fb=s(),s(),s(),s(),s()
    lane,tv=v(),v()
    k(f"""
s_cmp_ge_u32 s2, 256
s_cbranch_scc1 {END}
s_load_dwordx2 {pg}, s[0:1], {ARG['wg']}
s_load_dwordx2 {pu}, s[0:1], {ARG['wu']}
s_load_dwordx2 {pws}, s[0:1], {ARG['ws']}
v_lshrrev_b32 {tv}, 6, v0
v_and_b32 {lane}, 63, v0
v_readfirstlane_b32 {w}, {tv}
s_and_b32 {t0}, s2, 7            ; x
s_lshr_b32 {t1}, s2, 3           ; slot
s_and_b32 {tb}, {t0}, 1
s_lshl_b32 {tb}, {tb}, 3
s_lshr_b32 {fb}, {t0}, 1
s_lshl_b32 {fb}, {fb}, 2
s_and_b32 {t0}, {t1}, 7
s_add_u32 {tb}, {tb}, {t0}
s_lshr_b32 {t0}, {t1}, 3
s_add_u32 {fb}, {fb}, {t0}
""")
    vd=[v() for _ in range(7)]
    mat,dh,sm0=s(),s(),s()
    k(f"""
s_and_b32 {mat}, {w}, 1
s_lshr_b32 {dh}, {w}, 1
s_mul_i32 {t0}, {dh}, {32*3584}
s_mul_i32 {t1}, {fb}, 224
s_add_u32 {t0}, {t0}, {t1}
s_mul_i32 {sm0}, {mat}, {MAT}
s_mul_i32 {t1}, {dh}, 7168
s_add_u32 {sm0}, {sm0}, {t1}
""")
    p,row=v(),v()
    cdiv=s(); k(f"s_mov_b32 {cdiv}, 4682")
    for n in range(7):
        k(f"v_add_u32 {p}, {64*n}, {lane}")
        k(f"v_mul_u32_u24 {row}, {cdiv}, {p}")
        k(f"v_lshrrev_b32 {row}, 16, {row}")
        k(f"v_mul_u32_u24 {tv}, 14, {row}")
        k(f"v_sub_u32 {p}, {p}, {tv}")
        k(f"v_mul_u32_u24 {row}, 3584, {row}")
        k(f"v_lshl_add_u32 {vd[n]}, {p}, 4, {row}")
        k(f"v_add_u32 {vd[n]}, {t0}, {vd[n]}")
        if n&3: k(f"v_subrev_u32 {vd[n]}, {(n&3)*1024}, {vd[n]}")
    vtok=v(); k(f"v_lshlrev_b32 {vtok}, 4, {lane}")
    stok,schunk,tt=s(),s(),s()
    k(f"""
s_lshl_b32 {tt}, {tb}, 2
s_add_u32 {tt}, {tt}, {w}
s_lshl_b32 {stok}, {tt}, 15
s_mov_b32 {schunk}, 0
""")
    Rw,Rh,Ro=s(4),s(4),s(4)
    k("s_waitcnt lgkmcnt(0)")
    k(f"s_cmp_eq_u32 {mat}, 0")
    k(f"s_cselect_b32 {Rw[0]}, {pg[0]}, {pu[0]}")
    k(f"s_cselect_b32 {Rw[1]}, {pg[1]}, {pu[1]}")
    k(f"s_mov_b32 {Rw[2]}, {512*3584}")
    k(f"s_mov_b32 {Rw[3]}, 0x00020000")
    srd(k,Rh,pws,2048*1024,WS_H2F); srd(k,Ro,pws,2048*1792*2,WS_HHF)
    tok=a(128,align=4)
    def group(c):
        out=[]
        slot=c%NB
        for n in range(7):
            pre=""
            if n==0: pre=f"s_add_u32 m0, {sm0}, {slot*CHUNK}\ns_nop 0\n"
            if n==4: pre=f"s_add_u32 m0, {sm0}, {slot*CHUNK+4096}\ns_nop 0\n"
            out.append(pre+f"buffer_load_dwordx4 {vd[n]}, {Rw}, {schunk} offen offset:{(n&3)*1024} lds")
        for kap in range(4):
            post=""
            if kap==3: post=f"\ns_add_u32 {schunk}, {schunk}, {64*3584}\ns_add_u32 {stok}, {stok}, 4096"
            out.append(f"buffer_load_dwordx4 {tok[16*c+4*kap:16*c+4*kap+4]}, {vtok}, {Rh}, {stok} offen offset:{kap*1024}"+post)
        return out
    for c in range(NB):
        for x in group(c): k(x)
    vA=[v() for _ in range(NB)]
    c_,r_,G_=v(),v(),v()
    k(f"""
v_and_b32 {c_}, 3, {lane}
v_bfe_u32 {r_}, {lane}, 2, 2
v_lshrrev_b32 {G_}, 4, {lane}
v_lshrrev_b32 {tv}, 1, {c_}
v_mul_u32_u24 {vA[0]}, {MAT}, {tv}
v_lshrrev_b32 {tv}, 1, {G_}
v_lshl_add_u32 {tv}, {tv}, 3, {r_}
v_mul_u32_u24 {tv}, 224, {tv}
v_add_u32 {vA[0]}, {vA[0]}, {tv}
v_and_b32 {tv}, 1, {c_}
v_lshl_add_u32 {vA[0]}, {tv}, 4, {vA[0]}
v_and_b32 {tv}, 1, {G_}
v_lshl_add_u32 {vA[0]}, {tv}, 3, {vA[0]}
""")
    for b in range(1,NB): k(f"v_add_u32 {vA[b]}, {b*CHUNK}, {vA[0]}")
    acc=[v(16,align=4) for _ in range(7)]
    fr=[[v(4,align=4) for _ in range(7)] for _ in range(2)]
    def reads(c,kap,buf):
        out=[]
        for t7 in range(7):
            for e in range(2):
                out.append(f"ds_read_b64_tr_b16 {fr[buf][t7][2*e:2*e+2]}, {vA[c%NB]} offset:{kap*3584+e*896+t7*32}")
        return out
    sst=s()
    k(f"""
s_mul_i32 {sst}, {tt}, 112
s_mul_i32 {t0}, {fb}, 7
s_add_u32 {sst}, {sst}, {t0}
s_lshl_b32 {sst}, {sst}, 10
""")
    k("s_waitcnt vmcnt(44)")
    k("s_barrier")
    for x in reads(0,0,0): k(x)
    vm_sched={0:33,1:33,2:33,3:33,4:22,5:11,6:0}
    pend=[]
    step=0
    for c in range(8):
        for kap in range(4):
            buf=step&1
            last=(c==7 and kap==3)
            nc,nk=(c,kap+1) if kap<3 else (c+1,0)
            rd=[] if last else reads(nc,nk,buf^1)
            if kap==3 and c<7:
                k("s_waitcnt lgkmcnt(0)")
                k(f"s_waitcnt vmcnt({vm_sched[c]})")
                k("s_barrier")
                if c+NB<8: pend=group(c+NB)
            else:
                k("s_waitcnt lgkmcnt(8)")
            ri=0
            for t7 in range(7):
                if t7==3 and not(kap==3 and c<7):
                    k(f"s_waitcnt lgkmcnt({0 if last else 9})")
                cin = 0 if step==0 else acc[t7]
                k(f"{MF} {acc[t7]}, {fr[buf][t7]}, {tok[16*c+4*kap:16*c+4*kap+4]}, {cin}")
                nrd=3 if t7<4 else 2
                for _ in range(nrd):
                    if ri<len(rd): k(rd[ri]); ri+=1
                if t7 in (1,3,5) and pend: k(pend.pop(0))
            assert ri==len(rd)
            step+=1
    assert not pend
    o=[v(4,align=4),v(4,align=4)]
    for t7 in range(7):
        A=acc[t7]; oo=o[t7&1]
        for r in range(4):
            k(f"v_mul_f32 {A[r]}, {A[r]}, {A[4+r]}")
            k(f"v_mul_f32 {A[8+r]}, {A[8+r]}, {A[12+r]}")
        k(f"v_cvt_pk_bf16_f32 {oo[0]}, {A[0]}, {A[1]}")
        k(f"v_cvt_pk_bf16_f32 {oo[1]}, {A[2]}, {A[3]}")
        k(f"v_cvt_pk_bf16_f32 {oo[2]}, {A[8]}, {A[9]}")
        k(f"v_cvt_pk_bf16_f32 {oo[3]}, {A[10]}, {A[11]}")
        if t7==4: k(f"s_add_u32 {sst}, {sst}, 4096")
        k(f"buffer_store_dwordx4 {oo}, {vtok}, {Ro}, {sst} offen offset:{(t7&3)*1024}")
    k(f"{END}:\ns_endpgm")
    code,desc=k.finish()
    return (k,code,desc)
if __name__=='__main__':
    from k0 import build_k0
    from k1 import build_k1
    from k2 import build_k2
    from k3 import build_k3
    build_file([build_k0(),build_k1(),build_k2(),build_k3(),build_k4(NAME)],'t_k4.s')
```

```python
from common import *
MF="v_mfma_f32_32x32x16_bf16"
def build_k5(name=NAME, D=8):
    RING=D*2048; RED=4*RING; WST=64*272
    k=Kernel(name,256,256,lds=RED+4*WST)
    v,s,a=k.v,k.s,k.a
    END=k.label('END')
    pwd,pws,pout=s(2),s(2),s(2)
    w,t0,t1,tb,nb=s(),s(),s(),s(),s()
    lane,tv=v(),v()
    k(f"""
s_cmp_ge_u32 s2, 256
s_cbranch_scc1 {END}
s_load_dwordx2 {pwd}, s[0:1], {ARG['wd']}
s_load_dwordx2 {pws}, s[0:1], {ARG['ws']}
s_load_dwordx2 {pout}, s[0:1], {ARG['out']}
v_lshrrev_b32 {tv}, 6, v0
v_and_b32 {lane}, 63, v0
v_readfirstlane_b32 {w}, {tv}
s_and_b32 {t0}, s2, 7            ; x
s_lshr_b32 {t1}, s2, 3           ; slot
s_lshl_b32 {tb}, {t0}, 2
s_and_b32 {t0}, {t1}, 3
s_add_u32 {tb}, {tb}, {t0}
s_lshr_b32 {nb}, {t1}, 2
""")
    vd,row=v(),v()
    sw,stok,sm0=s(),s(),s()
    k(f"""
v_lshrrev_b32 {row}, 3, {lane}
v_bfe_u32 {tv}, {lane}, 4, 1
v_lshlrev_b32 {tv}, 2, {tv}
v_and_b32 {vd}, 7, {lane}
v_xor_b32 {vd}, {vd}, {tv}
v_lshlrev_b32 {vd}, 4, {vd}
v_lshl_add_u32 {vd}, {row}, 10, {vd}
s_mul_i32 {sw}, {w}, {448*1024}
s_lshl_b32 {t0}, {nb}, 7
s_add_u32 {sw}, {sw}, {t0}                     ; f0*1024 + nb*128
s_mul_i32 {stok}, {tb}, {2*112*1024}
s_mul_i32 {t0}, {w}, {28*1024}
s_add_u32 {stok}, {stok}, {t0}
s_mul_i32 {sm0}, {w}, {RING}
""")
    vd2=v(); vtok=v(); vtok2=v()
    k(f"v_add_u32 {vd2}, {8192-1024}, {vd}")
    k(f"v_lshlrev_b32 {vtok}, 4, {lane}")
    k(f"v_add_u32 {vtok2}, {112*1024}, {vtok}")
    vx1,vout,vgb,vrr=v(),v(),v(),v()
    tau,pos,u1=v(),v(),v()
    k(f"""
v_lshrrev_b32 {tau}, 2, v0
s_lshl_b32 {t0}, {tb}, 6
v_add_u32 {pos}, {t0}, {tau}
v_and_b32 {tv}, 3, v0
v_lshlrev_b32 {vgb}, 5, {tv}
s_lshl_b32 {t0}, {nb}, 7
v_add_u32 {vgb}, {t0}, {vgb}                    ; nb*128 + c*32
v_lshl_add_u32 {vx1}, {pos}, 10, {vgb}
v_bfe_u32 {u1}, {pos}, 8, 2
v_lshlrev_b32 {vout}, 9, {u1}                   ; 512*kap
v_bfe_u32 {u1}, {pos}, 6, 2
v_lshl_add_u32 {vout}, {u1}, 7, {vout}          ; +128 g
v_and_b32 {u1}, 3, {pos}
v_lshl_add_u32 {vout}, {u1}, 5, {vout}          ; +32 e
v_lshrrev_b32 {u1}, 10, {pos}
v_lshl_add_u32 {vout}, {u1}, 4, {vout}          ; +16 t
v_bfe_u32 {u1}, {pos}, 2, 4
v_add_u32 {vout}, {vout}, {u1}                  ; + i
v_lshl_add_u32 {vout}, {vout}, 10, {vgb}        ; s*1024 + nb*128 + c*32
v_lshlrev_b32 {vgb}, 1, {vgb}
v_mul_u32_u24 {vrr}, 272, {tau}
v_lshl_add_u32 {vrr}, {tv}, 6, {vrr}
v_add_u32 {vrr}, {RED}, {vrr}
""")
    Rw,Rh,Rx,Rm,Ro=s(4),s(4),s(4),s(4),s(4)
    k("s_waitcnt lgkmcnt(0)")
    srd(k,Rw,pwd,1792*1024); srd(k,Rh,pws,2048*1792*2,WS_HHF)
    srd(k,Rx,pws,2048*1024,WS_X1R); srd(k,Rm,pws,2048,WS_MOD+5*2048); srd(k,Ro,pout,2048*1024)
    tok=[[v(4,align=4),v(4,align=4)] for _ in range(D)]
    def loads(j):
        sl=j%D
        out=[f"s_add_u32 m0, {sm0}, {sl*2048}\ns_nop 0\nbuffer_load_dwordx4 {vd}, {Rw}, {sw} offen lds",
             f"buffer_load_dwordx4 {vd2}, {Rw}, {sw} offen offset:1024 lds",
             f"buffer_load_dwordx4 {tok[sl][0]}, {vtok}, {Rh}, {stok} offen",
             f"buffer_load_dwordx4 {tok[sl][1]}, {vtok2}, {Rh}, {stok} offen\ns_add_u32 {sw}, {sw}, {16*1024}\ns_add_u32 {stok}, {stok}, 1024"]
        return out
    for j in range(D):
        for x in loads(j): k(x)
    x1=v(8,align=4); gb=v(16,align=4)
    vA=[v(),v()]; c_,r_,G_=v(),v(),v()
    k(f"""
v_and_b32 {c_}, 3, {lane}
v_bfe_u32 {r_}, {lane}, 2, 2
v_lshrrev_b32 {G_}, 4, {lane}
v_lshrrev_b32 {tv}, 1, {G_}
v_lshl_add_u32 {tv}, {tv}, 3, {r_}              ; 8h'+r'
v_lshlrev_b32 {vA[0]}, 7, {tv}
v_and_b32 {tv}, 1, {G_}
v_lshlrev_b32 {tv}, 1, {tv}
v_lshrrev_b32 {u1}, 1, {c_}
v_add_u32 {tv}, {tv}, {u1}                       ; 2(G&1) + (c>>1)
v_lshrrev_b32 {u1}, 1, {r_}
v_lshlrev_b32 {u1}, 2, {u1}
v_xor_b32 {tv}, {tv}, {u1}
v_lshl_add_u32 {vA[0]}, {tv}, 4, {vA[0]}
v_and_b32 {tv}, 1, {c_}
v_lshl_add_u32 {vA[0]}, {tv}, 3, {vA[0]}
v_add_u32 {vA[0]}, {sm0}, {vA[0]}
v_xor_b32 {vA[1]}, 64, {vA[0]}
""")
    acc=[[v(16,align=4) for tt in range(2)] for nu in range(2)]
    fr=[[v(4,align=4),v(4,align=4)] for _ in range(2)]
    def reads(j):
        sl=j%D; b=j&1
        return [f"ds_read_b64_tr_b16 {fr[b][nu][2*e:2*e+2]}, {vA[nu]} offset:{sl*2048+e*512}" for nu in range(2) for e in range(2)]
    NS=28
    k(f"s_waitcnt vmcnt({4*(D-1)})")
    for x in reads(0): k(x)
    issued=D
    for j in range(NS):
        b=j&1; sl=j%D
        if j+1<NS:
            k(f"s_waitcnt vmcnt({4*(issued-(j+2))})")
        k("s_waitcnt lgkmcnt(0)")
        rd=reads(j+1) if j+1<NS else []
        ld=loads(j+D) if j+D<NS else []
        mi=0
        for nu in range(2):
            for tt in range(2):
                cin=0 if j==0 else acc[nu][tt]
                k(f"{MF} {acc[nu][tt]}, {fr[b][nu]}, {tok[sl][tt]}, {cin}")
                if mi<len(rd): k(rd[mi])
                mi+=1
        for x in ld: k(x)
        if ld: issued+=1
        if j==NS-D-1+0:
            pass
    k(f"buffer_load_dwordx4 {x1[0:4]}, {vx1}, {Rx}, 0 offen")
    k(f"buffer_load_dwordx4 {x1[4:8]}, {vx1}, {Rx}, 0 offen offset:16")
    for q in range(4): k(f"buffer_load_dwordx4 {gb[4*q:4*q+4]}, {vgb}, {Rm}, 0 offen offset:{16*q}")
    vrw=v()
    k(f"""
s_mul_i32 {t0}, {w}, {WST}
s_add_u32 {t0}, {t0}, {RED}
v_and_b32 {tv}, 31, {lane}
v_mul_u32_u24 {vrw}, 272, {tv}
v_lshrrev_b32 {tv}, 5, {lane}
v_lshl_add_u32 {vrw}, {tv}, 4, {vrw}
v_add_u32 {vrw}, {t0}, {vrw}
""")
    for tt in range(2):
        for nu in range(2):
            for q in range(4):
                k(f"ds_write_b128 {vrw}, {acc[nu][tt][4*q:4*q+4]} offset:{tt*32*272+nu*128+q*32}")
    k("s_waitcnt lgkmcnt(0)")
    k("s_barrier")
    S=[acc[0][0],acc[0][1],acc[1][0],acc[1][1]]
    for ww in range(4):
        for q in range(4):
            k(f"ds_read_b128 {S[ww][4*q:4*q+4]}, {vrr} offset:{ww*WST+q*16}")
    k("s_waitcnt lgkmcnt(8)")
    for j in range(16): k(f"v_add_f32 {S[0][j]}, {S[0][j]}, {S[1][j]}")
    k("s_waitcnt lgkmcnt(0)")
    for j in range(16): k(f"v_add_f32 {S[2][j]}, {S[2][j]}, {S[3][j]}")
    for j in range(16): k(f"v_add_f32 {S[0][j]}, {S[0][j]}, {S[2][j]}")
    k("s_waitcnt vmcnt(0)")
    xe=S[1]
    for p in range(8):
        k(f"v_lshlrev_b32 {xe[2*p]}, 16, {x1[p]}")
        k(f"v_and_b32 {xe[2*p+1]}, 0xffff0000, {x1[p]}")
    for j in range(16): k(f"v_fmac_f32 {xe[j]}, {gb[j]}, {S[0][j]}")
    for p in range(8): k(f"v_cvt_pk_bf16_f32 {x1[p]}, {xe[2*p]}, {xe[2*p+1]}")
    k(f"buffer_store_dwordx4 {x1[0:4]}, {vout}, {Ro}, 0 offen")
    k(f"buffer_store_dwordx4 {x1[4:8]}, {vout}, {Ro}, 0 offen offset:16")
    k(f"{END}:\ns_endpgm")
    code,desc=k.finish()
    return (k,code,desc)
if __name__=='__main__':
    from k0 import build_k0
    from k1 import build_k1
    from k2 import build_k2
    from k3 import build_k3
    from k4 import build_k4
    build_file([build_k0(),build_k1(),build_k2(),build_k3(),build_k4(),build_k5(NAME)],'full.s')
```

```python
import sys
from common import *
from k0 import build_k0
from k1 import build_k1
from k2 import build_k2
from k3 import build_k3
from k4 import build_k4
from k5 import build_k5
def empty(name,grid=256,block=256):
    k=Kernel(name,grid,block); k("s_endpgm"); k.v.hi=4
    c,d=k.finish(check=False); return (k,c,d)
base=[build_k0(),build_k1(),build_k2(),build_k3(),build_k4(),build_k5(NAME)]
e=empty('e_kernel'); e1=empty('e1_kernel',1,64)
build_file(base,'var_0.s')
build_file(base[:3]+[e]*3+base[3:],'var_3.s')
build_file(base[:3]+[e]*6+base[3:],'var_6.s')
build_file(base[:3]+[e1]*6+base[3:],'var_6s.s')
```

```python
import re, sys

class Reg:
    __slots__=('kind','idx','n')
    def __init__(self, kind, idx, n=1):
        self.kind=kind; self.idx=idx; self.n=n
    def __str__(self):
        if self.n==1: return f"{self.kind}{self.idx}"
        return f"{self.kind}[{self.idx}:{self.idx+self.n-1}]"
    __repr__=__str__
    def __format__(self, spec): return str(self)
    def __getitem__(self, i):
        if isinstance(i, slice):
            a=i.start or 0; b=self.n if i.stop is None else i.stop
            assert 0<=a<b<=self.n, (a,b,self.n)
            return Reg(self.kind, self.idx+a, b-a)
        assert 0<=i<self.n, (i,self.n)
        return Reg(self.kind, self.idx+i, 1)
    def sub(self, a, n): return self[a:a+n]
    def __len__(self): return self.n

class Alloc:
    def __init__(self, kind, start, limit):
        self.kind=kind; self.limit=limit; self.used=[False]*limit
        for i in range(start): self.used[i]=True
        self.hi=start
    def __call__(self, n=1, align=None):
        if align is None:
            align = 1 if n==1 else (2 if self.kind in 'va' else (2 if n==2 else 4))
        i=0
        while i+n<=self.limit:
            if i%align==0 and not any(self.used[i:i+n]):
                for j in range(i,i+n): self.used[j]=True
                self.hi=max(self.hi,i+n)
                return Reg(self.kind,i,n)
            i+=1
        raise RuntimeError(f"out of {self.kind} regs (want {n})")
    def at(self, i, n=1):
        assert not any(self.used[i:i+n]), (self.kind,i,n)
        for j in range(i,i+n): self.used[j]=True
        self.hi=max(self.hi,i+n)
        return Reg(self.kind,i,n)
    def free(self, *regs):
        for r in regs:
            for j in range(r.idx,r.idx+r.n):
                assert self.used[j], (r,)
                self.used[j]=False

REG_RE=re.compile(r'^(-|\|)?(?:abs\()?([vas])(?:(\d+)|\[(\d+):(\d+)\])\)?\|?$')
def parse_reg(tok):
    t=tok.strip()
    m=re.match(r'^-?\|?(?:abs\()?(?:neg\()?([vas])(?:(\d+)|\[(\d+):(\d+)\])\)?\|?$',t)
    if m:
        k=m.group(1)
        if m.group(2) is not None: return [(k,int(m.group(2)))]
        return [(k,i) for i in range(int(m.group(3)),int(m.group(4))+1)]
    if t in('vcc','-vcc'): return [('s','vcc_lo'),('s','vcc_hi')]
    if t=='vcc_lo': return [('s','vcc_lo')]
    if t=='vcc_hi': return [('s','vcc_hi')]
    if t=='exec': return [('s','exec_lo'),('s','exec_hi')]
    if t=='exec_lo': return [('s','exec_lo')]
    if t=='exec_hi': return [('s','exec_hi')]
    if t=='m0': return [('s','m0')]
    return []

TRANS=('v_exp_f32','v_log_f32','v_rcp_f32','v_rsq_f32','v_sqrt_f32','v_sin_f32','v_cos_f32','v_rcp_iflag_f32',
       'v_exp_f16','v_log_f16','v_rcp_f16','v_rsq_f16','v_sqrt_f16','v_sin_f16','v_cos_f16')
VCC=[('s','vcc_lo'),('s','vcc_hi')]
EXEC=[('s','exec_lo'),('s','exec_hi')]

class Ins:
    def __init__(self, text):
        self.text=text
        t=text.split(';')[0].split('//')[0].strip()
        self.label=None; self.op=None
        self.vr=set(); self.vw=set(); self.sr=set(); self.sw=set()
        self.cls=None; self.nop=0
        if not t:
            self.cls='empty'; return
        if t.endswith(':'):
            self.cls='label'; self.label=t[:-1]; return
        if t.startswith('.'):
            self.cls='directive'; return
        parts=t.split(None,1)
        op=parts[0]; self.op=op
        rest=parts[1] if len(parts)>1 else ''
        ops=[];depth=0;cur=''
        for ch in rest:
            if ch in '[(': depth+=1
            if ch in '])': depth-=1
            if ch==',' and depth==0: ops.append(cur.strip()); cur=''
            else: cur+=ch
        if cur.strip(): ops.append(cur.strip())
        mods=''
        if ops:
            last=ops[-1].split(None,1)
            if len(last)>1:
                ops[-1]=last[0]; mods=last[1]
        self.ops=ops; self.mods=mods
        R=lambda i: parse_reg(ops[i]) if i<len(ops) else []
        def rd(regs):
            for r in regs: (self.vr if r[0] in 'va' else self.sr).add(r)
        def wr(regs):
            for r in regs: (self.vw if r[0] in 'va' else self.sw).add(r)
        base=op
        for suf in ('_e32','_e64','_dpp','_sdwa'):
            if base.endswith(suf): base=base[:-len(suf)]
        self.base=base
        self.dpp = op.endswith('_dpp') or any(k in mods for k in ('row_shr','row_shl','row_ror','quad_perm','row_mirror','row_half_mirror','row_bcast','row_newbcast','wave_sh','wave_ro'))
        self.sdwa = op.endswith('_sdwa') or 'dst_sel' in mods
        if op.startswith('v_mfma') or op.startswith('v_smfmac'):
            self.cls='mfma'
            wr(R(0)); self.D=set(R(0)); self.A=set(R(1)); self.B=set(R(2)); self.C=set(R(3))
            rd(R(1)); rd(R(2)); rd(R(3))
            self.Dfirst=R(0)[0]; self.Cfirst=R(3)[0] if R(3) else None
            if '32x32' in op: self.passes=8
            elif '16x16' in op: self.passes=4
            elif '4x4' in op: self.passes=2
            else: raise ValueError(op)
            if op.endswith('_f32') and re.search(r'x\d+_f32$',op) and not 'bf16' in op and not 'f16' in op:
                raise ValueError('SGEMM mfma not modelled '+op)
        elif op.startswith('v_'):
            self.cls='valu'
            self.trans = base in TRANS
            if base.startswith('v_cmpx'):
                wr(EXEC); wr(R(0));
                for i in range(1,len(ops)): rd(R(i))
            elif base.startswith('v_cmp'):
                wr(R(0))
                for i in range(1,len(ops)): rd(R(i))
            elif base in('v_readfirstlane_b32','v_readlane_b32'):
                wr(R(0))
                for i in range(1,len(ops)): rd(R(i))
            elif base in('v_add_co_u32','v_sub_co_u32','v_subrev_co_u32','v_addc_co_u32','v_subb_co_u32','v_div_scale_f32','v_mad_u64_u32'):
                wr(R(0)); wr(R(1))
                for i in range(2,len(ops)): rd(R(i))
            elif base in('v_permlane32_swap_b32','v_permlane16_swap_b32','v_swap_b32'):
                wr(R(0)); wr(R(1)); rd(R(0)); rd(R(1))
            elif base=='v_nop':
                pass
            else:
                wr(R(0))
                for i in range(1,len(ops)): rd(R(i))
                if base in('v_fmac_f32','v_fmac_f16','v_pk_fmac_f16','v_dot2c_f32_bf16','v_dot2c_f32_f16','v_writelane_b32','v_fmamk_f32x') or self.dpp or self.sdwa or 'op_sel' in mods and base.startswith('v_cvt'):
                    rd(R(0))
                if base=='v_cndmask_b32' and len(ops)==3: rd(VCC)
                if base=='v_bitop3_b32': pass
            self.opselshift = self.sdwa or ('op_sel' in mods and not base.startswith('v_pk_'))
        elif op.startswith('ds_'):
            self.cls='ds'
            if op.startswith('ds_read') or op.startswith('ds_bpermute') or op.startswith('ds_permute') or op.startswith('ds_swizzle'):
                wr(R(0))
                for i in range(1,len(ops)): rd(R(i))
                self.dsread=True
            elif op.startswith('ds_write'):
                for i in range(len(ops)): rd(R(i))
                self.dsread=False
            elif op.startswith('ds_add') or op.startswith('ds_min') or op.startswith('ds_max'):
                if '_rtn' in op:
                    wr(R(0))
                    for i in range(1,len(ops)): rd(R(i))
                    self.dsread=True
                else:
                    for i in range(len(ops)): rd(R(i))
                    self.dsread=False
            else: raise ValueError('ds op '+op)
            if 'addtid' in op: rd([('s','m0')])
        elif op.startswith('buffer_') or op.startswith('global_'):
            self.cls='vmem'
            self.lds = ('lds' in mods.split()) or ('_lds_' in op)
            self.store=False; self.wide=False
            if op.startswith('buffer_wbl2') or op.startswith('buffer_inv'):
                pass
            elif self.lds:
                for i in range(len(ops)): rd(R(i))
                rd([('s','m0')])
            elif '_load' in op:
                wr(R(0))
                if 'd16' in op: rd(R(0))
                for i in range(1,len(ops)): rd(R(i))
            elif '_store' in op:
                self.store=True
                for i in range(len(ops)): rd(R(i))
                self.wide = op.endswith('x3') or op.endswith('x4')
                if op.startswith('buffer'): self.sdata=set(R(0))
                else: self.sdata=set(R(1))
            elif '_atomic' in op:
                self.store=True
                for i in range(len(ops)): rd(R(i))
                if 'sc0' in mods.split(): wr(R(0))
            else: raise ValueError(op)
        elif op.startswith('s_'):
            if op in('s_nop',):
                self.cls='nop'; self.nop=int(ops[0],0)+1
            elif op=='s_waitcnt':
                self.cls='wait'
                s=rest
                m=re.search(r'vmcnt\((\d+)\)',s); self.vm=int(m.group(1)) if m else None
                m=re.search(r'lgkmcnt\((\d+)\)',s); self.lgkm=int(m.group(1)) if m else None
            elif op=='s_barrier': self.cls='barrier'
            elif op=='s_endpgm': self.cls='end'
            elif op=='s_branch': self.cls='branch'; self.target=ops[0]
            elif op.startswith('s_cbranch'):
                self.cls='cbranch'; self.target=ops[0]
                if 'vcc' in op: rd(VCC)
                if 'exec' in op: rd(EXEC)
            elif op.startswith('s_load') or op.startswith('s_buffer_load') or op in('s_memtime','s_memrealtime'):
                self.cls='smem'; wr(R(0))
                for i in range(1,len(ops)): rd(R(i))
            else:
                self.cls='salu'
                if op.startswith('s_cmp') or op in('s_setprio','s_sleep','s_bitcmp0_b32','s_bitcmp1_b32'):
                    for i in range(len(ops)): rd(R(i))
                elif op=='s_getreg_b32':
                    wr(R(0))
                else:
                    wr(R(0))
                    for i in range(1,len(ops)): rd(R(i))
                    if 'saveexec' in op: wr(EXEC); rd(EXEC)
                    if op in('s_addk_i32','s_mulk_i32'): rd(R(0))
        else:
            raise ValueError('unknown instruction: '+text)

    def is_real(self): return self.cls not in ('empty','label','directive')
    def states(self): return self.nop if self.cls=='nop' else 1


def hazard_need(p, c):
    need=0
    pc, cc = p.cls, c.cls
    if pc=='valu':
        ov = p.vw & c.vr
        if cc=='mfma' and ov: need=max(need,2)
        if cc=='valu':
            if ov and c.dpp: need=max(need,2)
            if ov and c.base.startswith('v_permlane'): need=max(need,2)
            if p.vw & c.vw and c.base.startswith('v_permlane'): need=max(need,2)
            if ov and c.base in('v_readlane_b32','v_readfirstlane_b32'): need=max(need,1)
            if p.trans and ov: need=max(need,1)
            if p.opselshift and (ov or p.vw & c.vw): need=max(need,1)
        if cc in('vmem','ds') and p.trans and ov: need=max(need,1)
        so = p.sw & c.sr
        if so:
            if cc=='vmem': need=max(need,5)
            if cc=='valu':
                need=max(need,2)
                if c.base in('v_readlane_b32','v_writelane_b32'): need=max(need,4)
                if c.base=='v_div_fmas_f32': need=max(need,4)
            if cc in('salu','cbranch','smem'): need=max(need,1)
        if p.sw & set(VCC) and cc=='cbranch' and 'vcc' in c.op: need=max(need,5) if False else max(need,1)
        if p.sw & set(EXEC):
            if cc=='mfma': need=max(need,4)
            if cc=='valu' and c.dpp: need=max(need,5)
            if cc=='valu' and (c.base.startswith('v_permlane') or c.base in('v_readlane_b32','v_readfirstlane_b32','v_writelane_b32')): need=max(need,4)
    if pc=='salu':
        if ('s','m0') in p.sw and ('s','m0') in c.sr and cc in('vmem','ds'): need=max(need,1)
    if pc=='vmem' and p.store and getattr(p,'wide',False):
        if p.sdata & c.vw:
            need=max(need, 2 if cc=='valu' else 1)
    if pc=='mfma':
        P=p.passes
        if cc=='mfma':
            if p.D & c.C:
                exact = (p.D==c.C) and p.passes==c.passes
                if not exact: need=max(need,P+2)
                elif P==2: need=max(need,2)
            if p.D & (c.A|c.B): need=max(need,P+4 if P>2 else 5)
            if (p.D & c.D) and not (p.D & c.C):
                if p.passes!=c.passes or p.D!=c.D: need=max(need,P+2)
        elif cc in('valu','vmem','ds'):
            if p.D & (c.vr|c.vw): need=max(need,P+4 if P>2 else 5)
            if cc=='valu' and (p.C & c.vw): need=max(need,P-1)
            if cc in('vmem','ds') and (p.C & c.vw): need=max(need,P-1)
    return need

MAXD=21
def insert_nops(lines):
    ins=[Ins(l) for l in lines]
    labels={x.label:i for i,x in enumerate(ins) if x.cls=='label'}
    preds_branch={}
    for i,x in enumerate(ins):
        if x.cls in('branch','cbranch'):
            preds_branch.setdefault(labels[x.target],[]).append(i)
    extra=[0]*len(ins)
    sys.setrecursionlimit(100000)
    def need_for(ci):
        c=ins[ci]; best=0
        seen={}
        stack=[(ci,0)]
        while stack:
            i,d=stack.pop()
            if d>=MAXD: continue
            if seen.get(i,99)<=d: continue
            seen[i]=d
            ps=[]
            if i>0:
                q=ins[i-1]
                if q.cls not in('branch','end'): ps.append(i-1)
            if ins[i].cls=='label': ps+=preds_branch.get(i,[])
            for j in ps:
                p=ins[j]
                if p.is_real():
                    n=hazard_need(p,c)
                    if n>d: best=max(best,n-d)
                    stack.append((j,d+p.states()+extra[j]))
                else:
                    stack.append((j,d))
        return best
    out=[]; total=0
    for i,x in enumerate(ins):
        if x.is_real() and x.cls in('valu','mfma','vmem','ds','salu','cbranch','smem'):
            n=need_for(i)
            if n>0:
                extra[i]=n; total+=n
    for i,x in enumerate(ins):
        n=extra[i]
        while n>0:
            k=min(n,16); out.append(f"    s_nop {k-1}"); n-=k
        out.append(x.text)
    return out,total

def check_waits(lines, name='', maxback=1, verbose=True):
    ins=[Ins(l) for l in lines]
    labels={x.label:i for i,x in enumerate(ins) if x.cls=='label'}
    problems=[]
    seen_states=set()
    stack=[(0,(),(),())]
    steps=0
    while stack:
        pc,vm,lg,bc=stack.pop()
        vm=list(vm); lg=list(lg); bc=dict(bc)
        while pc<len(ins):
            x=ins[pc]; steps+=1
            if steps>5_000_000: raise RuntimeError('check_waits: too many paths')
            if x.cls=='label':
                key=(pc,tuple(vm),tuple(lg),tuple(sorted(bc.items())))
                if key in seen_states: break
                seen_states.add(key)
            if x.is_real():
                touched=(x.vr|x.vw|x.sr|x.sw)
                for d in vm:
                    if d & touched:
                        if x.cls=='vmem' and not (d & (x.vr|x.sr)) and not 'd16' in x.op:
                            pass
                        else:
                            problems.append((pc,x.text.strip(),'vmcnt outstanding '+str(sorted(d&touched)[:4])))
                for kind,d in lg:
                    if d & touched:
                        if x.cls=='ds' and kind=='ds' and not (d & (x.vr|x.sr)): pass
                        else: problems.append((pc,x.text.strip(),'lgkmcnt outstanding '+str(sorted(d&touched,key=str)[:4])))
                if x.cls=='vmem':
                    if not (x.op.startswith('buffer_wbl2') and False):
                        vm.append(frozenset(x.vw))
                    if len(vm)>63: problems.append((pc,x.text.strip(),'vmcnt overflow >63'))
                elif x.cls=='ds':
                    lg.append(('ds',frozenset(x.vw)))
                elif x.cls=='smem':
                    lg.append(('s',frozenset(x.sw)))
                elif x.cls=='wait':
                    if x.vm is not None:
                        while len(vm)>x.vm: vm.pop(0)
                    if x.lgkm is not None:
                        if x.lgkm==0: lg=[]
                        elif any(k=='s' for k,_ in lg):
                            pass
                        else:
                            while len(lg)>x.lgkm: lg.pop(0)
                elif x.cls=='barrier':
                    if any(k=='ds' for k,_ in lg) and 'nowarn' not in x.text:
                        problems.append((pc,x.text.strip(),'barrier with outstanding DS ops'))
                elif x.cls=='end': break
                elif x.cls=='branch':
                    t=labels[x.target]
                    if t<=pc:
                        bc[pc]=bc.get(pc,0)+1
                        if bc[pc]>maxback: break
                    pc=t; continue
                elif x.cls=='cbranch':
                    t=labels[x.target]
                    if t<=pc:
                        n=bc.get(pc,0)
                        if n<maxback:
                            b2=dict(bc); b2[pc]=n+1
                            stack.append((t,tuple(vm),tuple(lg),tuple(sorted(b2.items()))))
                    else:
                        stack.append((t,tuple(vm),tuple(lg),tuple(sorted(bc.items()))))
            pc+=1
    uniq=[];s=set()
    for p in problems:
        if p[:2] not in s: s.add(p[:2]); uniq.append(p)
    if verbose:
        for p in uniq[:40]: print(f"[waitcheck {name}] line {p[0]}: {p[1]}  -> {p[2]}")
    return uniq

import os
DIAG=int(os.environ.get('DIAG','0'))
WS_DIAG=0x2000000
class Kernel:
    def __init__(self, name, grid, block, lds=0):
        self.name=name; self.grid=grid; self.block=block; self.lds=lds
        self.lines=[]
        self.v=Alloc('v',1,256); self.a=Alloc('a',0,256); self.s=Alloc('s',3,100)
        self._lab=0
        if DIAG:
            self.s.at(74,26)
            self.nst=0
    def stamp(self, i):
        if not DIAG: return
        self(f"{'s_memtime' if DIAG==2 else 's_memrealtime'} s[{80+2*i}:{81+2*i}]")
        self.nst=max(self.nst,i+1)
    def stamp_init(self):
        if not DIAG: return
        self.stamp(0)
        t=self.v()
        self(f"v_lshrrev_b32 {t}, 6, v0")
        self(f"v_readfirstlane_b32 s74, {t}")
        self.v.free(t)
    def stamp_flush(self, kidx, drain=True):
        if not DIAG: return
        if drain:
            self.stamp(8)
            self("s_waitcnt vmcnt(0)")
        self.stamp(9)
        self("s_load_dwordx2 s[76:77], s[0:1], 88")
        self("s_waitcnt lgkmcnt(0)")
        self(f"s_add_u32 s76, s76, {WS_DIAG+kidx*512*8*64:#x}")
        self("s_addc_u32 s77, s77, 0")
        self(f"s_mov_b32 s78, {512*8*64:#x}")
        self("s_mov_b32 s79, 0x00020000")
        self("s_lshl_b32 s75, s2, 3")
        self("s_add_u32 s75, s75, s74")
        self("s_lshl_b32 s75, s75, 6")
        self("s_mov_b64 exec, 1")
        for i in range(10): self(f"v_mov_b32 v{4+i}, s{80+2*i}")
        self("s_getreg_b32 s74, hwreg(HW_REG_XCC_ID)")
        self("v_mov_b32 v14, s74")
        self("s_getreg_b32 s74, hwreg(HW_REG_HW_ID)")
        self("v_mov_b32 v15, s74")
        self("v_mov_b32 v0, s75")
        self("buffer_store_dwordx4 v[4:7], v0, s[76:79], 0 offen")
        self("buffer_store_dwordx4 v[8:11], v0, s[76:79], 0 offen offset:16")
        self("buffer_store_dwordx4 v[12:15], v0, s[76:79], 0 offen offset:32")
    def __call__(self, text):
        for l in text.split('\n'):
            l=l.strip()
            if not l: continue
            if l.endswith(':'): self.lines.append(l)
            else: self.lines.append('    '+l)
    def label(self, base='L'):
        self._lab+=1
        return f"{self.name}_{base}{self._lab}"
    def comment(self, t): self.lines.append('    ; '+t)
    def finish(self, vgpr=None, agpr=None, check=True):
        lines,total=insert_nops(self.lines)
        if check and not DIAG:
            pr=check_waits(lines,self.name)
            if pr: print(f"!! {self.name}: {len(pr)} wait problems")
        nv=vgpr or max(self.v.hi,16 if DIAG else 0); na=agpr if agpr is not None else self.a.hi
        acc=max(4,(nv+3)//4*4)
        tot=acc+na if na else nv
        self.nv,self.na=nv,na
        ns=max(self.s.hi,16)
        n_ins=sum(1 for l in lines if Ins(l).is_real())
        print(f"[{self.name}] instrs={n_ins} nops_states={total} vgpr={nv} agpr={na} sgpr={ns}")
        code=f".globl {self.name}\n.p2align 8\n.type {self.name},@function\n{self.name}:\n"+'\n'.join(lines)+"\n"
        desc=f""".p2align 6
.amdhsa_kernel {self.name}
  .amdhsa_next_free_vgpr {tot}
  .amdhsa_next_free_sgpr {ns}
  .amdhsa_accum_offset {acc}
  .amdhsa_group_segment_fixed_size 0
  .amdhsa_kernarg_size 96
  .amdhsa_user_sgpr_count 2
  .amdhsa_user_sgpr_kernarg_segment_ptr 1
  .amdhsa_system_sgpr_workgroup_id_x 1
.end_amdhsa_kernel
"""
        return code,desc

HEADER=""";  Kernarg layout (96 bytes, ptrs only, base s[0:1]):
"""
def build_file(kernels, path):
    s=HEADER
    for k,_,_ in kernels:
        s+=f"; @launch kernel={k.name} grid=({k.grid},1,1) block=({k.block},1,1) lds={k.lds}\n"
    s+='.amdgcn_target "amdgcn-amd-amdhsa--gfx950"\n.text\n'
    done=set()
    for k,code,_ in kernels:
        if k.name in done: continue
        done.add(k.name); s+=code
    s+='.section .rodata,"a"\n'
    done=set()
    for k,_,desc in kernels:
        if k.name in done: continue
        done.add(k.name); s+=desc
    open(path,'w').write(s)
    return s
```

```python
from common import *
def build_k0(name='k0_kernel'):
    k=Kernel(name,256,256,lds=16*16*4)
    v,s=k.v,k.s
    END=k.label('END'); NOG=k.label('NOG'); NOG2=k.label('NOG2')
    pwr,pwi,pc,pwm,pws=s(2),s(2),s(2),s(2),s(2)
    k(f"""
s_cmp_ge_u32 s2, 256
s_cbranch_scc1 {END}""")
    k.stamp_init()
    k(f"""
s_load_dwordx2 {pwr}, s[0:1], {ARG['wr']}
s_load_dwordx2 {pwi}, s[0:1], {ARG['wi']}
s_load_dwordx2 {pc}, s[0:1], {ARG['c']}
s_load_dwordx2 {pwm}, s[0:1], {ARG['wm']}
s_load_dwordx2 {pws}, s[0:1], {ARG['ws']}
""")
    beta,t0,t1,slot=s(),s(),s(),s()
    beta_of_wg(k,beta,t0)
    ks0=s()
    k(f"""
s_lshr_b32 {t0}, {beta}, 6
s_lshl_b32 {ks0}, {t0}, 4
s_and_b32 {t0}, {beta}, 7
s_lshl_b32 {t0}, {t0}, 1
s_add_u32 {ks0}, {ks0}, {t0}
s_bfe_u32 {t0}, {beta}, 0x10005
s_lshl_b32 {t0}, {t0}, 10
s_add_u32 {ks0}, {ks0}, {t0}
s_bfe_u32 {t0}, {beta}, 0x20003
s_lshl_b32 {t0}, {t0}, 8
s_add_u32 {ks0}, {ks0}, {t0}
s_mul_i32 {ks0}, {ks0}, 514
""")
    so=s(8,align=1)
    for e in range(8):
        k(f"s_add_u32 {so[e]}, {ks0}, {(e&3)*32896+(e>>2)*514}")
    m=s()
    k(f"""
s_lshr_b32 {slot}, s2, 3
s_and_b32 {m}, s2, 7
s_mul_i32 {m}, {m}, 24
s_add_u32 {m}, {m}, {slot}
""")
    vt2=v(); vg=v(); vc2=v()
    k(f"""
v_lshlrev_b32 {vt2}, 1, v0          ; t*2
v_lshrrev_b32 {vg}, 1, v0           ; row0 = t>>1
v_and_b32 {vc2}, 0x1fe, v0
""")
    tmpv=v()
    k(f"s_lshl_b32 {t1}, {m}, 5")
    k(f"""
v_mul_u32_u24 {vg}, 0x1800, {vg}
v_and_b32 {tmpv}, 1, v0
v_lshl_add_u32 {vg}, {tmpv}, 4, {vg}
v_add_u32 {vg}, {t1}, {vg}
""")
    Rwr,Rwi,Rc,Rwm,Rwt,Rmod=s(4),s(4),s(4),s(4),s(4),s(4)
    k("s_waitcnt lgkmcnt(0)")
    k.stamp(1)
    srd(k,Rwm,pwm,512*6144); srd(k,Rc,pc,1024)
    srd(k,Rwr,pwr,2048*514); srd(k,Rwi,pwi,2048*514)
    srd(k,Rwt,pws,COLB,WS_WT); srd(k,Rmod,pws,6*512*4,WS_MOD)
    wmr=v(16,align=4); cv=v(4)
    sj=s(3,align=1)
    for j in range(1,4): k(f"s_mov_b32 {sj[j-1]}, {j*128*6144}")
    k(f"s_cmp_ge_u32 {slot}, 24")
    k(f"s_cbranch_scc1 {NOG}")
    for j in range(4):
        k(f"buffer_load_short_d16_hi {cv[j]}, {vc2}, {Rc}, 0 offen offset:{256*j}")
    for j in range(4):
        so_=0 if j==0 else sj[j-1]
        k(f"buffer_load_dwordx4 {wmr[4*j:4*j+4]}, {vg}, {Rwm}, {so_} offen")
    k(f"{NOG}:")
    a=v(8,align=4); b=v(8,align=4)
    for e in range(8):
        k(f"buffer_load_ushort {a[e]}, {vt2}, {Rwr}, {so[e]} offen")
        k(f"buffer_load_short_d16_hi {b[e]}, {vt2}, {Rwi}, {so[e]} offen")
    vx=v(); va=v(); vb=v()
    k(f"""
v_and_b32 {vx}, 3, v0
v_mul_u32_u24 {vx}, 32896, {vx}
v_bfe_u32 {tmpv}, v0, 2, 1
v_mul_u32_u24 {tmpv}, 514, {tmpv}
v_add3_u32 {vx}, {vx}, {tmpv}, {ks0}
v_add_u32 {vx}, 512, {vx}
buffer_load_ushort {va}, {vx}, {Rwr}, 0 offen
buffer_load_short_d16_hi {vb}, {vx}, {Rwi}, 0 offen
""")
    k.stamp(2)
    vst=v()
    k(f"""
s_lshl_b32 {t0}, {beta}, 5
v_lshlrev_b32 {vst}, 13, v0
v_add_u32 {vst}, {t0}, {vst}
""")
    k(f"s_cmp_ge_u32 {slot}, 24")
    k(f"s_cbranch_scc1 {NOG2}")
    k("s_waitcnt vmcnt(22)")
    sc=v(4); te=v()
    for j in range(4):
        k(f"v_mul_f32 {te}, 0xbfb8aa3b, {cv[j]}")
        k(f"v_exp_f32 {te}, {te}")
        k(f"v_add_f32 {te}, 1.0, {te}")
        k(f"v_rcp_f32 {te}, {te}")
        k(f"v_mul_f32 {te}, {cv[j]}, {te}")
        k(f"v_cvt_pk_bf16_f32 {te}, {te}, {te}")
        k(f"v_and_b32 {sc[j]}, 0xffff0000, {te}")
    acc=v(8,align=4); u=v()
    k("s_waitcnt vmcnt(18)")
    k.stamp(3)
    for j in range(4):
        for p in range(4):
            src=wmr[4*j+p]
            k(f"v_lshlrev_b32 {u}, 16, {src}")
            if j==0: k(f"v_mul_f32 {acc[2*p]}, {sc[j]}, {u}")
            else: k(f"v_fmac_f32 {acc[2*p]}, {sc[j]}, {u}")
            k(f"v_and_b32 {u}, 0xffff0000, {src}")
            if j==0: k(f"v_mul_f32 {acc[2*p+1]}, {sc[j]}, {u}")
            else: k(f"v_fmac_f32 {acc[2*p+1]}, {sc[j]}, {u}")
    for sh in (2,4,8):
        for c in range(8):
            k(f"v_add_f32_dpp {acc[c]}, {acc[c]}, {acc[c]} row_shr:{sh} row_mask:0xf bank_mask:0xf bound_ctrl:0")
    vl=v()
    k(f"""
v_lshrrev_b32 {vl}, 4, v0
v_lshlrev_b32 {vl}, 6, {vl}
v_and_b32 {u}, 1, v0
v_lshl_add_u32 {vl}, {u}, 5, {vl}
v_and_b32 {u}, 14, v0
v_cmp_eq_u32 vcc, 14, {u}
""")
    sv=s(2)
    k(f"s_and_saveexec_b64 {sv}, vcc")
    k(f"ds_write_b128 {vl}, {acc[0:4]}")
    k(f"ds_write_b128 {vl}, {acc[4:8]} offset:16")
    k(f"s_mov_b64 exec, {sv}")
    k("s_waitcnt lgkmcnt(0)")
    k("s_barrier")
    rd=v(16,align=4)
    k(f"v_and_b32 {u}, 15, v0")
    k(f"v_lshlrev_b32 {vl}, 2, {u}")
    for r in range(16):
        k(f"ds_read_b32 {rd[r]}, {vl} offset:{64*r}")
    k("s_waitcnt lgkmcnt(0)")
    for st in (1,2,4,8):
        for r in range(0,16,2*st):
            k(f"v_add_f32 {rd[r]}, {rd[r]}, {rd[r+st]}")
    ch=s(); one=s()
    k(f"""
s_lshr_b32 {ch}, {m}, 5
v_cvt_pk_bf16_f32 {rd[0]}, {rd[0]}, {rd[0]}
v_and_b32 {rd[0]}, 0xffff0000, {rd[0]}
s_mov_b32 {one}, 0
s_cmp_eq_u32 {ch}, 1
s_cselect_b32 {one}, 1.0, {one}
s_cmp_eq_u32 {ch}, 4
s_cselect_b32 {one}, 1.0, {one}
v_add_f32 {rd[0]}, {one}, {rd[0]}
v_cvt_pk_bf16_f32 {rd[0]}, {rd[0]}, {rd[0]}
v_and_b32 {rd[0]}, 0xffff0000, {rd[0]}
""")
    d0=s(); ib=s(); st_=s()
    k(f"""
s_and_b32 {d0}, {m}, 31
s_lshr_b32 {t0}, {d0}, 3
s_lshl_b32 {t0}, {t0}, 7
s_and_b32 {t1}, {d0}, 7
s_add_u32 {t0}, {t0}, {t1}
s_lshl_b32 {t1}, {d0}, 4
s_cmp_lt_u32 {ch}, 2
s_cselect_b32 {ib}, {t0}, {t1}
s_cselect_b32 {st_}, 5, 2
s_lshl_b32 {ib}, {ib}, 2
s_lshl_b32 {t0}, {ch}, 11
s_add_u32 {ib}, {ib}, {t0}
v_lshlrev_b32 {vl}, {st_}, {u}
v_add_u32 {vl}, {ib}, {vl}
v_cmp_gt_u32 vcc, 16, v0
s_and_saveexec_b64 {sv}, vcc
buffer_store_dword {rd[0]}, {vl}, {Rmod}, 0 offen
s_mov_b64 exec, {sv}
""")
    k(f"{NOG2}:")
    k.stamp(4)
    k("s_waitcnt vmcnt(0)")
    k.stamp(5)
    for e in range(8): k(f"v_or_b32 {a[e]}, {a[e]}, {b[e]}")
    k(f"buffer_store_dwordx4 {a[0:4]}, {vst}, {Rwt}, 0 offen")
    k(f"buffer_store_dwordx4 {a[4:8]}, {vst}, {Rwt}, 0 offen offset:16")
    k(f"""
v_or_b32 {va}, {va}, {vb}
s_lshl_b32 {t0}, {beta}, 5
s_add_u32 {t0}, {t0}, {256*8192}
v_lshlrev_b32 {vx}, 2, v0
v_add_u32 {vx}, {t0}, {vx}
v_cmp_gt_u32 vcc, 8, v0
s_and_saveexec_b64 {sv}, vcc
buffer_store_dword {va}, {vx}, {Rwt}, 0 offen
s_mov_b64 exec, {sv}""")
    k.stamp_flush(0)
    k(f"""
{END}:
s_endpgm
""")
    code,desc=k.finish()
    return (k,code,desc)
if __name__=='__main__':
    build_file([build_k0(NAME)],'t_k0.s')
```

```python
from common import *
def build_k1(name='k1_kernel', prefetch=True):
    k=Kernel(name,256,512,lds=8*260*4)
    v,s=k.v,k.s
    END=k.label('END')
    px,pws=s(2),s(2); pgu=s(4); pwd=s(2)
    beta,t0,t1,w,row=s(),s(),s(),s(),s()
    lane,vi,vg,tv=v(),v(),v(),v()
    k(f"""
s_cmp_ge_u32 s2, 256
s_cbranch_scc1 {END}""")
    k.stamp_init()
    k(f"""
s_load_dwordx2 {px}, s[0:1], {ARG['x']}
s_load_dwordx2 {pws}, s[0:1], {ARG['ws']}
s_load_dwordx4 {pgu}, s[0:1], {ARG['wg']}
s_load_dwordx2 {pwd}, s[0:1], {ARG['wd']}
v_lshrrev_b32 {tv}, 6, v0
v_and_b32 {lane}, 63, v0
v_readfirstlane_b32 {w}, {tv}
v_and_b32 {vi}, 15, v0
v_bfe_u32 {vg}, v0, 4, 2
""")
    beta_of_wg(k,beta,t0)
    row_of_pos(k,row,beta,w,t0,t1)
    k(f"s_lshl_b32 {row}, {row}, 10")
    vxo=v(); vmo=v()
    k(f"""
v_lshlrev_b32 {vxo}, 8, {vg}
v_lshl_add_u32 {vxo}, {vi}, 1, {vxo}     ; 256 g + 2 i
v_lshlrev_b32 {vmo}, 5, {lane}           ; lane*32
""")
    Rx,Rmod,Rx1=s(4),s(4),s(4)
    k("s_waitcnt lgkmcnt(0)")
    k.stamp(1)
    srd(k,Rx,px,2048*1024); srd(k,Rmod,pws,6*2048,WS_MOD); srd(k,Rx1,pws,COLB,WS_X1)
    x=v(8,align=4); ma=v(8,align=4); mb=v(8,align=4)
    for j in range(8):
        k(f"buffer_load_short_d16_hi {x[j]}, {vxo}, {Rx}, {row} offen offset:{32*j}")
    k(f"buffer_load_dwordx4 {ma[0:4]}, {vmo}, {Rmod}, 0 offen offset:2048")
    k(f"buffer_load_dwordx4 {ma[4:8]}, {vmo}, {Rmod}, 0 offen offset:2064")
    k(f"buffer_load_dwordx4 {mb[0:4]}, {vmo}, {Rmod}, 0 offen")
    k(f"buffer_load_dwordx4 {mb[4:8]}, {vmo}, {Rmod}, 0 offen offset:16")
    PF=0
    def do_prefetch():
        Rp=s(4); pf=v(12,align=4); vpf=v(); spf=s()
        k(f"s_mul_i32 {spf}, s2, 7168")
        k(f"v_lshlrev_b32 {vpf}, 4, v0")
        for j,p in enumerate((pgu[0:2],pgu[2:4],pwd)):
            srd(k,Rp,p,1792*1024)
            k(f"buffer_load_dwordx4 {pf[4*j:4*j+4]}, {vpf}, {Rp}, {spf} offen")
    k.stamp(2)
    fi,fg,f,arg,c0,c1=v(),v(),v(),v(),v(),v()
    k(f"v_cvt_f32_u32 {fi}, {vi}")
    k(f"v_cvt_f32_u32 {fg}, {vg}")
    BC=v(4,align=4); BS=v(4,align=4); BC1=v(4,align=4); BS1=v(4,align=4)
    k(f"v_mul_f32 {f}, 0x3d000000, {fi}")
    k(f"v_mul_f32 {arg}, 0x41000000, {fg}")
    k(f"v_mul_f32 {arg}, {arg}, {f}")
    s0,s1=v(),v()
    for p in range(4):
        k(f"v_cos_f32 {c0}, {arg}")
        k(f"v_sin_f32_e64 {s0}, -{arg}")
        k(f"v_add_f32 {arg}, {arg}, {f}")
        k(f"v_cos_f32 {c1}, {arg}")
        k(f"v_sin_f32_e64 {s1}, -{arg}")
        k(f"v_add_f32 {arg}, {arg}, {f}")
        k(f"v_cvt_pk_bf16_f32 {BC[p]}, {c0}, {c1}")
        k(f"v_cvt_pk_bf16_f32 {BS[p]}, {s0}, {s1}")
    for p in range(4):
        k(f"v_xor_b32 {BC1[p]}, 0x80000000, {BC[p]}")
        k(f"v_xor_b32 {BS1[p]}, 0x80000000, {BS[p]}")
    TC=v(8,align=4); TS=v(8,align=4); n0=v()
    k(f"v_mul_f32 {n0}, 4.0, {fg}")
    for u in range(2):
        if u==0: k(f"v_mul_f32 {f}, 0x3b000000, {fi}")
        else: k(f"v_add_f32 {f}, 0x3d000000, {f}")
        k(f"v_mul_f32 {arg}, {n0}, {f}")
        for r in range(4):
            k(f"v_cos_f32 {TC[4*u+r]}, {arg}")
            k(f"v_sin_f32 {TS[4*u+r]}, {arg}")
            if r<3: k(f"v_add_f32 {arg}, {arg}, {f}")
    A2=v(4,align=4); A3=v(4,align=4); sh0,sh1=v(),v()
    k(f"""
v_lshrrev_b32 {tv}, 1, {vi}
v_cvt_f32_u32 {f}, {tv}
v_mul_f32 {f}, 0x3d800000, {f}          ; k2/16
v_and_b32 {tv}, 1, {vi}
v_cvt_f32_u32 {sh0}, {tv}
v_mul_f32 {sh0}, 0x3e800000, {sh0}      ; 0.25 c
v_add_f32 {sh1}, 0xbe800000, {sh0}      ; 0.25 (c-1)
v_mul_f32 {arg}, {n0}, {f}
""")
    aa=v(4,align=2)
    for r in range(4):
        k(f"v_mov_b32 {aa[r]}, {arg}")
        if r<3: k(f"v_add_f32 {arg}, {arg}, {f}")
    for half,sh in ((0,sh0),(1,sh1)):
        for p in range(2):
            k(f"v_add_f32 {c0}, {aa[2*p]}, {sh}")
            k(f"v_add_f32 {c1}, {aa[2*p+1]}, {sh}")
            k(f"v_cos_f32 {c0}, {c0}")
            k(f"v_cos_f32 {c1}, {c1}")
            k(f"v_cvt_pk_bf16_f32 {A2[2*half+p]}, {c0}, {c1}")
    k(f"""
v_cmp_eq_u32 vcc, 0, {vi}
v_mov_b32 {tv}, 0xbf803f80
v_cndmask_b32 {A3[0]}, 0, {tv}, vcc
v_cndmask_b32 {A3[1]}, 0, {tv}, vcc
v_mov_b32 {A3[2]}, 0
v_mov_b32 {A3[3]}, 0
""")
    vlw,vlr,vst=v(),v(),v()
    k(f"""
s_mul_i32 {t0}, {w}, 1040
v_lshlrev_b32 {vlw}, 8, {vg}
v_lshl_add_u32 {vlw}, {vi}, 2, {vlw}
v_add_u32 {vlw}, {t0}, {vlw}            ; w*1040 + (i+64g)*4
v_and_b32 {tv}, 1, v0
v_mul_u32_u24 {vlr}, 4160, {tv}
v_lshrrev_b32 {c0}, 1, v0               ; k
v_lshl_add_u32 {vlr}, {c0}, 2, {vlr}
v_lshlrev_b32 {vst}, 13, {c0}
v_lshl_add_u32 {vst}, {tv}, 4, {vst}
s_lshl_b32 {t0}, {beta}, 5
v_add_u32 {vst}, {t0}, {vst}
""")
    sm,tt=v(),v()
    k.stamp(3)
    k(f"s_waitcnt vmcnt({4+PF})")
    k.stamp(4)
    k(f"v_add_f32 {sm}, {x[0]}, {x[1]}")
    k(f"v_add_f32 {tt}, {x[2]}, {x[3]}")
    k(f"v_add_f32 {c0}, {x[4]}, {x[5]}")
    k(f"v_add_f32 {c1}, {x[6]}, {x[7]}")
    k(f"v_add_f32 {sm}, {sm}, {tt}")
    k(f"v_add_f32 {c0}, {c0}, {c1}")
    k(f"v_add_f32 {sm}, {sm}, {c0}")
    wave_allreduce_add(k,sm,tt)
    k(f"v_mul_f32 {sm}, 0xbb000000, {sm}")
    for j in range(8): k(f"v_add_f32 {x[j]}, {x[j]}, {sm}")
    k(f"v_mul_f32 {sm}, {x[0]}, {x[0]}")
    k(f"v_mul_f32 {c0}, {x[1]}, {x[1]}")
    for j in range(2,8,2):
        k(f"v_fmac_f32 {sm}, {x[j]}, {x[j]}")
        k(f"v_fmac_f32 {c0}, {x[j+1]}, {x[j+1]}")
    k(f"v_add_f32 {sm}, {sm}, {c0}")
    wave_allreduce_add(k,sm,tt)
    k(f"v_mov_b32 {tt}, 0x3727c5ac")
    k(f"v_fmac_f32 {tt}, 0x3b000000, {sm}")
    k(f"v_rsq_f32 {tt}, {tt}")
    k.stamp(5)
    k(f"s_waitcnt vmcnt({PF})")
    k.stamp(6)
    for j in range(8): k(f"v_mul_f32 {x[j]}, {x[j]}, {tt}")
    for j in range(8): k(f"v_fma_f32 {x[j]}, {x[j]}, {ma[j]}, {mb[j]}")
    A1=v(4,align=4)
    for p in range(4): k(f"v_cvt_pk_bf16_f32 {A1[p]}, {x[2*p]}, {x[2*p+1]}")
    Tr=[v(4,align=4),v(4,align=4)]; Ti=[v(4,align=4),v(4,align=4)]
    k(f"v_mfma_f32_16x16x32_bf16 {Tr[0]}, {A1}, {BC}, 0")
    k(f"v_mfma_f32_16x16x32_bf16 {Ti[0]}, {A1}, {BS}, 0")
    k(f"v_mfma_f32_16x16x32_bf16 {Tr[1]}, {A1}, {BC1}, 0")
    k(f"v_mfma_f32_16x16x32_bf16 {Ti[1]}, {A1}, {BS1}, 0")
    B2=[v(4,align=4),v(4,align=4)]
    Ur=v(4,align=4); Ui=v(4,align=4)
    D=[v(4,align=4),v(4,align=4)]; DN=v(4,align=4)
    for u in range(2):
        for r in range(4):
            k(f"v_mul_f32 {Ur[r]}, {Tr[u][r]}, {TC[4*u+r]}")
            k(f"v_mul_f32 {Ui[r]}, {Ti[u][r]}, {TC[4*u+r]}")
        for r in range(4):
            k(f"v_fmac_f32 {Ur[r]}, {Ti[u][r]}, {TS[4*u+r]}")
            k(f"v_fma_f32 {Ui[r]}, -{Tr[u][r]}, {TS[4*u+r]}, {Ui[r]}")
        k(f"v_cvt_pk_bf16_f32 {B2[u][0]}, {Ur[0]}, {Ur[1]}")
        k(f"v_cvt_pk_bf16_f32 {B2[u][1]}, {Ur[2]}, {Ur[3]}")
        k(f"v_cvt_pk_bf16_f32 {B2[u][2]}, {Ui[0]}, {Ui[1]}")
        k(f"v_cvt_pk_bf16_f32 {B2[u][3]}, {Ui[2]}, {Ui[3]}")
        k(f"v_mfma_f32_16x16x32_bf16 {D[u]}, {A2}, {B2[u]}, 0")
        if u==0: k(f"v_mfma_f32_16x16x32_bf16 {DN}, {A3}, {B2[0]}, 0")
    o=v(4,align=4)
    for u in range(2):
        for b in range(2):
            k(f"v_cvt_pk_bf16_f32 {o[2*u+b]}, {D[u][2*b]}, {D[u][2*b+1]}")
    for u in range(2):
        for b in range(2):
            k(f"ds_write_b32 {vlw}, {o[2*u+b]} offset:{64*u+128*b}")
    sv=s(2)
    k(f"""
v_cvt_pk_bf16_f32 {tt}, {DN[0]}, 0
s_lshl_b32 {t0}, {beta}, 3
s_add_u32 {t0}, {t0}, {w}
s_lshl_b32 {t0}, {t0}, 2
s_add_u32 {t0}, {t0}, {256*8192}
v_mov_b32 {c0}, {t0}
v_cmp_eq_u32 vcc, 0, {lane}
s_and_saveexec_b64 {sv}, vcc
buffer_store_dword {tt}, {c0}, {Rx1}, 0 offen
s_mov_b64 exec, {sv}
s_waitcnt lgkmcnt(0)
s_barrier
""")
    k.stamp(7)
    for e in range(4): k(f"ds_read_b32 {o[e]}, {vlr} offset:{1040*e}")
    k("s_waitcnt lgkmcnt(0)")
    k(f"buffer_store_dwordx4 {o}, {vst}, {Rx1}, 0 offen")
    k.stamp_flush(1,mid=do_prefetch if prefetch else None)
    k(f"{END}:\ns_endpgm")
    code,desc=k.finish()
    return (k,code,desc)
if __name__=='__main__':
    from k0 import build_k0
    build_file([build_k0(),build_k1(NAME)],'t_k1.s')
```

```python
from common import *
MF="v_mfma_f32_16x16x32_bf16"
def interleave(k, mf, va, ratio=2):
    vi=0
    for m in mf:
        k(m)
        for _ in range(ratio):
            if vi<len(va): k(va[vi]); vi+=1
    while vi<len(va): k(va[vi]); vi+=1

def build_k2(name='k2_kernel'):
    k=Kernel(name,257,256,lds=8192)
    v,s=k.v,k.s
    END=k.label('END')
    pws=s(2); w,t0,t1,so1,so2=s(),s(),s(),s(),s()
    lane,vi,vg,tv=v(),v(),v(),v()
    k(f"""
s_cmp_ge_u32 s2, 257
s_cbranch_scc1 {END}""")
    k.stamp_init()
    k(f"""
s_load_dwordx2 {pws}, s[0:1], {ARG['ws']}
v_lshrrev_b32 {tv}, 6, v0
v_and_b32 {lane}, 63, v0
v_readfirstlane_b32 {w}, {tv}
v_and_b32 {vi}, 15, v0
v_bfe_u32 {vg}, v0, 4, 2
s_lshl_b32 {so1}, s2, 13
s_lshl_b32 {t0}, {w}, 11
s_add_u32 {so2}, {so1}, {t0}
""")
    vo,vo2=v(),v()
    k(f"v_lshlrev_b32 {vo}, 4, {lane}")
    k(f"v_add_u32 {vo2}, 4096, {vo}")
    Rx1,Rwt,Ry=s(4),s(4),s(4)
    k("s_waitcnt lgkmcnt(0)")
    k.stamp(1)
    srd(k,Rx1,pws,COLB,WS_X1); srd(k,Rwt,pws,COLB,WS_WT); srd(k,Ry,pws,COLB,WS_Y)
    X=[[v(4,align=4) for kap in range(4)] for t in range(2)]
    W=[v(4,align=4),v(4,align=4)]
    for t in range(2):
        for kap in range(4):
            k(f"buffer_load_dwordx4 {X[t][kap]}, {vo if t==0 else vo2}, {Rx1}, {so1} offen offset:{kap*1024}")
    for t2 in range(2):
        k(f"buffer_load_dwordx4 {W[t2]}, {vo}, {Rwt}, {so2} offen offset:{t2*1024}")
    k.stamp(2)
    fi,fg4,k1f,f,f13,arg,c0,s0=v(),v(),v(),v(),v(),v(),v(),v()
    mi=v()
    k(f"""
v_cvt_f32_u32 {fi}, {vi}
v_cvt_f32_u32 {fg4}, {vg}
v_mul_f32 {fg4}, 4.0, {fg4}              ; 4g
s_lshl_b32 {t0}, {w}, 4
v_add_u32 {tv}, {t0}, {vi}
v_cvt_f32_u32 {k1f}, {tv}                ; 16w+i
v_and_b32 {tv}, 1, {vi}
v_mul_u32_u24 {mi}, 0x8000, {tv}
v_lshl_or_b32 {mi}, {mi}, 16, {mi}        ; (i&1) ? 0x80008000 : 0
""")
    BR=[v(4,align=4) for _ in range(4)]; BI=[v(4,align=4) for _ in range(4)]
    k(f"v_mul_f32 {f}, 0x3c800000, {k1f}")
    k(f"v_mul_f32 {f13}, 0x41500000, {f}")
    k(f"v_mul_f32 {arg}, {fg4}, {f}")
    c1,s1=v(),v()
    for kap in range(2):
        for e in range(4):
            cc,ss=(c0,s0) if e&1==0 else (c1,s1)
            k(f"v_cos_f32 {cc}, {arg}")
            k(f"v_sin_f32 {ss}, {arg}")
            if not(kap==1 and e==3): k(f"v_add_f32 {arg}, {arg}, {f if e<3 else f13}")
            k(f"v_cvt_pk_bf16_f32 {BR[kap][e]}, {cc}, {ss}")
            k(f"v_cvt_pk_bf16_f32 {BI[kap][e]}, -{ss}, {cc}")
    for kap in range(2,4):
        for e in range(4):
            k(f"v_xor_b32 {BR[kap][e]}, {mi}, {BR[kap-2][e]}")
            k(f"v_xor_b32 {BI[kap][e]}, {mi}, {BI[kap-2][e]}")
    T1C=v(8,align=4); T1S=v(8,align=4)
    k(f"v_mul_f32 {f}, 0x3a000000, {k1f}")
    k(f"v_mul_f32 {f13}, 0x41500000, {f}")
    k(f"v_mul_f32 {arg}, {fg4}, {f}")
    for t in range(2):
        for r in range(4):
            k(f"v_cos_f32 {T1C[4*t+r]}, {arg}")
            k(f"v_sin_f32 {T1S[4*t+r]}, {arg}")
            if not(t==1 and r==3): k(f"v_add_f32 {arg}, {arg}, {f if r<3 else f13}")
    CS=[[v(6,align=2) for b in range(2)] for a in range(2)]
    cc4=v(4,align=2); ss4=v(4,align=2)
    k(f"v_mul_f32 {f}, 0x3d000000, {fi}")
    k(f"v_mul_f32 {arg}, {fg4}, {f}")
    for j in range(4):
        k(f"v_cos_f32 {cc4[j]}, {arg}")
        k(f"v_sin_f32 {ss4[j]}, {arg}")
        if j<3: k(f"v_add_f32 {arg}, {arg}, {f}")
    c00=CS[0][0]
    k(f"v_cvt_pk_bf16_f32 {c00[0]}, -{ss4[0]}, -{ss4[1]}")
    k(f"v_cvt_pk_bf16_f32 {c00[1]}, -{ss4[2]}, -{ss4[3]}")
    k(f"v_cvt_pk_bf16_f32 {c00[2]}, {cc4[0]}, {cc4[1]}")
    k(f"v_cvt_pk_bf16_f32 {c00[3]}, {cc4[2]}, {cc4[3]}")
    k(f"v_cvt_pk_bf16_f32 {c00[4]}, {ss4[0]}, {ss4[1]}")
    k(f"v_cvt_pk_bf16_f32 {c00[5]}, {ss4[2]}, {ss4[3]}")
    for j in range(6): k(f"v_xor_b32 {CS[0][1][j]}, {mi}, {c00[j]}")
    for j in range(6): k(f"v_xor_b32 {CS[1][0][j]}, 0x80000000, {c00[j]}")
    for j in range(6): k(f"v_xor_b32 {CS[1][1][j]}, 0x80000000, {CS[0][1][j]}")
    T2C=v(8,align=4); T2S=v(8,align=4); scl=s(); kb=v()
    k(f"""
s_and_b32 {t0}, s2, 0xff
s_cmp_eq_u32 {t0}, 0
s_mov_b32 {scl}, 0x36000000
s_cselect_b32 {scl}, 0x35800000, {scl}
s_lshl_b32 {t0}, {w}, 4
v_cvt_f32_u32 {kb}, {t0}
v_add_f32 {kb}, {kb}, {fg4}              ; 16w+4g
""")
    for t in range(2):
        if t==0: k(f"v_mul_f32 {f}, 0x3a000000, {fi}")
        else: k(f"v_add_f32 {f}, 0x3c000000, {f}")
        k(f"v_mul_f32 {arg}, {kb}, {f}")
        for r in range(4):
            k(f"v_cos_f32 {T2C[4*t+r]}, {arg}")
            k(f"v_sin_f32 {T2S[4*t+r]}, {arg}")
            if r<3: k(f"v_add_f32 {arg}, {arg}, {f}")
    for j in range(8):
        k(f"v_mul_f32 {T2C[j]}, {scl}, {T2C[j]}")
        k(f"v_mul_f32 {T2S[j]}, {scl}, {T2S[j]}")
    vlw=v()
    k(f"s_lshl_b32 {t0}, {w}, 10")
    k(f"v_add_u32 {vlw}, {t0}, {vo}")
    so3=s()
    k(f"s_add_u32 {so3}, {so1}, {t0}")
    Ar=[v(4,align=4),v(4,align=4)]; Ai=[v(4,align=4),v(4,align=4)]
    def cmul_tw(dst_r,dst_i,xr,xi,tc,ts):
        out=[]
        for r in range(4):
            out.append(f"v_mul_f32 {dst_r[r]}, {xr[r]}, {tc[r]}")
            out.append(f"v_mul_f32 {dst_i[r]}, {xi[r]}, {tc[r]}")
        for r in range(4):
            out.append(f"v_fmac_f32 {dst_r[r]}, {xi[r]}, {ts[r]}")
            out.append(f"v_fma_f32 {dst_i[r]}, -{xr[r]}, {ts[r]}, {dst_i[r]}")
        return out
    Ur=v(4,align=4); Ui=v(4,align=4)
    B2=[v(4,align=4),v(4,align=4)]
    def pack_split(dst,ur,ui):
        return [f"v_cvt_pk_bf16_f32 {dst[0]}, {ur[0]}, {ur[1]}",f"v_cvt_pk_bf16_f32 {dst[1]}, {ur[2]}, {ur[3]}",
                f"v_cvt_pk_bf16_f32 {dst[2]}, {ui[0]}, {ui[1]}",f"v_cvt_pk_bf16_f32 {dst[3]}, {ui[2]}, {ui[3]}"]
    k.stamp(3)
    for kap in range(4):
        k(f"s_waitcnt vmcnt({9-kap})")
        if kap==0: k.stamp(4)
        k(f"{MF} {Ar[0]}, {X[0][kap]}, {BR[kap]}, {0 if kap==0 else Ar[0]}")
        k(f"{MF} {Ai[0]}, {X[0][kap]}, {BI[kap]}, {0 if kap==0 else Ai[0]}")
    k("s_waitcnt vmcnt(2)")
    mf=[]
    for kap in range(4):
        mf.append(f"{MF} {Ar[1]}, {X[1][kap]}, {BR[kap]}, {0 if kap==0 else Ar[1]}")
        mf.append(f"{MF} {Ai[1]}, {X[1][kap]}, {BI[kap]}, {0 if kap==0 else Ai[1]}")
    va=cmul_tw(Ur,Ui,Ar[0],Ai[0],T1C[0:4],T1S[0:4])+pack_split(B2[0],Ur,Ui)
    k(mf[0]); k(mf[1]); k(mf[2])
    interleave(k,mf[3:],va,ratio=3)
    Fr=[v(4,align=4),v(4,align=4)]; Fi=[v(4,align=4),v(4,align=4)]
    mf=[]
    for t2 in range(2):
        mf.append(f"{MF} {Fr[t2]}, {CS[t2][0][2:6]}, {B2[0]}, 0")
        mf.append(f"{MF} {Fi[t2]}, {CS[t2][0][0:4]}, {B2[0]}, 0")
    va=cmul_tw(Ur,Ui,Ar[1],Ai[1],T1C[4:8],T1S[4:8])+pack_split(B2[1],Ur,Ui)
    for m in mf[:2]: k(m)
    interleave(k,mf[2:],va,ratio=4)
    for t2 in range(2):
        k(f"{MF} {Fr[t2]}, {CS[t2][1][2:6]}, {B2[1]}, {Fr[t2]}")
        k(f"{MF} {Fi[t2]}, {CS[t2][1][0:4]}, {B2[1]}, {Fi[t2]}")
    k.stamp(5)
    k("s_waitcnt vmcnt(0)")
    wr4=v(4,align=4); wi4=v(4,align=4)
    A3=[v(4,align=4),v(4,align=4)]
    unp=[]
    Wr=[wr4,T1C[0:4]]; Wi=[wi4,T1S[0:4]]
    for t2 in range(2):
        for r in range(4):
            k(f"v_lshlrev_b32 {Wr[t2][r]}, 16, {W[t2][r]}")
            k(f"v_and_b32 {Wi[t2][r]}, 0xffff0000, {W[t2][r]}")
    def filt(t2):
        out=[]
        for r in range(4):
            out.append(f"v_mul_f32 {Ur[r]}, {Fr[t2][r]}, {Wr[t2][r]}")
            out.append(f"v_mul_f32_e64 {Ui[r]}, -{Fr[t2][r]}, {Wi[t2][r]}")
        for r in range(4):
            out.append(f"v_fma_f32 {Ur[r]}, -{Fi[t2][r]}, {Wi[t2][r]}, {Ur[r]}")
            out.append(f"v_fma_f32 {Ui[r]}, -{Fi[t2][r]}, {Wr[t2][r]}, {Ui[r]}")
        return out+pack_split(A3[t2],Ur,Ui)
    for x in filt(0): k(x)
    Vr=Ar; Vi=Ai
    mf=[]
    for t in range(2):
        mf.append(f"{MF} {Vr[t]}, {A3[0]}, {CS[t][0][2:6]}, 0")
        mf.append(f"{MF} {Vi[t]}, {A3[0]}, {CS[t][0][0:4]}, 0")
    interleave(k,mf,filt(1),ratio=4)
    for t in range(2):
        k(f"{MF} {Vr[t]}, {A3[1]}, {CS[t][1][2:6]}, {Vr[t]}")
        k(f"{MF} {Vi[t]}, {A3[1]}, {CS[t][1][0:4]}, {Vi[t]}")
    G=[B2[0],B2[1]]
    for t in range(2):
        for x in cmul_tw(Ur,Ui,Vr[t],Vi[t],T2C[4*t:4*t+4],T2S[4*t:4*t+4]): k(x)
        for r in range(4): k(f"v_cvt_pk_bf16_f32 {G[t][r]}, {Ur[r]}, {Ui[r]}")
        k(f"ds_write_b128 {vlw}, {G[t]} offset:{t*4096}")
    k.stamp(6)
    k("s_waitcnt lgkmcnt(0)")
    k("s_barrier")
    k.stamp(7)
    for t in range(2):
        for kap in range(4):
            k(f"ds_read_b128 {X[t][kap]}, {vo} offset:{(t*4+kap)*1024}")
    Yr=Fr; Yi=Fi
    for t in range(2):
        for kap in range(4):
            k(f"s_waitcnt lgkmcnt({7-(t*4+kap)})")
            k(f"{MF} {Yr[t]}, {BR[kap]}, {X[t][kap]}, {0 if kap==0 else Yr[t]}")
            k(f"{MF} {Yi[t]}, {BI[kap]}, {X[t][kap]}, {0 if kap==0 else Yi[t]}")
    for t in range(2):
        for r in range(4): k(f"v_cvt_pk_bf16_f32 {G[t][r]}, {Yr[t][r]}, -{Yi[t][r]}")
        k(f"buffer_store_dwordx4 {G[t]}, {vo if t==0 else vo2}, {Ry}, {so3} offen")
    k.stamp_flush(2)
    k(f"{END}:\ns_endpgm")
    code,desc=k.finish()
    return (k,code,desc)
if __name__=='__main__':
    from k0 import build_k0
    from k1 import build_k1
    build_file([build_k0(),build_k1(),build_k2(NAME)],'t_k2.s')
```

```python
from common import *
MF="v_mfma_f32_16x16x32_bf16"; MF16="v_mfma_f32_16x16x16_bf16"
def build_k3(name='k3_kernel'):
    L2=8320
    k=Kernel(name,256,512,lds=L2+32*272)
    v,s=k.v,k.s
    END=k.label('END')
    px,pws=s(2),s(2)
    beta,t0,t1,w,row=s(),s(),s(),s(),s()
    lane,vi,vg,tv=v(),v(),v(),v()
    k(f"""
s_cmp_ge_u32 s2, 256
s_cbranch_scc1 {END}""")
    k.stamp_init()
    k(f"""
s_load_dwordx2 {px}, s[0:1], {ARG['x']}
s_load_dwordx2 {pws}, s[0:1], {ARG['ws']}
v_lshrrev_b32 {tv}, 6, v0
v_and_b32 {lane}, 63, v0
v_readfirstlane_b32 {w}, {tv}
v_and_b32 {vi}, 15, v0
v_bfe_u32 {vg}, v0, 4, 2
""")
    beta_of_wg(k,beta,t0)
    row_of_pos(k,row,beta,w,t0,t1)
    k(f"s_lshl_b32 {row}, {row}, 10")
    vy,vhalf,vk,vxo,vmo=v(),v(),v(),v(),v()
    sny,stau=s(),s()
    k(f"""
v_and_b32 {vhalf}, 1, v0
v_lshrrev_b32 {vk}, 1, v0
v_lshlrev_b32 {vy}, 13, {vk}
v_lshl_add_u32 {vy}, {vhalf}, 4, {vy}
s_lshl_b32 {t0}, {beta}, 5
v_add_u32 {vy}, {t0}, {vy}
s_lshl_b32 {stau}, {beta}, 3
s_add_u32 {stau}, {stau}, {w}            ; tau
s_lshl_b32 {sny}, {stau}, 2
s_add_u32 {sny}, {sny}, {256*8192}
v_lshlrev_b32 {vxo}, 5, {vi}
v_lshl_add_u32 {vxo}, {vg}, 3, {vxo}
v_lshlrev_b32 {vmo}, 1, {vxo}
s_lshl_b32 {stau}, {stau}, 10
""")
    Rx,Rmod,Ry,Rx1,Rh=s(4),s(4),s(4),s(4),s(4)
    k("s_waitcnt lgkmcnt(0)")
    k.stamp(1)
    srd(k,Ry,pws,COLB,WS_Y); srd(k,Rx,px,2048*1024); srd(k,Rmod,pws,6*2048,WS_MOD)
    srd(k,Rx1,pws,2048*1024,WS_X1R); srd(k,Rh,pws,2048*1024,WS_H2F)
    yv=v(4,align=4); ny=v(); zero=v()
    xr=[v(2),v(2)]
    ga=[v(4,align=4),v(4,align=4)]; sb=[v(4,align=4),v(4,align=4)]; cb=[v(4,align=4),v(4,align=4)]
    k(f"buffer_load_dwordx4 {yv}, {vy}, {Ry}, 0 offen")
    k(f"v_mov_b32 {zero}, 0")
    k(f"buffer_load_short_d16_hi {ny}, {zero}, {Ry}, {sny} offen")
    for t in range(2): k(f"buffer_load_dwordx2 {xr[t]}, {vxo}, {Rx}, {row} offen offset:{512*t}")
    vmo2,vmo3=v(),v()
    k(f"v_add_u32 {vmo2}, 4096, {vmo}")
    k(f"v_add_u32 {vmo3}, 8192, {vmo}")
    for t in range(2): k(f"buffer_load_dwordx4 {ga[t]}, {vmo2}, {Rmod}, 0 offen offset:{1024*t}")
    for t in range(2): k(f"buffer_load_dwordx4 {sb[t]}, {vmo2}, {Rmod}, 0 offen offset:{2048+1024*t}")
    for t in range(2): k(f"buffer_load_dwordx4 {cb[t]}, {vmo3}, {Rmod}, 0 offen offset:{1024*t}")
    k.stamp(2)
    fi,fg,f,arg,c0,s0,c1,s1,mi=v(),v(),v(),v(),v(),v(),v(),v(),v()
    k(f"""
v_cvt_f32_u32 {fi}, {vi}
v_cvt_f32_u32 {fg}, {vg}
v_and_b32 {tv}, 1, {vi}
v_mul_u32_u24 {mi}, 0x8000, {tv}
v_lshl_or_b32 {mi}, {mi}, 16, {mi}
""")
    BAr=v(2); BAi=v(2)
    k(f"v_mul_f32 {f}, 0x3d800000, {fi}")
    k(f"v_add_f32 {arg}, {fg}, {fg}")
    k(f"v_mul_f32 {arg}, {arg}, {f}")
    for b in range(2):
        k(f"v_cos_f32 {c0}, {arg}")
        k(f"v_sin_f32 {s0}, {arg}")
        if b==0: k(f"v_add_f32 {arg}, {arg}, {f}")
        k(f"v_cvt_pk_bf16_f32 {BAr[b]}, {c0}, -{s0}")
        k(f"v_cvt_pk_bf16_f32 {BAi[b]}, {s0}, {c0}")
    TC=v(8,align=4); TS=v(8,align=4); f13,g4=v(),v()
    k(f"v_mul_f32 {g4}, 4.0, {fg}")
    k(f"v_mul_f32 {f}, 0x3b000000, {fi}")
    k(f"v_mul_f32 {f13}, 0x41500000, {f}")
    k(f"v_mul_f32 {arg}, {g4}, {f}")
    for u in range(2):
        for r in range(4):
            k(f"v_cos_f32 {TC[4*u+r]}, {arg}")
            k(f"v_sin_f32 {TS[4*u+r]}, {arg}")
            if not(u==1 and r==3): k(f"v_add_f32 {arg}, {arg}, {f if r<3 else f13}")
    BB=[[v(4,align=4) for u in range(2)] for t in range(2)]
    cc4=v(4,align=2); ss4=v(4,align=2)
    k(f"v_mul_f32 {f}, 0x3d000000, {fi}")
    k(f"v_mul_f32 {arg}, {g4}, {f}")
    for j in range(4):
        k(f"v_cos_f32 {cc4[j]}, {arg}")
        k(f"v_sin_f32 {ss4[j]}, {arg}")
        if j<3: k(f"v_add_f32 {arg}, {arg}, {f}")
    b00=BB[0][0]
    k(f"v_cvt_pk_bf16_f32 {b00[0]}, {cc4[0]}, {cc4[1]}")
    k(f"v_cvt_pk_bf16_f32 {b00[1]}, {cc4[2]}, {cc4[3]}")
    k(f"v_cvt_pk_bf16_f32 {b00[2]}, -{ss4[0]}, -{ss4[1]}")
    k(f"v_cvt_pk_bf16_f32 {b00[3]}, -{ss4[2]}, -{ss4[3]}")
    for j in range(4): k(f"v_xor_b32 {BB[0][1][j]}, {mi}, {b00[j]}")
    for j in range(4): k(f"v_xor_b32 {BB[1][0][j]}, 0x80000000, {b00[j]}")
    for j in range(4): k(f"v_xor_b32 {BB[1][1][j]}, 0x80000000, {BB[0][1][j]}")
    cny=v()
    k(f"""
v_lshlrev_b32 {tv}, 31, {vi}
v_or_b32 {tv}, 1.0, {tv}
v_cmp_eq_u32 vcc, 0, {vg}
v_cndmask_b32 {cny}, 0, {tv}, vcc
""")
    vlw,vlr,vl2w,vl2r,vst=v(),v(),v(),v(),v()
    k(f"""
v_mul_u32_u24 {vlw}, 4160, {vhalf}
v_lshl_add_u32 {vlw}, {vk}, 2, {vlw}       ; half*4160 + k*4
s_mul_i32 {t0}, {w}, 1040
v_lshlrev_b32 {vlr}, 8, {vg}
v_lshl_add_u32 {vlr}, {vi}, 2, {vlr}
v_add_u32 {vlr}, {t0}, {vlr}               ; w*1040 + (i+64g)*4
s_lshl_b32 {t0}, {w}, 4
s_add_u32 {t0}, {t0}, {L2}
v_mul_u32_u24 {vl2w}, 272, {vi}
v_lshrrev_b32 {tv}, 1, {vg}
v_lshl_add_u32 {vl2w}, {tv}, 7, {vl2w}
v_and_b32 {tv}, 1, {vg}
v_lshl_add_u32 {vl2w}, {tv}, 3, {vl2w}
v_add_u32 {vl2w}, {t0}, {vl2w}             ; L2 + i*272 + (g>>1)*128 + w*16 + (g&1)*8   (+ t*16*272)
v_lshrrev_b32 {tv}, 4, v0                  ; p>>1
v_mul_u32_u24 {vl2r}, 272, {tv}
v_and_b32 {tv}, 15, v0                     ; (p&1)*8 + row
v_lshl_add_u32 {vl2r}, {tv}, 4, {vl2r}
v_add_u32 {vl2r}, {L2}, {vl2r}
v_lshrrev_b32 {tv}, 3, v0                  ; p
v_lshlrev_b32 {vst}, 9, {tv}
v_and_b32 {tv}, 7, v0
v_lshl_add_u32 {vst}, {tv}, 4, {vst}
s_lshr_b32 {t0}, {beta}, 2
s_lshl_b32 {t0}, {t0}, 15
s_and_b32 {t1}, {beta}, 3
s_lshl_b32 {t1}, {t1}, 7
s_add_u32 {t0}, {t0}, {t1}
v_add_u32 {vst}, {t0}, {vst}
""")
    k.stamp(3)
    k("s_waitcnt vmcnt(9)")
    k.stamp(4)
    for e in range(4): k(f"ds_write_b32 {vlw}, {yv[e]} offset:{1040*e}")
    k("s_waitcnt lgkmcnt(0)")
    k("s_barrier")
    Ad=[v(2),v(2)]
    for u in range(2):
        for b in range(2):
            k(f"ds_read_b32 {Ad[u][b]}, {vlr} offset:{64*u+128*b}")
    Dr=[v(4,align=4),v(4,align=4)]; Di=[v(4,align=4),v(4,align=4)]
    k("s_waitcnt lgkmcnt(2)")
    k(f"{MF16} {Dr[0]}, {Ad[0]}, {BAr}, 0")
    k(f"{MF16} {Di[0]}, {Ad[0]}, {BAi}, 0")
    k("s_waitcnt lgkmcnt(0)")
    k(f"{MF16} {Dr[1]}, {Ad[1]}, {BAr}, 0")
    k(f"{MF16} {Di[1]}, {Ad[1]}, {BAi}, 0")
    k("s_waitcnt vmcnt(8)")
    k(f"v_fmac_f32 {Dr[0][0]}, {cny}, {ny}")
    Ur=v(4,align=4); Ui=v(4,align=4); AB=[v(4,align=4),v(4,align=4)]
    Yo=[v(4,align=4),v(4,align=4)]
    for u in range(2):
        for r in range(4):
            k(f"v_mul_f32 {Ur[r]}, {Dr[u][r]}, {TC[4*u+r]}")
            k(f"v_mul_f32 {Ui[r]}, {Di[u][r]}, {TC[4*u+r]}")
        for r in range(4):
            k(f"v_fma_f32 {Ur[r]}, -{Di[u][r]}, {TS[4*u+r]}, {Ur[r]}")
            k(f"v_fmac_f32 {Ui[r]}, {Dr[u][r]}, {TS[4*u+r]}")
        k(f"v_cvt_pk_bf16_f32 {AB[u][0]}, {Ur[0]}, {Ur[1]}")
        k(f"v_cvt_pk_bf16_f32 {AB[u][1]}, {Ur[2]}, {Ur[3]}")
        k(f"v_cvt_pk_bf16_f32 {AB[u][2]}, {Ui[0]}, {Ui[1]}")
        k(f"v_cvt_pk_bf16_f32 {AB[u][3]}, {Ui[2]}, {Ui[3]}")
        for t in range(2):
            k(f"{MF} {Yo[t]}, {AB[u]}, {BB[t][u]}, {0 if u==0 else Yo[t]}")
    k.stamp(5)
    k("s_waitcnt vmcnt(4)")
    x1=v(8,align=4)
    for t in range(2):
        k(f"v_lshlrev_b32 {x1[4*t+0]}, 16, {xr[t][0]}")
        k(f"v_and_b32 {x1[4*t+1]}, 0xffff0000, {xr[t][0]}")
        k(f"v_lshlrev_b32 {x1[4*t+2]}, 16, {xr[t][1]}")
        k(f"v_and_b32 {x1[4*t+3]}, 0xffff0000, {xr[t][1]}")
    for t in range(2):
        for r in range(4): k(f"v_fmac_f32 {x1[4*t+r]}, {ga[t][r]}, {Yo[t][r]}")
    for t in range(2):
        k(f"v_cvt_pk_bf16_f32 {xr[t][0]}, {x1[4*t+0]}, {x1[4*t+1]}")
        k(f"v_cvt_pk_bf16_f32 {xr[t][1]}, {x1[4*t+2]}, {x1[4*t+3]}")
    for t in range(2):
        k(f"buffer_store_dwordx2 {xr[t]}, {vxo}, {Rx1}, {stau} offen offset:{512*t}")
    for t in range(2):
        k(f"v_lshlrev_b32 {x1[4*t+0]}, 16, {xr[t][0]}")
        k(f"v_and_b32 {x1[4*t+1]}, 0xffff0000, {xr[t][0]}")
        k(f"v_lshlrev_b32 {x1[4*t+2]}, 16, {xr[t][1]}")
        k(f"v_and_b32 {x1[4*t+3]}, 0xffff0000, {xr[t][1]}")
    k.stamp(6)
    sm,tt=v(),v()
    k(f"v_add_f32 {sm}, {x1[0]}, {x1[1]}")
    k(f"v_add_f32 {tt}, {x1[2]}, {x1[3]}")
    k(f"v_add_f32 {c0}, {x1[4]}, {x1[5]}")
    k(f"v_add_f32 {c1}, {x1[6]}, {x1[7]}")
    k(f"v_add_f32 {sm}, {sm}, {tt}")
    k(f"v_add_f32 {c0}, {c0}, {c1}")
    k(f"v_add_f32 {sm}, {sm}, {c0}")
    wave_allreduce_add(k,sm,tt)
    k(f"v_mul_f32 {sm}, 0xbb000000, {sm}")
    for j in range(8): k(f"v_add_f32 {x1[j]}, {x1[j]}, {sm}")
    k(f"v_mul_f32 {sm}, {x1[0]}, {x1[0]}")
    k(f"v_mul_f32 {c0}, {x1[1]}, {x1[1]}")
    for j in range(2,8,2):
        k(f"v_fmac_f32 {sm}, {x1[j]}, {x1[j]}")
        k(f"v_fmac_f32 {c0}, {x1[j+1]}, {x1[j+1]}")
    k(f"v_add_f32 {sm}, {sm}, {c0}")
    wave_allreduce_add(k,sm,tt)
    k(f"v_mov_b32 {tt}, 0x3727c5ac")
    k(f"v_fmac_f32 {tt}, 0x3b000000, {sm}")
    k(f"v_rsq_f32 {tt}, {tt}")
    k("s_waitcnt vmcnt(2)")
    for j in range(8): k(f"v_mul_f32 {x1[j]}, {x1[j]}, {tt}")
    for t in range(2):
        for r in range(4): k(f"v_fma_f32 {x1[4*t+r]}, {x1[4*t+r]}, {cb[t][r]}, {sb[t][r]}")
    hp=[v(2),v(2)]
    for t in range(2):
        k(f"v_cvt_pk_bf16_f32 {hp[t][0]}, {x1[4*t+0]}, {x1[4*t+1]}")
        k(f"v_cvt_pk_bf16_f32 {hp[t][1]}, {x1[4*t+2]}, {x1[4*t+3]}")
        k(f"ds_write_b64 {vl2w}, {hp[t]} offset:{t*16*272}")
    k("s_waitcnt lgkmcnt(0)")
    k("s_barrier")
    k.stamp(7)
    k(f"ds_read_b128 {yv}, {vl2r}")
    k("s_waitcnt lgkmcnt(0)")
    k(f"buffer_store_dwordx4 {yv}, {vst}, {Rh}, 0 offen")
    k.stamp_flush(3)
    k(f"{END}:\ns_endpgm")
    code,desc=k.finish()
    return (k,code,desc)
if __name__=='__main__':
    from k0 import build_k0
    from k1 import build_k1
    from k2 import build_k2
    build_file([build_k0(),build_k1(),build_k2(),build_k3(NAME)],'t_k3.s')
```

```python
from common import *
MF="v_mfma_f32_32x32x16_bf16"
MAT=14464; CHUNK=2*MAT; NB=5
def build_k4(name='k4_kernel'):
    k=Kernel(name,256,256,lds=NB*CHUNK)
    v,s,a=k.v,k.s,k.a
    END=k.label('END')
    pg,pu,pws=s(2),s(2),s(2)
    w,t0,t1,tb,fb=s(),s(),s(),s(),s()
    lane,tv=v(),v()
    k(f"""
s_cmp_ge_u32 s2, 256
s_cbranch_scc1 {END}""")
    k.stamp_init()
    k(f"""
s_load_dwordx2 {pg}, s[0:1], {ARG['wg']}
s_load_dwordx2 {pu}, s[0:1], {ARG['wu']}
s_load_dwordx2 {pws}, s[0:1], {ARG['ws']}
v_lshrrev_b32 {tv}, 6, v0
v_and_b32 {lane}, 63, v0
v_readfirstlane_b32 {w}, {tv}
s_and_b32 {t0}, s2, 7            ; x
s_lshr_b32 {t1}, s2, 3           ; slot
s_and_b32 {tb}, {t0}, 1
s_lshl_b32 {tb}, {tb}, 3
s_lshr_b32 {fb}, {t0}, 1
s_lshl_b32 {fb}, {fb}, 2
s_and_b32 {t0}, {t1}, 7
s_add_u32 {tb}, {tb}, {t0}
s_lshr_b32 {t0}, {t1}, 3
s_add_u32 {fb}, {fb}, {t0}
""")
    vd=[v() for _ in range(7)]
    mat,dh,sm0=s(),s(),s()
    k(f"""
s_and_b32 {mat}, {w}, 1
s_lshr_b32 {dh}, {w}, 1
s_mul_i32 {t0}, {dh}, {32*3584}
s_mul_i32 {t1}, {fb}, 224
s_add_u32 {t0}, {t0}, {t1}
s_mul_i32 {sm0}, {mat}, {MAT}
s_mul_i32 {t1}, {dh}, 7168
s_add_u32 {sm0}, {sm0}, {t1}
""")
    p,row=v(),v()
    cdiv=s(); k(f"s_mov_b32 {cdiv}, 4682")
    for n in range(7):
        k(f"v_add_u32 {p}, {64*n}, {lane}")
        k(f"v_mul_u32_u24 {row}, {cdiv}, {p}")
        k(f"v_lshrrev_b32 {row}, 16, {row}")
        k(f"v_mul_u32_u24 {tv}, 14, {row}")
        k(f"v_sub_u32 {p}, {p}, {tv}")
        k(f"v_mul_u32_u24 {row}, 3584, {row}")
        k(f"v_lshl_add_u32 {vd[n]}, {p}, 4, {row}")
        k(f"v_add_u32 {vd[n]}, {t0}, {vd[n]}")
        if n&3: k(f"v_subrev_u32 {vd[n]}, {(n&3)*1024}, {vd[n]}")
    vtok=v(); k(f"v_lshlrev_b32 {vtok}, 4, {lane}")
    stok,schunk,tt=s(),s(),s()
    k(f"""
s_lshl_b32 {tt}, {tb}, 2
s_add_u32 {tt}, {tt}, {w}
s_lshl_b32 {stok}, {tt}, 15
s_mov_b32 {schunk}, 0
""")
    Rw,Rh,Ro=s(4),s(4),s(4)
    k("s_waitcnt lgkmcnt(0)")
    k.stamp(1)
    k(f"s_cmp_eq_u32 {mat}, 0")
    k(f"s_cselect_b32 {Rw[0]}, {pg[0]}, {pu[0]}")
    k(f"s_cselect_b32 {Rw[1]}, {pg[1]}, {pu[1]}")
    k(f"s_mov_b32 {Rw[2]}, {512*3584}")
    k(f"s_mov_b32 {Rw[3]}, 0x00020000")
    srd(k,Rh,pws,2048*1024,WS_H2F); srd(k,Ro,pws,2048*1792*2,WS_HHF)
    tok=a(128,align=4)
    def group(c):
        out=[]
        slot=c%NB
        for n in range(7):
            pre=""
            if n==0: pre=f"s_add_u32 m0, {sm0}, {slot*CHUNK}\ns_nop 0\n"
            if n==4: pre=f"s_add_u32 m0, {sm0}, {slot*CHUNK+4096}\ns_nop 0\n"
            out.append(pre+f"buffer_load_dwordx4 {vd[n]}, {Rw}, {schunk} offen offset:{(n&3)*1024} lds")
        for kap in range(4):
            post=""
            if kap==3: post=f"\ns_add_u32 {schunk}, {schunk}, {64*3584}\ns_add_u32 {stok}, {stok}, 4096"
            out.append(f"buffer_load_dwordx4 {tok[16*c+4*kap:16*c+4*kap+4]}, {vtok}, {Rh}, {stok} offen offset:{kap*1024}"+post)
        return out
    for c in range(NB):
        for x in group(c): k(x)
    k.stamp(2)
    vA=[v() for _ in range(NB)]
    c_,r_,G_=v(),v(),v()
    k(f"""
v_and_b32 {c_}, 3, {lane}
v_bfe_u32 {r_}, {lane}, 2, 2
v_lshrrev_b32 {G_}, 4, {lane}
v_lshrrev_b32 {tv}, 1, {c_}
v_mul_u32_u24 {vA[0]}, {MAT}, {tv}
v_lshrrev_b32 {tv}, 1, {G_}
v_lshl_add_u32 {tv}, {tv}, 3, {r_}
v_mul_u32_u24 {tv}, 224, {tv}
v_add_u32 {vA[0]}, {vA[0]}, {tv}
v_and_b32 {tv}, 1, {c_}
v_lshl_add_u32 {vA[0]}, {tv}, 4, {vA[0]}
v_and_b32 {tv}, 1, {G_}
v_lshl_add_u32 {vA[0]}, {tv}, 3, {vA[0]}
""")
    for b in range(1,NB): k(f"v_add_u32 {vA[b]}, {b*CHUNK}, {vA[0]}")
    acc=[v(16,align=4) for _ in range(7)]
    fr=[[v(4,align=4) for _ in range(7)] for _ in range(2)]
    def reads(c,kap,buf):
        out=[]
        for t7 in range(7):
            for e in range(2):
                out.append(f"ds_read_b64_tr_b16 {fr[buf][t7][2*e:2*e+2]}, {vA[c%NB]} offset:{kap*3584+e*896+t7*32}")
        return out
    sst=s()
    k(f"""
s_mul_i32 {sst}, {tt}, 112
s_mul_i32 {t0}, {fb}, 7
s_add_u32 {sst}, {sst}, {t0}
s_lshl_b32 {sst}, {sst}, 10
""")
    k("s_waitcnt vmcnt(44)")
    k.stamp(3)
    k("s_barrier")
    k.stamp(4)
    for x in reads(0,0,0): k(x)
    vm_sched={0:33,1:33,2:33,3:33,4:22,5:11,6:0}
    pend=[]
    step=0
    for c in range(8):
        for kap in range(4):
            buf=step&1
            last=(c==7 and kap==3)
            nc,nk=(c,kap+1) if kap<3 else (c+1,0)
            rd=[] if last else reads(nc,nk,buf^1)
            if kap==0 and c==2: k.stamp(5)
            if kap==0 and c==5: k.stamp(6)
            if kap==3 and c<7:
                k("s_waitcnt lgkmcnt(0)")
                k(f"s_waitcnt vmcnt({vm_sched[c]})")
                k("s_barrier")
                if c+NB<8: pend=group(c+NB)
            else:
                k("s_waitcnt lgkmcnt(8)")
            ri=0
            for t7 in range(7):
                if t7==3 and not(kap==3 and c<7):
                    k(f"s_waitcnt lgkmcnt({0 if last else 9})")
                cin = 0 if step==0 else acc[t7]
                k(f"{MF} {acc[t7]}, {fr[buf][t7]}, {tok[16*c+4*kap:16*c+4*kap+4]}, {cin}")
                nrd=3 if t7<4 else 2
                for _ in range(nrd):
                    if ri<len(rd): k(rd[ri]); ri+=1
                if t7 in (1,3,5) and pend: k(pend.pop(0))
            assert ri==len(rd)
            step+=1
    assert not pend
    k.stamp(7)
    o=[v(4,align=4),v(4,align=4)]
    for t7 in range(7):
        A=acc[t7]; oo=o[t7&1]
        for r in range(4):
            k(f"v_mul_f32 {A[r]}, {A[r]}, {A[4+r]}")
            k(f"v_mul_f32 {A[8+r]}, {A[8+r]}, {A[12+r]}")
        k(f"v_cvt_pk_bf16_f32 {oo[0]}, {A[0]}, {A[1]}")
        k(f"v_cvt_pk_bf16_f32 {oo[1]}, {A[2]}, {A[3]}")
        k(f"v_cvt_pk_bf16_f32 {oo[2]}, {A[8]}, {A[9]}")
        k(f"v_cvt_pk_bf16_f32 {oo[3]}, {A[10]}, {A[11]}")
        if t7==4: k(f"s_add_u32 {sst}, {sst}, 4096")
        k(f"buffer_store_dwordx4 {oo}, {vtok}, {Ro}, {sst} offen offset:{(t7&3)*1024}")
    k.stamp_flush(4)
    k(f"{END}:\ns_endpgm")
    code,desc=k.finish()
    return (k,code,desc)
if __name__=='__main__':
    from k0 import build_k0
    from k1 import build_k1
    from k2 import build_k2
    from k3 import build_k3
    build_file([build_k0(),build_k1(),build_k2(),build_k3(),build_k4(NAME)],'t_k4.s')
```

```python
from common import *
MF="v_mfma_f32_32x32x16_bf16"
def build_k5(name=NAME, D=8):
    RING=D*2048; RED=4*RING; WST=64*272
    k=Kernel(name,256,256,lds=RED+4*WST)
    v,s,a=k.v,k.s,k.a
    END=k.label('END')
    pwd,pws,pout=s(2),s(2),s(2)
    w,t0,t1,tb,nb=s(),s(),s(),s(),s()
    lane,tv=v(),v()
    k(f"""
s_cmp_ge_u32 s2, 256
s_cbranch_scc1 {END}""")
    k.stamp_init()
    k(f"""
s_load_dwordx2 {pwd}, s[0:1], {ARG['wd']}
s_load_dwordx2 {pws}, s[0:1], {ARG['ws']}
s_load_dwordx2 {pout}, s[0:1], {ARG['out']}
v_lshrrev_b32 {tv}, 6, v0
v_and_b32 {lane}, 63, v0
v_readfirstlane_b32 {w}, {tv}
s_and_b32 {t0}, s2, 7            ; x
s_lshr_b32 {t1}, s2, 3           ; slot
s_lshl_b32 {tb}, {t0}, 2
s_and_b32 {t0}, {t1}, 3
s_add_u32 {tb}, {tb}, {t0}
s_lshr_b32 {nb}, {t1}, 2
""")
    vd,row=v(),v()
    sw,stok,sm0=s(),s(),s()
    k(f"""
v_lshrrev_b32 {row}, 3, {lane}
v_bfe_u32 {tv}, {lane}, 4, 1
v_lshlrev_b32 {tv}, 2, {tv}
v_and_b32 {vd}, 7, {lane}
v_xor_b32 {vd}, {vd}, {tv}
v_lshlrev_b32 {vd}, 4, {vd}
v_lshl_add_u32 {vd}, {row}, 10, {vd}
s_mul_i32 {sw}, {w}, {448*1024}
s_lshl_b32 {t0}, {nb}, 7
s_add_u32 {sw}, {sw}, {t0}                     ; f0*1024 + nb*128
s_mul_i32 {stok}, {tb}, {2*112*1024}
s_mul_i32 {t0}, {w}, {28*1024}
s_add_u32 {stok}, {stok}, {t0}
s_mul_i32 {sm0}, {w}, {RING}
""")
    vd2=v(); vtok=v(); vtok2=v()
    k(f"v_add_u32 {vd2}, {8192-1024}, {vd}")
    k(f"v_lshlrev_b32 {vtok}, 4, {lane}")
    k(f"v_add_u32 {vtok2}, {112*1024}, {vtok}")
    vx1,vout,vgb,vrr=v(),v(),v(),v()
    tau,pos,u1=v(),v(),v()
    k(f"""
v_lshrrev_b32 {tau}, 2, v0
s_lshl_b32 {t0}, {tb}, 6
v_add_u32 {pos}, {t0}, {tau}
v_and_b32 {tv}, 3, v0
v_lshlrev_b32 {vgb}, 5, {tv}
s_lshl_b32 {t0}, {nb}, 7
v_add_u32 {vgb}, {t0}, {vgb}                    ; nb*128 + c*32
v_lshl_add_u32 {vx1}, {pos}, 10, {vgb}
v_bfe_u32 {u1}, {pos}, 8, 2
v_lshlrev_b32 {vout}, 9, {u1}                   ; 512*kap
v_bfe_u32 {u1}, {pos}, 6, 2
v_lshl_add_u32 {vout}, {u1}, 7, {vout}          ; +128 g
v_and_b32 {u1}, 3, {pos}
v_lshl_add_u32 {vout}, {u1}, 5, {vout}          ; +32 e
v_lshrrev_b32 {u1}, 10, {pos}
v_lshl_add_u32 {vout}, {u1}, 4, {vout}          ; +16 t
v_bfe_u32 {u1}, {pos}, 2, 4
v_add_u32 {vout}, {vout}, {u1}                  ; + i
v_lshl_add_u32 {vout}, {vout}, 10, {vgb}        ; s*1024 + nb*128 + c*32
v_lshlrev_b32 {vgb}, 1, {vgb}
v_mul_u32_u24 {vrr}, 272, {tau}
v_lshl_add_u32 {vrr}, {tv}, 6, {vrr}
v_add_u32 {vrr}, {RED}, {vrr}
""")
    Rw,Rh,Rx,Rm,Ro=s(4),s(4),s(4),s(4),s(4)
    k("s_waitcnt lgkmcnt(0)")
    k.stamp(1)
    srd(k,Rw,pwd,1792*1024); srd(k,Rh,pws,2048*1792*2,WS_HHF)
    srd(k,Rx,pws,2048*1024,WS_X1R); srd(k,Rm,pws,2048,WS_MOD+5*2048); srd(k,Ro,pout,2048*1024)
    tok=[[v(4,align=4),v(4,align=4)] for _ in range(D)]
    def loads(j):
        sl=j%D
        out=[f"s_add_u32 m0, {sm0}, {sl*2048}\ns_nop 0\nbuffer_load_dwordx4 {vd}, {Rw}, {sw} offen lds",
             f"buffer_load_dwordx4 {vd2}, {Rw}, {sw} offen offset:1024 lds",
             f"buffer_load_dwordx4 {tok[sl][0]}, {vtok}, {Rh}, {stok} offen",
             f"buffer_load_dwordx4 {tok[sl][1]}, {vtok2}, {Rh}, {stok} offen\ns_add_u32 {sw}, {sw}, {16*1024}\ns_add_u32 {stok}, {stok}, 1024"]
        return out
    for j in range(D):
        for x in loads(j): k(x)
    k.stamp(2)
    x1=v(8,align=4); gb=v(16,align=4)
    vA=[v(),v()]; c_,r_,G_=v(),v(),v()
    k(f"""
v_and_b32 {c_}, 3, {lane}
v_bfe_u32 {r_}, {lane}, 2, 2
v_lshrrev_b32 {G_}, 4, {lane}
v_lshrrev_b32 {tv}, 1, {G_}
v_lshl_add_u32 {tv}, {tv}, 3, {r_}              ; 8h'+r'
v_lshlrev_b32 {vA[0]}, 7, {tv}
v_and_b32 {tv}, 1, {G_}
v_lshlrev_b32 {tv}, 1, {tv}
v_lshrrev_b32 {u1}, 1, {c_}
v_add_u32 {tv}, {tv}, {u1}                       ; 2(G&1) + (c>>1)
v_lshrrev_b32 {u1}, 1, {r_}
v_lshlrev_b32 {u1}, 2, {u1}
v_xor_b32 {tv}, {tv}, {u1}
v_lshl_add_u32 {vA[0]}, {tv}, 4, {vA[0]}
v_and_b32 {tv}, 1, {c_}
v_lshl_add_u32 {vA[0]}, {tv}, 3, {vA[0]}
v_add_u32 {vA[0]}, {sm0}, {vA[0]}
v_xor_b32 {vA[1]}, 64, {vA[0]}
""")
    acc=[[v(16,align=4) for tt in range(2)] for nu in range(2)]
    fr=[[v(4,align=4),v(4,align=4)] for _ in range(2)]
    def reads(j):
        sl=j%D; b=j&1
        return [f"ds_read_b64_tr_b16 {fr[b][nu][2*e:2*e+2]}, {vA[nu]} offset:{sl*2048+e*512}" for nu in range(2) for e in range(2)]
    NS=28
    k(f"s_waitcnt vmcnt({4*(D-1)})")
    k.stamp(3)
    for x in reads(0): k(x)
    issued=D
    for j in range(NS):
        b=j&1; sl=j%D
        if j==8: k.stamp(4)
        if j==16: k.stamp(5)
        if j+1<NS:
            k(f"s_waitcnt vmcnt({4*(issued-(j+2))})")
        k("s_waitcnt lgkmcnt(0)")
        rd=reads(j+1) if j+1<NS else []
        ld=loads(j+D) if j+D<NS else []
        mi=0
        for nu in range(2):
            for tt in range(2):
                cin=0 if j==0 else acc[nu][tt]
                k(f"{MF} {acc[nu][tt]}, {fr[b][nu]}, {tok[sl][tt]}, {cin}")
                if mi<len(rd): k(rd[mi])
                mi+=1
        for x in ld: k(x)
        if ld: issued+=1
        if j==NS-D-1+0:
            pass
    k.stamp(6)
    k(f"buffer_load_dwordx4 {x1[0:4]}, {vx1}, {Rx}, 0 offen")
    k(f"buffer_load_dwordx4 {x1[4:8]}, {vx1}, {Rx}, 0 offen offset:16")
    for q in range(4): k(f"buffer_load_dwordx4 {gb[4*q:4*q+4]}, {vgb}, {Rm}, 0 offen offset:{16*q}")
    vrw=v()
    k(f"""
s_mul_i32 {t0}, {w}, {WST}
s_add_u32 {t0}, {t0}, {RED}
v_and_b32 {tv}, 31, {lane}
v_mul_u32_u24 {vrw}, 272, {tv}
v_lshrrev_b32 {tv}, 5, {lane}
v_lshl_add_u32 {vrw}, {tv}, 4, {vrw}
v_add_u32 {vrw}, {t0}, {vrw}
""")
    for tt in range(2):
        for nu in range(2):
            for q in range(4):
                k(f"ds_write_b128 {vrw}, {acc[nu][tt][4*q:4*q+4]} offset:{tt*32*272+nu*128+q*32}")
    k("s_waitcnt lgkmcnt(0)")
    k("s_barrier")
    k.stamp(7)
    S=[acc[0][0],acc[0][1],acc[1][0],acc[1][1]]
    for ww in range(4):
        for q in range(4):
            k(f"ds_read_b128 {S[ww][4*q:4*q+4]}, {vrr} offset:{ww*WST+q*16}")
    k("s_waitcnt lgkmcnt(8)")
    for j in range(16): k(f"v_add_f32 {S[0][j]}, {S[0][j]}, {S[1][j]}")
    k("s_waitcnt lgkmcnt(0)")
    for j in range(16): k(f"v_add_f32 {S[2][j]}, {S[2][j]}, {S[3][j]}")
    for j in range(16): k(f"v_add_f32 {S[0][j]}, {S[0][j]}, {S[2][j]}")
    k("s_waitcnt vmcnt(0)")
    xe=S[1]
    for p in range(8):
        k(f"v_lshlrev_b32 {xe[2*p]}, 16, {x1[p]}")
        k(f"v_and_b32 {xe[2*p+1]}, 0xffff0000, {x1[p]}")
    for j in range(16): k(f"v_fmac_f32 {xe[j]}, {gb[j]}, {S[0][j]}")
    for p in range(8): k(f"v_cvt_pk_bf16_f32 {x1[p]}, {xe[2*p]}, {xe[2*p+1]}")
    k(f"buffer_store_dwordx4 {x1[0:4]}, {vout}, {Ro}, 0 offen")
    k(f"buffer_store_dwordx4 {x1[4:8]}, {vout}, {Ro}, 0 offen offset:16")
    k.stamp_flush(5)
    k(f"{END}:\ns_endpgm")
    code,desc=k.finish()
    return (k,code,desc)
if __name__=='__main__':
    from k0 import build_k0
    from k1 import build_k1
    from k2 import build_k2
    from k3 import build_k3
    from k4 import build_k4
    build_file([build_k0(),build_k1(),build_k2(),build_k3(),build_k4(),build_k5(NAME)],__import__('os').environ.get('OUT','full.s'))
```

```python
import re, sys

class Reg:
    __slots__=('kind','idx','n')
    def __init__(self, kind, idx, n=1):
        self.kind=kind; self.idx=idx; self.n=n
    def __str__(self):
        if self.n==1: return f"{self.kind}{self.idx}"
        return f"{self.kind}[{self.idx}:{self.idx+self.n-1}]"
    __repr__=__str__
    def __format__(self, spec): return str(self)
    def __getitem__(self, i):
        if isinstance(i, slice):
            a=i.start or 0; b=self.n if i.stop is None else i.stop
            assert 0<=a<b<=self.n, (a,b,self.n)
            return Reg(self.kind, self.idx+a, b-a)
        assert 0<=i<self.n, (i,self.n)
        return Reg(self.kind, self.idx+i, 1)
    def sub(self, a, n): return self[a:a+n]
    def __len__(self): return self.n

class Alloc:
    def __init__(self, kind, start, limit):
        self.kind=kind; self.limit=limit; self.used=[False]*limit
        for i in range(start): self.used[i]=True
        self.hi=start
    def __call__(self, n=1, align=None):
        if align is None:
            align = 1 if n==1 else (2 if self.kind in 'va' else (2 if n==2 else 4))
        i=0
        while i+n<=self.limit:
            if i%align==0 and not any(self.used[i:i+n]):
                for j in range(i,i+n): self.used[j]=True
                self.hi=max(self.hi,i+n)
                return Reg(self.kind,i,n)
            i+=1
        raise RuntimeError(f"out of {self.kind} regs (want {n})")
    def at(self, i, n=1):
        assert not any(self.used[i:i+n]), (self.kind,i,n)
        for j in range(i,i+n): self.used[j]=True
        self.hi=max(self.hi,i+n)
        return Reg(self.kind,i,n)
    def free(self, *regs):
        for r in regs:
            for j in range(r.idx,r.idx+r.n):
                assert self.used[j], (r,)
                self.used[j]=False

REG_RE=re.compile(r'^(-|\|)?(?:abs\()?([vas])(?:(\d+)|\[(\d+):(\d+)\])\)?\|?$')
def parse_reg(tok):
    t=tok.strip()
    m=re.match(r'^-?\|?(?:abs\()?(?:neg\()?([vas])(?:(\d+)|\[(\d+):(\d+)\])\)?\|?$',t)
    if m:
        k=m.group(1)
        if m.group(2) is not None: return [(k,int(m.group(2)))]
        return [(k,i) for i in range(int(m.group(3)),int(m.group(4))+1)]
    if t in('vcc','-vcc'): return [('s','vcc_lo'),('s','vcc_hi')]
    if t=='vcc_lo': return [('s','vcc_lo')]
    if t=='vcc_hi': return [('s','vcc_hi')]
    if t=='exec': return [('s','exec_lo'),('s','exec_hi')]
    if t=='exec_lo': return [('s','exec_lo')]
    if t=='exec_hi': return [('s','exec_hi')]
    if t=='m0': return [('s','m0')]
    return []

TRANS=('v_exp_f32','v_log_f32','v_rcp_f32','v_rsq_f32','v_sqrt_f32','v_sin_f32','v_cos_f32','v_rcp_iflag_f32',
       'v_exp_f16','v_log_f16','v_rcp_f16','v_rsq_f16','v_sqrt_f16','v_sin_f16','v_cos_f16')
VCC=[('s','vcc_lo'),('s','vcc_hi')]
EXEC=[('s','exec_lo'),('s','exec_hi')]

class Ins:
    def __init__(self, text):
        self.text=text
        t=text.split(';')[0].split('//')[0].strip()
        self.label=None; self.op=None
        self.vr=set(); self.vw=set(); self.sr=set(); self.sw=set()
        self.cls=None; self.nop=0
        if not t:
            self.cls='empty'; return
        if t.endswith(':'):
            self.cls='label'; self.label=t[:-1]; return
        if t.startswith('.'):
            self.cls='directive'; return
        parts=t.split(None,1)
        op=parts[0]; self.op=op
        rest=parts[1] if len(parts)>1 else ''
        ops=[];depth=0;cur=''
        for ch in rest:
            if ch in '[(': depth+=1
            if ch in '])': depth-=1
            if ch==',' and depth==0: ops.append(cur.strip()); cur=''
            else: cur+=ch
        if cur.strip(): ops.append(cur.strip())
        mods=''
        if ops:
            last=ops[-1].split(None,1)
            if len(last)>1:
                ops[-1]=last[0]; mods=last[1]
        self.ops=ops; self.mods=mods
        R=lambda i: parse_reg(ops[i]) if i<len(ops) else []
        def rd(regs):
            for r in regs: (self.vr if r[0] in 'va' else self.sr).add(r)
        def wr(regs):
            for r in regs: (self.vw if r[0] in 'va' else self.sw).add(r)
        base=op
        for suf in ('_e32','_e64','_dpp','_sdwa'):
            if base.endswith(suf): base=base[:-len(suf)]
        self.base=base
        self.dpp = op.endswith('_dpp') or any(k in mods for k in ('row_shr','row_shl','row_ror','quad_perm','row_mirror','row_half_mirror','row_bcast','row_newbcast','wave_sh','wave_ro'))
        self.sdwa = op.endswith('_sdwa') or 'dst_sel' in mods
        if op.startswith('v_mfma') or op.startswith('v_smfmac'):
            self.cls='mfma'
            wr(R(0)); self.D=set(R(0)); self.A=set(R(1)); self.B=set(R(2)); self.C=set(R(3))
            rd(R(1)); rd(R(2)); rd(R(3))
            self.Dfirst=R(0)[0]; self.Cfirst=R(3)[0] if R(3) else None
            if '32x32' in op: self.passes=8
            elif '16x16' in op: self.passes=4
            elif '4x4' in op: self.passes=2
            else: raise ValueError(op)
            if op.endswith('_f32') and re.search(r'x\d+_f32$',op) and not 'bf16' in op and not 'f16' in op:
                raise ValueError('SGEMM mfma not modelled '+op)
        elif op.startswith('v_'):
            self.cls='valu'
            self.trans = base in TRANS
            if base.startswith('v_cmpx'):
                wr(EXEC); wr(R(0));
                for i in range(1,len(ops)): rd(R(i))
            elif base.startswith('v_cmp'):
                wr(R(0))
                for i in range(1,len(ops)): rd(R(i))
            elif base in('v_readfirstlane_b32','v_readlane_b32'):
                wr(R(0))
                for i in range(1,len(ops)): rd(R(i))
            elif base in('v_add_co_u32','v_sub_co_u32','v_subrev_co_u32','v_addc_co_u32','v_subb_co_u32','v_div_scale_f32','v_mad_u64_u32'):
                wr(R(0)); wr(R(1))
                for i in range(2,len(ops)): rd(R(i))
            elif base in('v_permlane32_swap_b32','v_permlane16_swap_b32','v_swap_b32'):
                wr(R(0)); wr(R(1)); rd(R(0)); rd(R(1))
            elif base=='v_nop':
                pass
            else:
                wr(R(0))
                for i in range(1,len(ops)): rd(R(i))
                if base in('v_fmac_f32','v_fmac_f16','v_pk_fmac_f16','v_dot2c_f32_bf16','v_dot2c_f32_f16','v_writelane_b32','v_fmamk_f32x') or self.dpp or self.sdwa or 'op_sel' in mods and base.startswith('v_cvt'):
                    rd(R(0))
                if base=='v_cndmask_b32' and len(ops)==3: rd(VCC)
                if base=='v_bitop3_b32': pass
            self.opselshift = self.sdwa or ('op_sel' in mods and not base.startswith('v_pk_'))
        elif op.startswith('ds_'):
            self.cls='ds'
            if op.startswith('ds_read') or op.startswith('ds_bpermute') or op.startswith('ds_permute') or op.startswith('ds_swizzle'):
                wr(R(0))
                for i in range(1,len(ops)): rd(R(i))
                self.dsread=True
            elif op.startswith('ds_write'):
                for i in range(len(ops)): rd(R(i))
                self.dsread=False
            elif op.startswith('ds_add') or op.startswith('ds_min') or op.startswith('ds_max'):
                if '_rtn' in op:
                    wr(R(0))
                    for i in range(1,len(ops)): rd(R(i))
                    self.dsread=True
                else:
                    for i in range(len(ops)): rd(R(i))
                    self.dsread=False
            else: raise ValueError('ds op '+op)
            if 'addtid' in op: rd([('s','m0')])
        elif op.startswith('buffer_') or op.startswith('global_'):
            self.cls='vmem'
            self.lds = ('lds' in mods.split()) or ('_lds_' in op)
            self.store=False; self.wide=False
            if op.startswith('buffer_wbl2') or op.startswith('buffer_inv'):
                pass
            elif self.lds:
                for i in range(len(ops)): rd(R(i))
                rd([('s','m0')])
            elif '_load' in op:
                wr(R(0))
                if 'd16' in op: rd(R(0))
                for i in range(1,len(ops)): rd(R(i))
            elif '_store' in op:
                self.store=True
                for i in range(len(ops)): rd(R(i))
                self.wide = op.endswith('x3') or op.endswith('x4')
                if op.startswith('buffer'): self.sdata=set(R(0))
                else: self.sdata=set(R(1))
            elif '_atomic' in op:
                self.store=True
                for i in range(len(ops)): rd(R(i))
                if 'sc0' in mods.split(): wr(R(0))
            else: raise ValueError(op)
        elif op.startswith('s_'):
            if op in('s_nop',):
                self.cls='nop'; self.nop=int(ops[0],0)+1
            elif op=='s_waitcnt':
                self.cls='wait'
                s=rest
                m=re.search(r'vmcnt\((\d+)\)',s); self.vm=int(m.group(1)) if m else None
                m=re.search(r'lgkmcnt\((\d+)\)',s); self.lgkm=int(m.group(1)) if m else None
            elif op=='s_barrier': self.cls='barrier'
            elif op=='s_endpgm': self.cls='end'
            elif op=='s_branch': self.cls='branch'; self.target=ops[0]
            elif op.startswith('s_cbranch'):
                self.cls='cbranch'; self.target=ops[0]
                if 'vcc' in op: rd(VCC)
                if 'exec' in op: rd(EXEC)
            elif op.startswith('s_load') or op.startswith('s_buffer_load') or op in('s_memtime','s_memrealtime'):
                self.cls='smem'; wr(R(0))
                for i in range(1,len(ops)): rd(R(i))
            else:
                self.cls='salu'
                if op.startswith('s_cmp') or op in('s_setprio','s_sleep','s_bitcmp0_b32','s_bitcmp1_b32'):
                    for i in range(len(ops)): rd(R(i))
                elif op=='s_getreg_b32':
                    wr(R(0))
                else:
                    wr(R(0))
                    for i in range(1,len(ops)): rd(R(i))
                    if 'saveexec' in op: wr(EXEC); rd(EXEC)
                    if op in('s_addk_i32','s_mulk_i32'): rd(R(0))
        else:
            raise ValueError('unknown instruction: '+text)

    def is_real(self): return self.cls not in ('empty','label','directive')
    def states(self): return self.nop if self.cls=='nop' else 1


def hazard_need(p, c):
    need=0
    pc, cc = p.cls, c.cls
    if pc=='valu':
        ov = p.vw & c.vr
        if cc=='mfma' and ov: need=max(need,2)
        if cc=='valu':
            if ov and c.dpp: need=max(need,2)
            if ov and c.base.startswith('v_permlane'): need=max(need,2)
            if p.vw & c.vw and c.base.startswith('v_permlane'): need=max(need,2)
            if ov and c.base in('v_readlane_b32','v_readfirstlane_b32'): need=max(need,1)
            if p.trans and ov: need=max(need,1)
            if p.opselshift and (ov or p.vw & c.vw): need=max(need,1)
        if cc in('vmem','ds') and p.trans and ov: need=max(need,1)
        so = p.sw & c.sr
        if so:
            if cc=='vmem': need=max(need,5)
            if cc=='valu':
                need=max(need,2)
                if c.base in('v_readlane_b32','v_writelane_b32'): need=max(need,4)
                if c.base=='v_div_fmas_f32': need=max(need,4)
            if cc in('salu','cbranch','smem'): need=max(need,1)
        if p.sw & set(VCC) and cc=='cbranch' and 'vcc' in c.op: need=max(need,5) if False else max(need,1)
        if p.sw & set(EXEC):
            if cc=='mfma': need=max(need,4)
            if cc=='valu' and c.dpp: need=max(need,5)
            if cc=='valu' and (c.base.startswith('v_permlane') or c.base in('v_readlane_b32','v_readfirstlane_b32','v_writelane_b32')): need=max(need,4)
    if pc=='salu':
        if ('s','m0') in p.sw and ('s','m0') in c.sr and cc in('vmem','ds'): need=max(need,1)
    if pc=='vmem' and p.store and getattr(p,'wide',False):
        if p.sdata & c.vw:
            need=max(need, 2 if cc=='valu' else 1)
    if pc=='mfma':
        P=p.passes
        if cc=='mfma':
            if p.D & c.C:
                exact = (p.D==c.C) and p.passes==c.passes
                if not exact: need=max(need,P+2)
                elif P==2: need=max(need,2)
            if p.D & (c.A|c.B): need=max(need,P+4 if P>2 else 5)
            if (p.D & c.D) and not (p.D & c.C):
                if p.passes!=c.passes or p.D!=c.D: need=max(need,P+2)
        elif cc in('valu','vmem','ds'):
            if p.D & (c.vr|c.vw): need=max(need,P+4 if P>2 else 5)
            if cc=='valu' and (p.C & c.vw): need=max(need,P-1)
            if cc in('vmem','ds') and (p.C & c.vw): need=max(need,P-1)
    return need

MAXD=21
def insert_nops(lines):
    ins=[Ins(l) for l in lines]
    labels={x.label:i for i,x in enumerate(ins) if x.cls=='label'}
    preds_branch={}
    for i,x in enumerate(ins):
        if x.cls in('branch','cbranch'):
            preds_branch.setdefault(labels[x.target],[]).append(i)
    extra=[0]*len(ins)
    sys.setrecursionlimit(100000)
    def need_for(ci):
        c=ins[ci]; best=0
        seen={}
        stack=[(ci,0)]
        while stack:
            i,d=stack.pop()
            if d>=MAXD: continue
            if seen.get(i,99)<=d: continue
            seen[i]=d
            ps=[]
            if i>0:
                q=ins[i-1]
                if q.cls not in('branch','end'): ps.append(i-1)
            if ins[i].cls=='label': ps+=preds_branch.get(i,[])
            for j in ps:
                p=ins[j]
                if p.is_real():
                    n=hazard_need(p,c)
                    if n>d: best=max(best,n-d)
                    stack.append((j,d+p.states()+extra[j]))
                else:
                    stack.append((j,d))
        return best
    out=[]; total=0
    for i,x in enumerate(ins):
        if x.is_real() and x.cls in('valu','mfma','vmem','ds','salu','cbranch','smem'):
            n=need_for(i)
            if n>0:
                extra[i]=n; total+=n
    for i,x in enumerate(ins):
        n=extra[i]
        while n>0:
            k=min(n,16); out.append(f"    s_nop {k-1}"); n-=k
        out.append(x.text)
    return out,total

def check_waits(lines, name='', maxback=1, verbose=True):
    ins=[Ins(l) for l in lines]
    labels={x.label:i for i,x in enumerate(ins) if x.cls=='label'}
    problems=[]
    seen_states=set()
    stack=[(0,(),(),())]
    steps=0
    while stack:
        pc,vm,lg,bc=stack.pop()
        vm=list(vm); lg=list(lg); bc=dict(bc)
        while pc<len(ins):
            x=ins[pc]; steps+=1
            if steps>5_000_000: raise RuntimeError('check_waits: too many paths')
            if x.cls=='label':
                key=(pc,tuple(vm),tuple(lg),tuple(sorted(bc.items())))
                if key in seen_states: break
                seen_states.add(key)
            if x.is_real():
                touched=(x.vr|x.vw|x.sr|x.sw)
                for d in vm:
                    if d & touched:
                        if x.cls=='vmem' and not (d & (x.vr|x.sr)) and not 'd16' in x.op:
                            pass
                        else:
                            problems.append((pc,x.text.strip(),'vmcnt outstanding '+str(sorted(d&touched)[:4])))
                for kind,d in lg:
                    if d & touched:
                        if x.cls=='ds' and kind=='ds' and not (d & (x.vr|x.sr)): pass
                        else: problems.append((pc,x.text.strip(),'lgkmcnt outstanding '+str(sorted(d&touched,key=str)[:4])))
                if x.cls=='vmem':
                    if not (x.op.startswith('buffer_wbl2') and False):
                        vm.append(frozenset(x.vw))
                    if len(vm)>63: problems.append((pc,x.text.strip(),'vmcnt overflow >63'))
                elif x.cls=='ds':
                    lg.append(('ds',frozenset(x.vw)))
                elif x.cls=='smem':
                    lg.append(('s',frozenset(x.sw)))
                elif x.cls=='wait':
                    if x.vm is not None:
                        while len(vm)>x.vm: vm.pop(0)
                    if x.lgkm is not None:
                        if x.lgkm==0: lg=[]
                        elif any(k=='s' for k,_ in lg):
                            pass
                        else:
                            while len(lg)>x.lgkm: lg.pop(0)
                elif x.cls=='barrier':
                    if any(k=='ds' for k,_ in lg) and 'nowarn' not in x.text:
                        problems.append((pc,x.text.strip(),'barrier with outstanding DS ops'))
                elif x.cls=='end': break
                elif x.cls=='branch':
                    t=labels[x.target]
                    if t<=pc:
                        bc[pc]=bc.get(pc,0)+1
                        if bc[pc]>maxback: break
                    pc=t; continue
                elif x.cls=='cbranch':
                    t=labels[x.target]
                    if t<=pc:
                        n=bc.get(pc,0)
                        if n<maxback:
                            b2=dict(bc); b2[pc]=n+1
                            stack.append((t,tuple(vm),tuple(lg),tuple(sorted(b2.items()))))
                    else:
                        stack.append((t,tuple(vm),tuple(lg),tuple(sorted(bc.items()))))
            pc+=1
    uniq=[];s=set()
    for p in problems:
        if p[:2] not in s: s.add(p[:2]); uniq.append(p)
    if verbose:
        for p in uniq[:40]: print(f"[waitcheck {name}] line {p[0]}: {p[1]}  -> {p[2]}")
    return uniq

import os
DIAG=int(os.environ.get('DIAG','0'))
WS_DIAG=0x2000000
class Kernel:
    def __init__(self, name, grid, block, lds=0):
        self.name=name; self.grid=grid; self.block=block; self.lds=lds
        self.lines=[]
        self.v=Alloc('v',1,256); self.a=Alloc('a',0,256); self.s=Alloc('s',3,100)
        self._lab=0
        if DIAG:
            self.s.at(74,26)
            self.nst=0
    def reset_regs(self, keep=()):
        for al,start in ((self.v,1),(self.a,0),(self.s,3)):
            for i in range(start,al.limit): al.used[i]=False
        if DIAG:
            for i in range(74,100): self.s.used[i]=True
        for r in keep:
            al={'v':self.v,'a':self.a,'s':self.s}[r.kind]
            for i in range(r.idx,r.idx+r.n): al.used[i]=True
    def stamp(self, i):
        if not DIAG: return
        self(f"{'s_memtime' if DIAG==2 else 's_memrealtime'} s[{80+2*i}:{81+2*i}]")
        self.nst=max(self.nst,i+1)
    def stamp_init(self):
        if not DIAG: return
        self.stamp(0)
        t=self.v()
        self(f"v_lshrrev_b32 {t}, 6, v0")
        self(f"v_readfirstlane_b32 s74, {t}")
        self.v.free(t)
    def stamp_flush(self, kidx, drain=True, mid=None):
        if not DIAG:
            if mid: mid()
            return
        if drain:
            self.stamp(8)
            self("s_waitcnt vmcnt(0)")
        self.stamp(9)
        if mid: mid()
        self("s_load_dwordx2 s[76:77], s[0:1], 88")
        self("s_waitcnt lgkmcnt(0)")
        self(f"s_add_u32 s76, s76, {WS_DIAG+kidx*512*8*64:#x}")
        self("s_addc_u32 s77, s77, 0")
        self(f"s_mov_b32 s78, {512*8*64:#x}")
        self("s_mov_b32 s79, 0x00020000")
        self("s_lshl_b32 s75, s2, 3")
        self("s_add_u32 s75, s75, s74")
        self("s_lshl_b32 s75, s75, 6")
        self("s_mov_b64 exec, 1")
        for i in range(10): self(f"v_mov_b32 v{4+i}, s{80+2*i}")
        self("s_getreg_b32 s74, hwreg(HW_REG_XCC_ID)")
        self("v_mov_b32 v14, s74")
        self("s_getreg_b32 s74, hwreg(HW_REG_HW_ID)")
        self("v_mov_b32 v15, s74")
        self("v_mov_b32 v0, s75")
        self("buffer_store_dwordx4 v[4:7], v0, s[76:79], 0 offen")
        self("buffer_store_dwordx4 v[8:11], v0, s[76:79], 0 offen offset:16")
        self("buffer_store_dwordx4 v[12:15], v0, s[76:79], 0 offen offset:32")
    def __call__(self, text):
        for l in text.split('\n'):
            l=l.strip()
            if not l: continue
            if l.endswith(':'): self.lines.append(l)
            else: self.lines.append('    '+l)
    def label(self, base='L'):
        self._lab+=1
        return f"{self.name}_{base}{self._lab}"
    def comment(self, t): self.lines.append('    ; '+t)
    def finish(self, vgpr=None, agpr=None, check=True):
        lines,total=insert_nops(self.lines)
        if check and not DIAG:
            pr=check_waits(lines,self.name)
            if pr: print(f"!! {self.name}: {len(pr)} wait problems")
        nv=vgpr or max(self.v.hi,16 if DIAG else 0); na=agpr if agpr is not None else self.a.hi
        acc=max(4,(nv+3)//4*4)
        tot=acc+na if na else nv
        self.nv,self.na=nv,na
        ns=max(self.s.hi,16)
        n_ins=sum(1 for l in lines if Ins(l).is_real())
        print(f"[{self.name}] instrs={n_ins} nops_states={total} vgpr={nv} agpr={na} sgpr={ns}")
        code=f".globl {self.name}\n.p2align 8\n.type {self.name},@function\n{self.name}:\n"+'\n'.join(lines)+f"\n{self.name}_CEND:\n"
        desc=f""".p2align 6
.amdhsa_kernel {self.name}
  .amdhsa_next_free_vgpr {tot}
  .amdhsa_next_free_sgpr {ns}
  .amdhsa_accum_offset {acc}
  .amdhsa_group_segment_fixed_size 0
  .amdhsa_kernarg_size 96
  .amdhsa_user_sgpr_count 2
  .amdhsa_user_sgpr_kernarg_segment_ptr 1
  .amdhsa_system_sgpr_workgroup_id_x 1
.end_amdhsa_kernel
"""
        return code,desc

HEADER=""";  Kernarg layout (96 bytes, ptrs only, base s[0:1]):
"""
def build_file(kernels, path):
    s=HEADER
    for k,_,_ in kernels:
        s+=f"; @launch kernel={k.name} grid=({k.grid},1,1) block=({k.block},1,1) lds={k.lds}\n"
    s+='.amdgcn_target "amdgcn-amd-amdhsa--gfx950"\n.text\n'
    done=set()
    for k,code,_ in kernels:
        if k.name in done: continue
        done.add(k.name); s+=code
    s+='.section .rodata,"a"\n'
    done=set()
    for k,_,desc in kernels:
        if k.name in done: continue
        done.add(k.name); s+=desc
    open(path,'w').write(s)
    return s
```

```python
from asmlib import *
NAME='adaLN_cond__spectral_gfnet__glu_gated_bilinear__prompt_kernel'
WS_WT   = 0x000000
WS_MOD  = 0x210000
WS_X1   = 0x220000
WS_Y    = 0x430000
WS_X1R  = 0x640000
WS_H2F  = 0x840000
WS_HHF  = 0xA40000
WS_END  = 0x1140000
COLB = 257*8192
ARG = dict(x=0,wr=8,wi=16,bx=24,wg=32,wu=40,wd=48,c=56,wm=64,out=72,dbg=80,ws=88)

def srd(k, dst, base, nbytes, off=0):
    if off:
        k(f"s_add_u32 {dst[0]}, {base[0]}, {off:#x}")
        k(f"s_addc_u32 {dst[1]}, {base[1]}, 0")
    else:
        k(f"s_mov_b32 {dst[0]}, {base[0]}")
        k(f"s_mov_b32 {dst[1]}, {base[1]}")
    k(f"s_mov_b32 {dst[2]}, {nbytes:#x}")
    k(f"s_mov_b32 {dst[3]}, 0x00020000")

def beta_of_wg(k, dst, tmp):
    k(f"s_and_b32 {dst}, s2, 7")
    k(f"s_lshl_b32 {dst}, {dst}, 5")
    k(f"s_lshr_b32 {tmp}, s2, 3")
    k(f"s_add_u32 {dst}, {dst}, {tmp}")

def wave_allreduce_add(k, x, t):
    for r in (8,4,2,1):
        k(f"v_add_f32_dpp {x}, {x}, {x} row_ror:{r} row_mask:0xf bank_mask:0xf")
    k(f"v_mov_b32 {t}, {x}")
    k(f"v_permlane16_swap_b32 {x}, {t}")
    k(f"v_add_f32 {x}, {x}, {t}")
    k(f"v_mov_b32 {t}, {x}")
    k(f"v_permlane32_swap_b32 {x}, {t}")
    k(f"v_add_f32 {x}, {x}, {t}")

def row_of_pos(k, dst, beta, w, t0, t1):
    k(f"""
s_bfe_u32 {t0}, {beta}, 0x20005
s_lshl_b32 {dst}, {t0}, 9
s_bfe_u32 {t0}, {beta}, 0x20003
s_lshl_b32 {t0}, {t0}, 7
s_add_u32 {dst}, {dst}, {t0}
s_and_b32 {t0}, {w}, 3
s_lshl_b32 {t0}, {t0}, 5
s_add_u32 {dst}, {dst}, {t0}
s_lshr_b32 {t0}, {beta}, 7
s_lshl_b32 {t0}, {t0}, 4
s_add_u32 {dst}, {dst}, {t0}
s_and_b32 {t0}, {beta}, 7
s_lshl_b32 {t0}, {t0}, 1
s_add_u32 {dst}, {dst}, {t0}
s_lshr_b32 {t0}, {w}, 2
s_add_u32 {dst}, {dst}, {t0}
""")

WS_MBOX = WS_MOD+0x4000
WS_WDF  = 0x1140000
WS_FLG  = 0x1300000

def silu_bf16(k, dst, c, te):
    k(f"v_mul_f32 {te}, 0xbfb8aa3b, {c}")
    k(f"v_exp_f32 {te}, {te}")
    k(f"v_add_f32 {te}, 1.0, {te}")
    k(f"v_rcp_f32 {te}, {te}")
    k(f"v_mul_f32 {te}, {c}, {te}")
    k(f"v_cvt_pk_bf16_f32 {te}, {te}, {te}")
    k(f"v_and_b32 {dst}, 0xffff0000, {te}")

def gemv_lds_addr(k, vl, u_, lane, w, t0, msk):
    k(f"""
v_and_b32 {u_}, 7, {lane}
v_lshlrev_b32 {vl}, 3, {u_}
v_bfe_u32 {u_}, {lane}, 3, 1
v_lshl_add_u32 {vl}, {u_}, 2, {vl}
v_bfe_u32 {u_}, {lane}, 4, 1
v_lshl_add_u32 {vl}, {u_}, 1, {vl}
v_lshrrev_b32 {u_}, 5, {lane}
v_add_u32 {vl}, {vl}, {u_}
v_lshlrev_b32 {vl}, 2, {vl}
s_lshl_b32 {t0}, {w}, 8
v_add_u32 {vl}, {t0}, {vl}
v_and_b32 {u_}, 8, {lane}
v_cmp_ne_u32 {msk}, 0, {u_}
""")

def gemv_reduce(k, acc, msk):
    for p in range(4): k(f"v_permlane32_swap_b32 {acc[2*p]}, {acc[2*p+1]}")
    for p in range(4): k(f"v_add_f32 {acc[2*p]}, {acc[2*p]}, {acc[2*p+1]}")
    k(f"v_permlane16_swap_b32 {acc[0]}, {acc[2]}")
    k(f"v_permlane16_swap_b32 {acc[4]}, {acc[6]}")
    k(f"v_add_f32 {acc[0]}, {acc[0]}, {acc[2]}")
    k(f"v_add_f32 {acc[4]}, {acc[4]}, {acc[6]}")
    k(f"v_add_f32_dpp {acc[0]}, {acc[0]}, {acc[0]} row_ror:8 row_mask:0xf bank_mask:0xf")
    k(f"v_add_f32_dpp {acc[4]}, {acc[4]}, {acc[4]} row_ror:8 row_mask:0xf bank_mask:0xf")
    k(f"v_cndmask_b32 {acc[0]}, {acc[0]}, {acc[4]}, {msk}")

WS_MOD2 = WS_MOD+0xC000
```

```python
from common import *
MF="v_mfma_f32_16x16x32_bf16"
def interleave(k, mf, va, ratio=2):
    vi=0
    for m in mf:
        k(m)
        for _ in range(ratio):
            if vi<len(va): k(va[vi]); vi+=1
    while vi<len(va): k(va[vi]); vi+=1

NX_G=128; NX_R=112
def k2_extras(k,END):
    v,s=k.v,k.s
    RELAY=k.label('RELAY'); ZERO=k.label('ZERO'); GE=k.label('GE')
    pwd,pws=s(2),s(2)
    e,w,t0,t1=s(),s(),s(),s()
    lane,tv=v(),v()
    k(f"""
s_cmp_ge_u32 s2, {257+NX_G+NX_R+1}
s_cbranch_scc1 {END}
s_load_dwordx2 {pwd}, s[0:1], {ARG['wd']}
s_load_dwordx2 {pws}, s[0:1], {ARG['ws']}
s_sub_u32 {e}, s2, 257
v_lshrrev_b32 {tv}, 6, v0
v_and_b32 {lane}, 63, v0
v_readfirstlane_b32 {w}, {tv}
s_cmp_ge_u32 {e}, {NX_G+NX_R}
s_cbranch_scc1 {ZERO}
s_cmp_ge_u32 {e}, {NX_G}
s_cbranch_scc1 {RELAY}
""")
    Rm,Rc,Ro=s(4),s(4),s(4); pwm,pc=s(2),s(2)
    k(f"s_load_dwordx2 {pwm}, s[0:1], {ARG['wm']}")
    k(f"s_load_dwordx2 {pc}, s[0:1], {ARG['c']}")
    va,vc,vo,vl=v(),v(),v(),v(); cg,so,t2=s(),s(),s()
    k(f"""
s_and_b32 {t0}, {e}, 7
s_lshr_b32 {t1}, {e}, 5
s_lshl_b32 {t1}, {t1}, 3
s_add_u32 {t0}, {t0}, {t1}                  ; line 0..31
s_lshl_b32 {t0}, {t0}, 2
s_bfe_u32 {t1}, {e}, 0x20003
s_add_u32 {cg}, {t0}, {t1}
s_lshl_b32 {so}, {cg}, 5
s_add_u32 {so}, {so}, 2048
v_lshrrev_b32 {tv}, 1, v0                   ; rg
v_lshlrev_b32 {vc}, 1, {tv}
v_mul_u32_u24 {va}, 0x1800, {tv}
v_and_b32 {tv}, 1, v0
v_lshl_add_u32 {va}, {tv}, 4, {va}
v_lshlrev_b32 {vl}, 5, {tv}                 ; half*32
v_lshrrev_b32 {tv}, 4, v0
v_lshl_add_u32 {vl}, {tv}, 6, {vl}
s_lshr_b32 {t2}, {cg}, 5
s_and_b32 {t0}, {cg}, 31
s_lshr_b32 {t1}, {t0}, 4
s_lshl_b32 {t1}, {t1}, 10                   ; t*1024
s_and_b32 {t0}, {t0}, 15
s_lshl_b32 {t0}, {t0}, 4                    ; i*16
s_add_u32 {t1}, {t1}, {t0}
v_and_b32 {tv}, 15, v0
v_lshrrev_b32 {vo}, 2, {tv}
v_lshlrev_b32 {vo}, 8, {vo}                 ; g*256
v_and_b32 {tv}, 3, v0
v_lshl_add_u32 {vo}, {tv}, 2, {vo}          ; + 4r
v_add_u32 {vo}, {t1}, {vo}
s_and_b32 {t0}, {cg}, 31
s_lshl_b32 {t0}, {t0}, 6
v_and_b32 {tv}, 15, v0
v_lshlrev_b32 {tv}, 2, {tv}
v_add_u32 {tv}, {t0}, {tv}
s_cmp_eq_u32 {t2}, 3
s_cselect_b64 vcc, -1, 0
v_cndmask_b32 {vo}, {vo}, {tv}, vcc
s_lshl_b32 {t0}, {t2}, 11
v_add_u32 {vo}, {t0}, {vo}
s_cmp_eq_u32 {t2}, 2
s_cselect_b32 {t2}, 1.0, 0
s_waitcnt lgkmcnt(0)
""")
    srd(k,Rm,pwm,512*6144); srd(k,Rc,pc,1024); srd(k,Ro,pws,8192,WS_MOD2)
    cv=v(4); W4=[v(4,align=4) for _ in range(4)]; sc=v(4); te,u1,u2=v(),v(),v(); acc=v(8,align=4)
    for j in range(4): k(f"buffer_load_short_d16_hi {cv[j]}, {vc}, {Rc}, 0 offen offset:{256*j}")
    for j in range(4):
        k(f"buffer_load_dwordx4 {W4[j]}, {va}, {Rm}, {so} offen")
        if j<3: k(f"s_add_u32 {so}, {so}, {128*6144}")
    k("s_waitcnt vmcnt(4)")
    for j in range(4): silu_bf16(k,sc[j],cv[j],te)
    for j in range(4):
        k(f"s_waitcnt vmcnt({3-j})")
        for p in range(4):
            k(f"v_lshlrev_b32 {u1}, 16, {W4[j][p]}")
            k(f"v_and_b32 {u2}, 0xffff0000, {W4[j][p]}")
            if j==0:
                k(f"v_mul_f32 {acc[2*p]}, {sc[j]}, {u1}")
                k(f"v_mul_f32 {acc[2*p+1]}, {sc[j]}, {u2}")
            else:
                k(f"v_fmac_f32 {acc[2*p]}, {sc[j]}, {u1}")
                k(f"v_fmac_f32 {acc[2*p+1]}, {sc[j]}, {u2}")
    for r in (2,4,8):
        for p in range(8): k(f"v_add_f32_dpp {acc[p]}, {acc[p]}, {acc[p]} row_ror:{r} row_mask:0xf bank_mask:0xf")
    sv=s(2)
    k(f"""
v_and_b32 {u1}, 14, v0
v_cmp_eq_u32 vcc, 0, {u1}
s_and_saveexec_b64 {sv}, vcc
ds_write_b128 {vl}, {acc[0:4]}
ds_write_b128 {vl}, {acc[4:8]} offset:16
s_mov_b64 exec, {sv}
v_and_b32 {u1}, 15, v0
v_bfe_u32 {u2}, v0, 4, 2
v_lshlrev_b32 {u1}, 2, {u1}
v_lshl_add_u32 {u1}, {u2}, 8, {u1}          ; col*4 + q*256
s_waitcnt lgkmcnt(0)
s_barrier
""")
    for q in range(4): k(f"ds_read_b32 {acc[q]}, {u1} offset:{64*q}")
    k(f"""
s_waitcnt lgkmcnt(0)
v_add_f32 {acc[0]}, {acc[0]}, {acc[1]}
v_add_f32 {acc[2]}, {acc[2]}, {acc[3]}
v_add_f32 {acc[0]}, {acc[0]}, {acc[2]}
v_mov_b32 {te}, {acc[0]}
v_permlane16_swap_b32 {acc[0]}, {te}
v_add_f32 {acc[0]}, {acc[0]}, {te}
v_mov_b32 {te}, {acc[0]}
v_permlane32_swap_b32 {acc[0]}, {te}
v_add_f32 {acc[0]}, {acc[0]}, {te}
v_cvt_pk_bf16_f32 {acc[0]}, {acc[0]}, {acc[0]}
v_and_b32 {acc[0]}, 0xffff0000, {acc[0]}
v_add_f32 {acc[0]}, {t2}, {acc[0]}
v_cvt_pk_bf16_f32 {acc[0]}, {acc[0]}, {acc[0]}
v_and_b32 {acc[0]}, 0xffff0000, {acc[0]}
v_cmp_gt_u32 vcc, 16, v0
s_and_saveexec_b64 {sv}, vcc
buffer_store_dword {acc[0]}, {vo}, {Ro}, 0 offen
s_mov_b64 exec, {sv}
""")
    k.stamp_flush(1)
    k("s_endpgm")
    k.reset_regs(keep=[pwd,pws,e,w,t0,t1,lane,tv])
    k(f"{RELAY}:")
    Rw,Ro=s(4),s(4); vd,vd2,row,u1=v(),v(),v(),v(); sw,sm0,sd=s(),s(),s()
    k(f"""
v_lshrrev_b32 {row}, 3, {lane}
v_bfe_u32 {tv}, {lane}, 4, 1
v_lshlrev_b32 {tv}, 2, {tv}
v_and_b32 {vd}, 7, {lane}
v_xor_b32 {vd}, {vd}, {tv}
v_lshlrev_b32 {vd}, 4, {vd}
v_lshl_add_u32 {vd}, {row}, 10, {vd}
v_add_u32 {vd2}, {8192-1024}, {vd}
s_sub_u32 {e}, {e}, {NX_G}                     ; F
s_lshl_b32 {sw}, {e}, 14
s_lshl_b32 {t0}, {w}, 8
s_add_u32 {sw}, {sw}, {t0}                     ; F*16384 + 2w*128
s_lshl_b32 {sm0}, {w}, 12
s_mul_i32 {sd}, {w}, {2*112*2048}
s_lshl_b32 {t0}, {e}, 11
s_add_u32 {sd}, {sd}, {t0}                     ; (2w)*229376 + F*2048
s_waitcnt lgkmcnt(0)
""")
    srd(k,Rw,pwd,1792*1024); srd(k,Ro,pws,1792*1024,WS_WDF)
    for b in range(2):
        k(f"s_add_u32 m0, {sm0}, {b*2048}")
        k(f"s_nop 0")
        k(f"buffer_load_dwordx4 {vd}, {Rw}, {sw} offen lds")
        k(f"buffer_load_dwordx4 {vd2}, {Rw}, {sw} offen offset:1024 lds")
        if b==0: k(f"s_add_u32 {sw}, {sw}, 128")
    vA=[v(),v()]; c_,r_,G_=v(),v(),v()
    k(f"""
v_and_b32 {c_}, 3, {lane}
v_bfe_u32 {r_}, {lane}, 2, 2
v_lshrrev_b32 {G_}, 4, {lane}
v_lshrrev_b32 {tv}, 1, {G_}
v_lshl_add_u32 {tv}, {tv}, 3, {r_}              ; 8h'+r'
v_lshlrev_b32 {vA[0]}, 7, {tv}
v_and_b32 {tv}, 1, {G_}
v_lshlrev_b32 {tv}, 1, {tv}
v_lshrrev_b32 {u1}, 1, {c_}
v_add_u32 {tv}, {tv}, {u1}                       ; 2(G&1) + (c>>1)
v_lshrrev_b32 {u1}, 1, {r_}
v_lshlrev_b32 {u1}, 2, {u1}
v_xor_b32 {tv}, {tv}, {u1}
v_lshl_add_u32 {vA[0]}, {tv}, 4, {vA[0]}
v_and_b32 {tv}, 1, {c_}
v_lshl_add_u32 {vA[0]}, {tv}, 3, {vA[0]}
v_add_u32 {vA[0]}, {sm0}, {vA[0]}
v_xor_b32 {vA[1]}, 64, {vA[0]}
v_lshlrev_b32 {u1}, 4, {lane}
""")
    fr=[v(4,align=4),v(4,align=4)]
    for b in range(2):
        k(f"s_waitcnt vmcnt({2 if b==0 else 2})")
        for nu in range(2):
            for e2 in range(2):
                k(f"ds_read_b64_tr_b16 {fr[nu][2*e2:2*e2+2]}, {vA[nu]} offset:{b*2048+e2*512}")
        k("s_waitcnt lgkmcnt(0)")
        k(f"buffer_store_dwordx4 {fr[0]}, {u1}, {Ro}, {sd} offen")
        k(f"buffer_store_dwordx4 {fr[1]}, {u1}, {Ro}, {sd} offen offset:1024")
        if b==0: k(f"s_add_u32 {sd}, {sd}, {112*2048}")
    k.stamp_flush(1)
    k("s_endpgm")
    k.reset_regs(keep=[pwd,pws,e,w,t0,t1,lane,tv])
    k(f"{ZERO}:")
    Rf=s(4); z=v(); ad=v()
    k(f"v_lshlrev_b32 {ad}, 7, v0")
    k(f"v_mov_b32 {z}, 0")
    k(f"s_mov_b32 {t0}, 0x8000")
    k("s_waitcnt lgkmcnt(0)")
    srd(k,Rf,pws,0x10000,WS_FLG)
    k(f"buffer_store_dword {z}, {ad}, {Rf}, 0 offen")
    k(f"buffer_store_dword {z}, {ad}, {Rf}, {t0} offen")
    k("s_endpgm")

def build_k2(name='k2_kernel'):
    k=Kernel(name,257+NX_G+NX_R+1,256,lds=16384)
    v,s=k.v,k.s
    END=k.label('END')
    pws=s(2); w,t0,t1,so1,so2=s(),s(),s(),s(),s()
    lane,vi,vg,tv=v(),v(),v(),v()
    EXTRA=k.label('EXTRA')
    k.stamp_init()
    k(f"""
s_cmp_ge_u32 s2, 257
s_cbranch_scc1 {EXTRA}""")
    k(f"""
s_load_dwordx2 {pws}, s[0:1], {ARG['ws']}
v_lshrrev_b32 {tv}, 6, v0
v_and_b32 {lane}, 63, v0
v_readfirstlane_b32 {w}, {tv}
v_and_b32 {vi}, 15, v0
v_bfe_u32 {vg}, v0, 4, 2
s_lshl_b32 {so1}, s2, 13
s_lshl_b32 {t0}, {w}, 11
s_add_u32 {so2}, {so1}, {t0}
""")
    vo,vo2=v(),v()
    k(f"v_lshlrev_b32 {vo}, 4, {lane}")
    k(f"v_add_u32 {vo2}, 4096, {vo}")
    Rx1,Rwt,Ry=s(4),s(4),s(4)
    k("s_waitcnt lgkmcnt(0)")
    k.stamp(1)
    srd(k,Rx1,pws,COLB,WS_X1); srd(k,Rwt,pws,COLB,WS_WT); srd(k,Ry,pws,COLB,WS_Y)
    X=[[v(4,align=4) for kap in range(4)] for t in range(2)]
    W=[v(4,align=4),v(4,align=4)]
    for t in range(2):
        for kap in range(4):
            k(f"buffer_load_dwordx4 {X[t][kap]}, {vo if t==0 else vo2}, {Rx1}, {so1} offen offset:{kap*1024}")
    for t2 in range(2):
        k(f"buffer_load_dwordx4 {W[t2]}, {vo}, {Rwt}, {so2} offen offset:{t2*1024}")
    k.stamp(2)
    fi,fg4,k1f,f,f13,arg,c0,s0=v(),v(),v(),v(),v(),v(),v(),v()
    mi=v()
    k(f"""
v_cvt_f32_u32 {fi}, {vi}
v_cvt_f32_u32 {fg4}, {vg}
v_mul_f32 {fg4}, 4.0, {fg4}              ; 4g
s_lshl_b32 {t0}, {w}, 4
v_add_u32 {tv}, {t0}, {vi}
v_cvt_f32_u32 {k1f}, {tv}                ; 16w+i
v_and_b32 {tv}, 1, {vi}
v_mul_u32_u24 {mi}, 0x8000, {tv}
v_lshl_or_b32 {mi}, {mi}, 16, {mi}        ; (i&1) ? 0x80008000 : 0
""")
    BR=[v(4,align=4) for _ in range(4)]; BI=[v(4,align=4) for _ in range(4)]
    k(f"v_mul_f32 {f}, 0x3c800000, {k1f}")
    k(f"v_mul_f32 {f13}, 0x41500000, {f}")
    k(f"v_mul_f32 {arg}, {fg4}, {f}")
    c1,s1=v(),v()
    for kap in range(2):
        for e in range(4):
            cc,ss=(c0,s0) if e&1==0 else (c1,s1)
            k(f"v_cos_f32 {cc}, {arg}")
            k(f"v_sin_f32 {ss}, {arg}")
            if not(kap==1 and e==3): k(f"v_add_f32 {arg}, {arg}, {f if e<3 else f13}")
            k(f"v_cvt_pk_bf16_f32 {BR[kap][e]}, {cc}, {ss}")
            k(f"v_cvt_pk_bf16_f32 {BI[kap][e]}, -{ss}, {cc}")
    for kap in range(2,4):
        for e in range(4):
            k(f"v_xor_b32 {BR[kap][e]}, {mi}, {BR[kap-2][e]}")
            k(f"v_xor_b32 {BI[kap][e]}, {mi}, {BI[kap-2][e]}")
    T1C=v(8,align=4); T1S=v(8,align=4)
    k(f"v_mul_f32 {f}, 0x3a000000, {k1f}")
    k(f"v_mul_f32 {f13}, 0x41500000, {f}")
    k(f"v_mul_f32 {arg}, {fg4}, {f}")
    for t in range(2):
        for r in range(4):
            k(f"v_cos_f32 {T1C[4*t+r]}, {arg}")
            k(f"v_sin_f32 {T1S[4*t+r]}, {arg}")
            if not(t==1 and r==3): k(f"v_add_f32 {arg}, {arg}, {f if r<3 else f13}")
    CS=[[v(6,align=2) for b in range(2)] for a in range(2)]
    cc4=v(4,align=2); ss4=v(4,align=2)
    k(f"v_mul_f32 {f}, 0x3d000000, {fi}")
    k(f"v_mul_f32 {arg}, {fg4}, {f}")
    for j in range(4):
        k(f"v_cos_f32 {cc4[j]}, {arg}")
        k(f"v_sin_f32 {ss4[j]}, {arg}")
        if j<3: k(f"v_add_f32 {arg}, {arg}, {f}")
    c00=CS[0][0]
    k(f"v_cvt_pk_bf16_f32 {c00[0]}, -{ss4[0]}, -{ss4[1]}")
    k(f"v_cvt_pk_bf16_f32 {c00[1]}, -{ss4[2]}, -{ss4[3]}")
    k(f"v_cvt_pk_bf16_f32 {c00[2]}, {cc4[0]}, {cc4[1]}")
    k(f"v_cvt_pk_bf16_f32 {c00[3]}, {cc4[2]}, {cc4[3]}")
    k(f"v_cvt_pk_bf16_f32 {c00[4]}, {ss4[0]}, {ss4[1]}")
    k(f"v_cvt_pk_bf16_f32 {c00[5]}, {ss4[2]}, {ss4[3]}")
    for j in range(6): k(f"v_xor_b32 {CS[0][1][j]}, {mi}, {c00[j]}")
    for j in range(6): k(f"v_xor_b32 {CS[1][0][j]}, 0x80000000, {c00[j]}")
    for j in range(6): k(f"v_xor_b32 {CS[1][1][j]}, 0x80000000, {CS[0][1][j]}")
    T2C=v(8,align=4); T2S=v(8,align=4); scl=s(); kb=v()
    k(f"""
s_and_b32 {t0}, s2, 0xff
s_cmp_eq_u32 {t0}, 0
s_mov_b32 {scl}, 0x36000000
s_cselect_b32 {scl}, 0x35800000, {scl}
s_lshl_b32 {t0}, {w}, 4
v_cvt_f32_u32 {kb}, {t0}
v_add_f32 {kb}, {kb}, {fg4}              ; 16w+4g
""")
    for t in range(2):
        if t==0: k(f"v_mul_f32 {f}, 0x3a000000, {fi}")
        else: k(f"v_add_f32 {f}, 0x3c000000, {f}")
        k(f"v_mul_f32 {arg}, {kb}, {f}")
        for r in range(4):
            k(f"v_cos_f32 {T2C[4*t+r]}, {arg}")
            k(f"v_sin_f32 {T2S[4*t+r]}, {arg}")
            if r<3: k(f"v_add_f32 {arg}, {arg}, {f}")
    for j in range(8):
        k(f"v_mul_f32 {T2C[j]}, {scl}, {T2C[j]}")
        k(f"v_mul_f32 {T2S[j]}, {scl}, {T2S[j]}")
    vlw=v()
    k(f"s_lshl_b32 {t0}, {w}, 10")
    k(f"v_add_u32 {vlw}, {t0}, {vo}")
    so3=s()
    k(f"s_add_u32 {so3}, {so1}, {t0}")
    Ar=[v(4,align=4),v(4,align=4)]; Ai=[v(4,align=4),v(4,align=4)]
    def cmul_tw(dst_r,dst_i,xr,xi,tc,ts):
        out=[]
        for r in range(4):
            out.append(f"v_mul_f32 {dst_r[r]}, {xr[r]}, {tc[r]}")
            out.append(f"v_mul_f32 {dst_i[r]}, {xi[r]}, {tc[r]}")
        for r in range(4):
            out.append(f"v_fmac_f32 {dst_r[r]}, {xi[r]}, {ts[r]}")
            out.append(f"v_fma_f32 {dst_i[r]}, -{xr[r]}, {ts[r]}, {dst_i[r]}")
        return out
    Ur=v(4,align=4); Ui=v(4,align=4)
    B2=[v(4,align=4),v(4,align=4)]
    def pack_split(dst,ur,ui):
        return [f"v_cvt_pk_bf16_f32 {dst[0]}, {ur[0]}, {ur[1]}",f"v_cvt_pk_bf16_f32 {dst[1]}, {ur[2]}, {ur[3]}",
                f"v_cvt_pk_bf16_f32 {dst[2]}, {ui[0]}, {ui[1]}",f"v_cvt_pk_bf16_f32 {dst[3]}, {ui[2]}, {ui[3]}"]
    k.stamp(3)
    for kap in range(4):
        k(f"s_waitcnt vmcnt({9-kap})")
        if kap==0: k.stamp(4)
        k(f"{MF} {Ar[0]}, {X[0][kap]}, {BR[kap]}, {0 if kap==0 else Ar[0]}")
        k(f"{MF} {Ai[0]}, {X[0][kap]}, {BI[kap]}, {0 if kap==0 else Ai[0]}")
    k("s_waitcnt vmcnt(2)")
    mf=[]
    for kap in range(4):
        mf.append(f"{MF} {Ar[1]}, {X[1][kap]}, {BR[kap]}, {0 if kap==0 else Ar[1]}")
        mf.append(f"{MF} {Ai[1]}, {X[1][kap]}, {BI[kap]}, {0 if kap==0 else Ai[1]}")
    va=cmul_tw(Ur,Ui,Ar[0],Ai[0],T1C[0:4],T1S[0:4])+pack_split(B2[0],Ur,Ui)
    k(mf[0]); k(mf[1]); k(mf[2])
    interleave(k,mf[3:],va,ratio=3)
    Fr=[v(4,align=4),v(4,align=4)]; Fi=[v(4,align=4),v(4,align=4)]
    mf=[]
    for t2 in range(2):
        mf.append(f"{MF} {Fr[t2]}, {CS[t2][0][2:6]}, {B2[0]}, 0")
        mf.append(f"{MF} {Fi[t2]}, {CS[t2][0][0:4]}, {B2[0]}, 0")
    va=cmul_tw(Ur,Ui,Ar[1],Ai[1],T1C[4:8],T1S[4:8])+pack_split(B2[1],Ur,Ui)
    for m in mf[:2]: k(m)
    interleave(k,mf[2:],va,ratio=4)
    for t2 in range(2):
        k(f"{MF} {Fr[t2]}, {CS[t2][1][2:6]}, {B2[1]}, {Fr[t2]}")
        k(f"{MF} {Fi[t2]}, {CS[t2][1][0:4]}, {B2[1]}, {Fi[t2]}")
    k.stamp(5)
    k("s_waitcnt vmcnt(0)")
    wr4=v(4,align=4); wi4=v(4,align=4)
    A3=[v(4,align=4),v(4,align=4)]
    unp=[]
    Wr=[wr4,T1C[0:4]]; Wi=[wi4,T1S[0:4]]
    for t2 in range(2):
        for r in range(4):
            k(f"v_lshlrev_b32 {Wr[t2][r]}, 16, {W[t2][r]}")
            k(f"v_and_b32 {Wi[t2][r]}, 0xffff0000, {W[t2][r]}")
    def filt(t2):
        out=[]
        for r in range(4):
            out.append(f"v_mul_f32 {Ur[r]}, {Fr[t2][r]}, {Wr[t2][r]}")
            out.append(f"v_mul_f32_e64 {Ui[r]}, -{Fr[t2][r]}, {Wi[t2][r]}")
        for r in range(4):
            out.append(f"v_fma_f32 {Ur[r]}, -{Fi[t2][r]}, {Wi[t2][r]}, {Ur[r]}")
            out.append(f"v_fma_f32 {Ui[r]}, -{Fi[t2][r]}, {Wr[t2][r]}, {Ui[r]}")
        return out+pack_split(A3[t2],Ur,Ui)
    for x in filt(0): k(x)
    Vr=Ar; Vi=Ai
    mf=[]
    for t in range(2):
        mf.append(f"{MF} {Vr[t]}, {A3[0]}, {CS[t][0][2:6]}, 0")
        mf.append(f"{MF} {Vi[t]}, {A3[0]}, {CS[t][0][0:4]}, 0")
    interleave(k,mf,filt(1),ratio=4)
    for t in range(2):
        k(f"{MF} {Vr[t]}, {A3[1]}, {CS[t][1][2:6]}, {Vr[t]}")
        k(f"{MF} {Vi[t]}, {A3[1]}, {CS[t][1][0:4]}, {Vi[t]}")
    G=[B2[0],B2[1]]
    for t in range(2):
        for x in cmul_tw(Ur,Ui,Vr[t],Vi[t],T2C[4*t:4*t+4],T2S[4*t:4*t+4]): k(x)
        for r in range(4): k(f"v_cvt_pk_bf16_f32 {G[t][r]}, {Ur[r]}, {Ui[r]}")
        k(f"ds_write_b128 {vlw}, {G[t]} offset:{t*4096}")
    k.stamp(6)
    k("s_waitcnt lgkmcnt(0)")
    k("s_barrier")
    k.stamp(7)
    for t in range(2):
        for kap in range(4):
            k(f"ds_read_b128 {X[t][kap]}, {vo} offset:{(t*4+kap)*1024}")
    Yr=Fr; Yi=Fi
    for t in range(2):
        for kap in range(4):
            k(f"s_waitcnt lgkmcnt({7-(t*4+kap)})")
            k(f"{MF} {Yr[t]}, {BR[kap]}, {X[t][kap]}, {0 if kap==0 else Yr[t]}")
            k(f"{MF} {Yi[t]}, {BI[kap]}, {X[t][kap]}, {0 if kap==0 else Yi[t]}")
    for t in range(2):
        for r in range(4): k(f"v_cvt_pk_bf16_f32 {G[t][r]}, {Yr[t][r]}, -{Yi[t][r]}")
        k(f"buffer_store_dwordx4 {G[t]}, {vo if t==0 else vo2}, {Ry}, {so3} offen")
    k.stamp_flush(2)
    k(f"{END}:\ns_endpgm")
    k.reset_regs()
    k(f"{EXTRA}:")
    k2_extras(k,END)
    code,desc=k.finish()
    return (k,code,desc)
if __name__=='__main__':
    from k0 import build_k0
    from k1 import build_k1
    build_file([build_k0(),build_k1(),build_k2(NAME)],'t_k2.s')
```

```python
from common import *
import os
MF16x32="v_mfma_f32_16x16x32_bf16"; MF16="v_mfma_f32_16x16x16_bf16"; MF="v_mfma_f32_32x32x16_bf16"
MAT=14464; CHUNK=2*MAT; NB=5
SCR=4*CHUNK
L_Y=SCR; L_H=SCR+8320; L_X=L_H+8704
L_MOD=NB*CHUNK
LDS=L_MOD+8192
SPIN=0x20000
E_=lambda n,d: int(os.environ.get(n,d))
TUP=E_('TUP',16); TPS=E_('TPS',1); V0=E_('V0',2); V1=E_('V1',30)
class VM:
    def __init__(s,k): s.k=k; s.ops=[]
    def op(s,text,tag=None):
        s.k(text); s.ops.append(tag); assert len(s.ops)<=63,len(s.ops)
    def wait(s,*tags,force=False):
        idx=[i for i,t in enumerate(s.ops) if t in tags]
        if not idx: return
        n=len(s.ops)-1-max(idx)
        s.k(f"s_waitcnt vmcnt({n})"); s.ops=s.ops[len(s.ops)-n:]
    def drain(s): s.k("s_waitcnt vmcnt(0)"); s.ops=[]

def build_k345(name=NAME, N1=int(os.environ.get('N1','8')), D5=24, kidx=3):
    k=Kernel(name,256,256,lds=LDS)
    v,s,a=k.v,k.s,k.a
    vm=VM(k)
    ST=os.environ.get('ST','a')
    def stamp(set_,i):
        if set_ in ST: k.stamp(i)
    END=k.label('END')
    px=s(2); pgu=s(4); pout=s(2); pws=s(2)
    w,t0,t1,tb,fb,beta,row=s(),s(),s(),s(),s(),s(),s()
    lane,tv,vtok,zero,vfl,one,vf=v(),v(),v(),v(),v(),v(),v()
    vd=[v() for _ in range(7)]; vA=[v() for _ in range(NB)]
    resv=v.at(v.hi,24-v.hi)
    vi,vg=v(),v()
    k(f"""
s_cmp_ge_u32 s2, 256
s_cbranch_scc1 {END}""")
    k.stamp_init()
    k(f"""
s_load_dwordx2 {pws}, s[0:1], {ARG['ws']}
s_load_dwordx2 {px}, s[0:1], {ARG['x']}
s_load_dwordx4 {pgu}, s[0:1], {ARG['wg']}
s_load_dwordx2 {pout}, s[0:1], {ARG['out']}
v_lshrrev_b32 {tv}, 6, v0
v_and_b32 {lane}, 63, v0
v_readfirstlane_b32 {w}, {tv}
v_and_b32 {vi}, 15, v0
v_bfe_u32 {vg}, v0, 4, 2
v_lshlrev_b32 {vtok}, 4, {lane}
s_and_b32 {t0}, s2, 7            ; x
s_lshr_b32 {t1}, s2, 3           ; slot
s_and_b32 {tb}, {t0}, 1
s_lshl_b32 {tb}, {tb}, 3
s_lshr_b32 {fb}, {t0}, 1
s_lshl_b32 {fb}, {fb}, 2
s_and_b32 {t0}, {t1}, 7
s_add_u32 {tb}, {tb}, {t0}
s_lshr_b32 {t0}, {t1}, 3
s_add_u32 {fb}, {fb}, {t0}
s_lshl_b32 {beta}, {tb}, 4
s_add_u32 {beta}, {beta}, {fb}
""")
    row_of_pos(k,row,beta,w,t0,t1)
    k(f"s_lshl_b32 {row}, {row}, 10")
    vy,vxo=v(),v()
    sy0,sy1,sny,smod=s(),s(),s(),s()
    k(f"""
v_and_b32 {tv}, 1, v0
v_lshrrev_b32 {vy}, 1, v0
v_lshlrev_b32 {vy}, 13, {vy}
v_lshl_add_u32 {vy}, {tv}, 4, {vy}       ; k*8192 + half*16
s_lshl_b32 {sy0}, {beta}, 5
s_add_u32 {sy0}, {sy0}, {WS_Y:#x}
s_add_u32 {sy1}, {sy0}, {128*8192:#x}
s_lshl_b32 {sny}, {beta}, 3
s_add_u32 {sny}, {sny}, {w}
s_lshl_b32 {sny}, {sny}, 2
s_add_u32 {sny}, {sny}, {WS_Y+256*8192:#x}
v_lshlrev_b32 {vxo}, 5, {vi}
v_lshl_add_u32 {vxo}, {vg}, 3, {vxo}
s_lshl_b32 {smod}, {w}, 11
s_add_u32 {t1}, {smod}, {L_MOD}
s_add_u32 {smod}, {smod}, {WS_MOD2:#x}
""")
    Rws,Rx,Rw=s(4),s(4),s(4)
    k(f"v_mov_b32 {zero}, 0")
    k(f"s_mov_b32 m0, {t1}")
    k("s_waitcnt lgkmcnt(0)")
    stamp('a',1)
    srd(k,Rws,pws,0x1400000); srd(k,Rx,px,2048*1024)
    yv=[v(4,align=4),v(4,align=4)]; ny=v(2); xr=[[v(2),v(2)] for j in range(2)]
    vm.op(f"buffer_load_dwordx4 {yv[0]}, {vy}, {Rws}, {sy0} offen",'y')
    vm.op(f"buffer_load_dwordx4 {yv[1]}, {vy}, {Rws}, {sy1} offen",'y')
    vm.op(f"buffer_load_dwordx4 {vtok}, {Rws}, {smod} offen lds",'mod')
    vm.op(f"buffer_load_dwordx4 {vtok}, {Rws}, {smod} offen offset:1024 lds",'mod')
    for j in range(2): vm.op(f"buffer_load_short_d16_hi {ny[j]}, {zero}, {Rws}, {sny} offen offset:{16*j}",'ny')
    for j in range(2):
        for t in range(2): vm.op(f"buffer_load_dwordx2 {xr[j][t]}, {vxo}, {Rx}, {row} offen offset:{512*t+1024*j}",'x')
    s.free(sy0,sy1,sny,smod,row); s.free(px)
    mat,dh,sm0,schunk=s(),s(),s(),s()
    k(f"""
s_and_b32 {mat}, {w}, 1
s_lshr_b32 {dh}, {w}, 1
s_mul_i32 {t0}, {dh}, {32*3584}
s_mul_i32 {t1}, {fb}, 224
s_add_u32 {t0}, {t0}, {t1}
s_mul_i32 {sm0}, {mat}, {MAT}
s_mul_i32 {t1}, {dh}, 7168
s_add_u32 {sm0}, {sm0}, {t1}
s_cmp_eq_u32 {mat}, 0
s_cselect_b32 {Rw[0]}, {pgu[0]}, {pgu[2]}
s_cselect_b32 {Rw[1]}, {pgu[1]}, {pgu[3]}
s_mov_b32 {Rw[2]}, {512*3584}
s_mov_b32 {Rw[3]}, 0x00020000
s_mov_b32 {schunk}, 0
""")
    s.free(mat,dh,pgu)
    p,rw=v(),v()
    cdiv=s(); k(f"s_mov_b32 {cdiv}, 4682")
    for n in range(7):
        k(f"v_add_u32 {p}, {64*n}, {lane}")
        k(f"v_mul_u32_u24 {rw}, {cdiv}, {p}")
        k(f"v_lshrrev_b32 {rw}, 16, {rw}")
        k(f"v_mul_u32_u24 {tv}, 14, {rw}")
        k(f"v_sub_u32 {p}, {p}, {tv}")
        k(f"v_mul_u32_u24 {rw}, 3584, {rw}")
        k(f"v_lshl_add_u32 {vd[n]}, {p}, 4, {rw}")
        k(f"v_add_u32 {vd[n]}, {t0}, {vd[n]}")
        if n&3: k(f"v_subrev_u32 {vd[n]}, {(n&3)*1024}, {vd[n]}")
    v.free(p,rw); s.free(cdiv)
    def wgroup(c):
        out=[]; slot=c%NB
        for n in range(7):
            pre=""
            if n==0: pre=f"s_add_u32 m0, {sm0}, {slot*CHUNK}\ns_nop 0\n"
            if n==4: pre=f"s_add_u32 m0, {sm0}, {slot*CHUNK+4096}\ns_nop 0\n"
            post=f"\ns_add_u32 {schunk}, {schunk}, {64*3584}" if n==6 else ""
            out.append((pre+f"buffer_load_dwordx4 {vd[n]}, {Rw}, {schunk} offen offset:{(n&3)*1024} lds"+post, f"W{c}"))
        return out
    for c in range(4):
        for x,tg in wgroup(c): vm.op(x,tg)
    stamp('a',2)
    keepC=[]
    def cv(n=1,align=None):
        r=v(n,align); keepC.append(r); return r
    fi,fg,f,arg,c0,s0,c1,s1,mi=cv(),cv(),cv(),cv(),cv(),cv(),cv(),cv(),cv()
    k(f"""
v_cvt_f32_u32 {fi}, {vi}
v_cvt_f32_u32 {fg}, {vg}
v_and_b32 {tv}, 1, {vi}
v_mul_u32_u24 {mi}, 0x8000, {tv}
v_lshl_or_b32 {mi}, {mi}, 16, {mi}
""")
    BAr=cv(2); BAi=cv(2)
    k(f"v_mul_f32 {f}, 0x3d800000, {fi}")
    k(f"v_add_f32 {arg}, {fg}, {fg}")
    k(f"v_mul_f32 {arg}, {arg}, {f}")
    for b in range(2):
        k(f"v_cos_f32 {c0}, {arg}")
        k(f"v_sin_f32 {s0}, {arg}")
        if b==0: k(f"v_add_f32 {arg}, {arg}, {f}")
        k(f"v_cvt_pk_bf16_f32 {BAr[b]}, {c0}, -{s0}")
        k(f"v_cvt_pk_bf16_f32 {BAi[b]}, {s0}, {c0}")
    TC=cv(8,align=4); TS=cv(8,align=4); f13,g4=cv(),cv()
    k(f"v_mul_f32 {g4}, 4.0, {fg}")
    k(f"v_mul_f32 {f}, 0x3b000000, {fi}")
    k(f"v_mul_f32 {f13}, 0x41500000, {f}")
    k(f"v_mul_f32 {arg}, {g4}, {f}")
    for u in range(2):
        for r in range(4):
            k(f"v_cos_f32 {TC[4*u+r]}, {arg}")
            k(f"v_sin_f32 {TS[4*u+r]}, {arg}")
            if not(u==1 and r==3): k(f"v_add_f32 {arg}, {arg}, {f if r<3 else f13}")
    BB=[[cv(4,align=4) for u in range(2)] for t in range(2)]
    cc4=cv(4,align=2); ss4=cv(4,align=2)
    k(f"v_mul_f32 {f}, 0x3d000000, {fi}")
    k(f"v_mul_f32 {arg}, {g4}, {f}")
    for j in range(4):
        k(f"v_cos_f32 {cc4[j]}, {arg}")
        k(f"v_sin_f32 {ss4[j]}, {arg}")
        if j<3: k(f"v_add_f32 {arg}, {arg}, {f}")
    b00=BB[0][0]
    k(f"v_cvt_pk_bf16_f32 {b00[0]}, {cc4[0]}, {cc4[1]}")
    k(f"v_cvt_pk_bf16_f32 {b00[1]}, {cc4[2]}, {cc4[3]}")
    k(f"v_cvt_pk_bf16_f32 {b00[2]}, -{ss4[0]}, -{ss4[1]}")
    k(f"v_cvt_pk_bf16_f32 {b00[3]}, -{ss4[2]}, -{ss4[3]}")
    for j in range(4): k(f"v_xor_b32 {BB[0][1][j]}, {mi}, {b00[j]}")
    for j in range(4): k(f"v_xor_b32 {BB[1][0][j]}, 0x80000000, {b00[j]}")
    for j in range(4): k(f"v_xor_b32 {BB[1][1][j]}, 0x80000000, {BB[0][1][j]}")
    cny=cv()
    k(f"""
v_lshlrev_b32 {tv}, 31, {vi}
v_or_b32 {tv}, 1.0, {tv}
v_cmp_eq_u32 vcc, 0, {vg}
v_cndmask_b32 {cny}, 0, {tv}, vcc
""")
    vlw,vlr,vl2w,vl2r,vst,vxs=cv(),cv(),cv(),cv(),cv(),cv()
    sh2,sx1=s(),s()
    k(f"""
v_and_b32 {tv}, 1, v0
v_mul_u32_u24 {vlw}, 4160, {tv}
v_lshrrev_b32 {tv}, 1, v0
v_lshl_add_u32 {vlw}, {tv}, 2, {vlw}
v_add_u32 {vlw}, {L_Y}, {vlw}              ; half*4160 + k*4
s_mul_i32 {t0}, {w}, 1040
s_add_u32 {t0}, {t0}, {L_Y}
v_lshlrev_b32 {vlr}, 8, {vg}
v_lshl_add_u32 {vlr}, {vi}, 2, {vlr}
v_add_u32 {vlr}, {t0}, {vlr}               ; w*1040 + (i+64g)*4
s_lshl_b32 {t0}, {w}, 4
s_add_u32 {t0}, {t0}, {L_H}
v_mul_u32_u24 {vl2w}, 272, {vi}
v_lshrrev_b32 {tv}, 1, {vg}
v_lshl_add_u32 {vl2w}, {tv}, 7, {vl2w}
v_and_b32 {tv}, 1, {vg}
v_lshl_add_u32 {vl2w}, {tv}, 3, {vl2w}
v_add_u32 {vl2w}, {t0}, {vl2w}             ; i*272 + (g>>1)*128 + w*16 + (g&1)*8   (+ t*16*272 + j*64)
v_lshrrev_b32 {tv}, 4, v0                  ; p>>1
v_mul_u32_u24 {vl2r}, 272, {tv}
v_and_b32 {tv}, 15, v0                     ; (p&1)*8 + row
v_lshl_add_u32 {vl2r}, {tv}, 4, {vl2r}
v_add_u32 {vl2r}, {L_H}, {vl2r}
v_lshrrev_b32 {tv}, 3, v0                  ; p
v_lshlrev_b32 {vst}, 9, {tv}
v_and_b32 {tv}, 7, v0
v_lshl_add_u32 {vst}, {tv}, 4, {vst}       ; p*512 + row*16
s_lshr_b32 {sh2}, {beta}, 2
s_lshl_b32 {sh2}, {sh2}, 15
s_and_b32 {t1}, {beta}, 3
s_lshl_b32 {t1}, {t1}, 7
s_add_u32 {sh2}, {sh2}, {t1}
s_add_u32 {sh2}, {sh2}, {WS_H2F:#x}
s_lshl_b32 {sx1}, {beta}, 3
s_add_u32 {sx1}, {sx1}, {w}
s_lshl_b32 {sx1}, {sx1}, 10
s_add_u32 {sx1}, {sx1}, {WS_X1R:#x}
s_lshl_b32 {t0}, {w}, 11
s_add_u32 {t0}, {t0}, {L_X}
v_add_u32 {vxs}, {t0}, {vxo}
""")
    vxsr=cv(); k(f"v_add_u32 {vxsr}, {t0}, {vtok}")
    vmr=cv(); k(f"v_add_u32 {vmr}, {L_MOD}, {vtok}")
    stamp('a',3)
    vm.wait('y')
    stamp('a',4)
    for jj in range(2):
        for e in range(4): k(f"ds_write_b32 {vlw}, {yv[jj][e]} offset:{1040*e+512*jj}")
    vm.wait('mod')
    k("s_waitcnt lgkmcnt(0)")
    k("s_barrier")
    Ad=[[[cv() for b in range(2)] for u in range(2)] for j in range(2)]
    Ad=[[cv(2) for u in range(2)] for j in range(2)]
    for j in range(2):
        for u in range(2):
            for b in range(2):
                k(f"ds_read_b32 {Ad[j][u][b]}, {vlr} offset:{4160*j+64*u+128*b}")
    ga=[cv(4,align=4),cv(4,align=4)]; sb=[cv(4,align=4),cv(4,align=4)]; cb=[cv(4,align=4),cv(4,align=4)]
    for t in range(2): k(f"ds_read_b128 {ga[t]}, {vmr} offset:{1024*t}")
    Dr=[[cv(4,align=4),cv(4,align=4)] for j in range(2)]; Di=[[cv(4,align=4),cv(4,align=4)] for j in range(2)]
    nrd=10
    for j in range(2):
        for u in range(2):
            k(f"s_waitcnt lgkmcnt({nrd-2*(2*j+u+1)})")
            k(f"{MF16} {Dr[j][u]}, {Ad[j][u]}, {BAr}, 0")
            k(f"{MF16} {Di[j][u]}, {Ad[j][u]}, {BAi}, 0")
    for t in range(2): k(f"ds_read_b128 {sb[t]}, {vmr} offset:{2048+1024*t}")
    for t in range(2): k(f"ds_read_b128 {cb[t]}, {vmr} offset:{4096+1024*t}")
    vm.wait('ny')
    Ur=[cv(4,align=4),cv(4,align=4)]; Ui=[cv(4,align=4),cv(4,align=4)]
    AB=[[cv(4,align=4),cv(4,align=4)] for j in range(2)]
    Yo=[[cv(4,align=4),cv(4,align=4)] for j in range(2)]
    for j in range(2): k(f"v_fmac_f32 {Dr[j][0][0]}, {cny}, {ny[j]}")
    for u in range(2):
        for j in range(2):
            for r in range(4):
                k(f"v_mul_f32 {Ur[j][r]}, {Dr[j][u][r]}, {TC[4*u+r]}")
                k(f"v_mul_f32 {Ui[j][r]}, {Di[j][u][r]}, {TC[4*u+r]}")
            for r in range(4):
                k(f"v_fma_f32 {Ur[j][r]}, -{Di[j][u][r]}, {TS[4*u+r]}, {Ur[j][r]}")
                k(f"v_fmac_f32 {Ui[j][r]}, {Dr[j][u][r]}, {TS[4*u+r]}")
            k(f"v_cvt_pk_bf16_f32 {AB[j][u][0]}, {Ur[j][0]}, {Ur[j][1]}")
            k(f"v_cvt_pk_bf16_f32 {AB[j][u][1]}, {Ur[j][2]}, {Ur[j][3]}")
            k(f"v_cvt_pk_bf16_f32 {AB[j][u][2]}, {Ui[j][0]}, {Ui[j][1]}")
            k(f"v_cvt_pk_bf16_f32 {AB[j][u][3]}, {Ui[j][2]}, {Ui[j][3]}")
            for t in range(2):
                k(f"{MF16x32} {Yo[j][t]}, {AB[j][u]}, {BB[t][u]}, {0 if u==0 else Yo[j][t]}")
    stamp('a',5)
    vm.wait('x')
    x1=[cv(8,align=4),cv(8,align=4)]
    def unpack(j):
        for t in range(2):
            k(f"v_lshlrev_b32 {x1[j][4*t+0]}, 16, {xr[j][t][0]}")
            k(f"v_and_b32 {x1[j][4*t+1]}, 0xffff0000, {xr[j][t][0]}")
            k(f"v_lshlrev_b32 {x1[j][4*t+2]}, 16, {xr[j][t][1]}")
            k(f"v_and_b32 {x1[j][4*t+3]}, 0xffff0000, {xr[j][t][1]}")
    for j in range(2): unpack(j)
    k("s_waitcnt lgkmcnt(0)")
    for j in range(2):
        for t in range(2):
            for r in range(4): k(f"v_fmac_f32 {x1[j][4*t+r]}, {ga[t][r]}, {Yo[j][t][r]}")
        for t in range(2):
            k(f"v_cvt_pk_bf16_f32 {xr[j][t][0]}, {x1[j][4*t+0]}, {x1[j][4*t+1]}")
            k(f"v_cvt_pk_bf16_f32 {xr[j][t][1]}, {x1[j][4*t+2]}, {x1[j][4*t+3]}")
        for t in range(2): k(f"ds_write_b64 {vxs}, {xr[j][t]} offset:{1024*j+512*t}")
    for j in range(2): unpack(j)
    k("s_waitcnt lgkmcnt(0)")
    for j in range(2): k(f"ds_read_b128 {yv[j]}, {vxsr} offset:{1024*j}")
    sm=[cv(),cv()]; tt=[cv(),cv()]; ca=[c0,c1]; cb_=[s0,s1]
    def both(fn):
        for j in range(2): fn(j)
    for j in range(2):
        X=x1[j]
        k(f"v_add_f32 {sm[j]}, {X[0]}, {X[1]}")
        k(f"v_add_f32 {tt[j]}, {X[2]}, {X[3]}")
        k(f"v_add_f32 {ca[j]}, {X[4]}, {X[5]}")
        k(f"v_add_f32 {cb_[j]}, {X[6]}, {X[7]}")
    for j in range(2):
        k(f"v_add_f32 {sm[j]}, {sm[j]}, {tt[j]}")
        k(f"v_add_f32 {ca[j]}, {ca[j]}, {cb_[j]}")
    for j in range(2): k(f"v_add_f32 {sm[j]}, {sm[j]}, {ca[j]}")
    def allreduce2():
        for r in (8,4,2,1):
            for j in range(2): k(f"v_add_f32_dpp {sm[j]}, {sm[j]}, {sm[j]} row_ror:{r} row_mask:0xf bank_mask:0xf")
        for sw in ('16','32'):
            for j in range(2): k(f"v_mov_b32 {tt[j]}, {sm[j]}")
            for j in range(2): k(f"v_permlane{sw}_swap_b32 {sm[j]}, {tt[j]}")
            for j in range(2): k(f"v_add_f32 {sm[j]}, {sm[j]}, {tt[j]}")
    allreduce2()
    k("s_waitcnt lgkmcnt(0)")
    for j in range(2):
        pass
    vm.op(f"buffer_store_dwordx4 {yv[0]}, {vtok}, {Rws}, {sx1} offen sc1",'st')
    k(f"s_add_u32 {sx1}, {sx1}, 4096")
    vm.op(f"buffer_store_dwordx4 {yv[1]}, {vtok}, {Rws}, {sx1} offen sc1",'st')
    s.free(sx1)
    for j in range(2): k(f"v_mul_f32 {sm[j]}, 0xbb000000, {sm[j]}")
    for j in range(2):
        for q in range(8): k(f"v_add_f32 {x1[j][q]}, {x1[j][q]}, {sm[j]}")
    for j in range(2):
        k(f"v_mul_f32 {sm[j]}, {x1[j][0]}, {x1[j][0]}")
        k(f"v_mul_f32 {ca[j]}, {x1[j][1]}, {x1[j][1]}")
    for q in range(2,8,2):
        for j in range(2):
            k(f"v_fmac_f32 {sm[j]}, {x1[j][q]}, {x1[j][q]}")
            k(f"v_fmac_f32 {ca[j]}, {x1[j][q+1]}, {x1[j][q+1]}")
    for j in range(2): k(f"v_add_f32 {sm[j]}, {sm[j]}, {ca[j]}")
    allreduce2()
    for j in range(2):
        k(f"v_mov_b32 {tt[j]}, 0x3727c5ac")
        k(f"v_fmac_f32 {tt[j]}, 0x3b000000, {sm[j]}")
    for j in range(2): k(f"v_rsq_f32 {tt[j]}, {tt[j]}")
    for j in range(2):
        for q in range(8): k(f"v_mul_f32 {x1[j][q]}, {x1[j][q]}, {tt[j]}")
    for j in range(2):
        for t in range(2):
            for r in range(4): k(f"v_fma_f32 {x1[j][4*t+r]}, {x1[j][4*t+r]}, {cb[t][r]}, {sb[t][r]}")
        for t in range(2):
            k(f"v_cvt_pk_bf16_f32 {xr[j][t][0]}, {x1[j][4*t+0]}, {x1[j][4*t+1]}")
            k(f"v_cvt_pk_bf16_f32 {xr[j][t][1]}, {x1[j][4*t+2]}, {x1[j][4*t+3]}")
            k(f"ds_write_b64 {vl2w}, {xr[j][t]} offset:{t*16*272+64*j}")
    k("s_waitcnt lgkmcnt(0)")
    k("s_barrier")
    hv=[x1[0][0:4],x1[1][0:4]]
    for jj in range(2): k(f"ds_read_b128 {hv[jj]}, {vl2r} offset:{jj*16*272}")
    k("s_waitcnt lgkmcnt(1)")
    vm.op(f"buffer_store_dwordx4 {hv[0]}, {vst}, {Rws}, {sh2} offen sc1",'st')
    k(f"s_add_u32 {sh2}, {sh2}, {32*512}")
    k("s_waitcnt lgkmcnt(0)")
    vm.op(f"buffer_store_dwordx4 {hv[1]}, {vst}, {Rws}, {sh2} offen sc1",'st')
    s.free(sh2)
    stamp('a',6)
    sfl=s()
    k(f"s_lshl_b32 {sfl}, {beta}, 7")
    k(f"s_add_u32 {sfl}, {sfl}, {WS_FLG:#x}")
    k(f"v_mov_b32 {one}, 1")
    def publish(lab):
        vm.drain()
        k("s_barrier")
        k(f"s_cmp_lg_u32 {w}, 0")
        k(f"s_cbranch_scc1 {lab}")
        k("s_mov_b64 exec, 1")
        k(f"buffer_store_dword {one}, {zero}, {Rws}, {sfl} offen sc1")
        k("s_mov_b64 exec, -1")
        k(f"{lab}:")
        vm.ops.append('flag')
    publish(k.label('PUB'))
    stamp('a',7)
    for r in keepC: v.free(r)
    v.free(vy,vxo,ny,vi,vg,*yv)
    for j in range(2): v.free(*xr[j])
    acc=[v.at(24+16*q,16) for q in range(7)]
    fr=[[v.at(136+28*b+4*q,4) for q in range(7)] for b in range(2)]
    W2=v.at(192,64)
    v.free(resv)
    tok=a(128,align=4); W1=a(128,align=4)
    Wf=[W1[4*q:4*q+4] for q in range(32)]+[W2[4*q:4*q+4] for q in range(16)]+[tok[4*q:4*q+4] for q in range(8)]
    tb5,nb,sw5=s(),s(),s()
    k(f"""
s_and_b32 {t0}, s2, 7
s_lshr_b32 {t1}, s2, 3
s_lshl_b32 {tb5}, {t0}, 2
s_and_b32 {t0}, {t1}, 3
s_add_u32 {tb5}, {tb5}, {t0}
s_lshr_b32 {nb}, {t1}, 2
s_mul_i32 {sw5}, {nb}, {112*2048}
s_mul_i32 {t0}, {w}, {28*2048}
s_add_u32 {sw5}, {sw5}, {t0}
s_add_u32 {sw5}, {sw5}, {WS_WDF:#x}
""")
    w5=[]
    for q in range(56):
        post=f"\ns_add_u32 {sw5}, {sw5}, 4096" if q&3==3 else ""
        w5.append((f"buffer_load_dwordx4 {Wf[q]}, {vtok}, {Rws}, {sw5} offen offset:{(q&3)*1024}"+post, f"V{q}"))
    for x,tg in wgroup(4): vm.op(x,tg)
    for _ in range(N1): x,tg=w5.pop(0); vm.op(x,tg)
    cnt=s(); spo=s()
    def poll(lab):
        P,Dn=k.label(lab),k.label(lab+'D')
        k(f"""
s_mov_b32 {cnt}, 0
s_mov_b64 exec, 15
{P}:
buffer_load_dword {vf}, {vfl}, {Rws}, {spo} offen sc1
s_add_u32 {cnt}, {cnt}, 1
s_waitcnt vmcnt(0)
v_cmp_eq_u32 vcc, 0, {vf}
s_cbranch_vccz {Dn}
s_cmp_lt_u32 {cnt}, {SPIN:#x}
s_cbranch_scc1 {P}
{Dn}:
s_mov_b64 exec, -1
""")
        vm.ops=[]
    stok,tt4=s(),s()
    k(f"""
v_lshlrev_b32 {vfl}, 7, {lane}
s_lshl_b32 {spo}, {tb}, 4
s_lshl_b32 {t0}, {w}, 2
s_add_u32 {spo}, {spo}, {t0}
s_lshl_b32 {spo}, {spo}, 7
s_add_u32 {spo}, {spo}, {WS_FLG:#x}
s_lshl_b32 {tt4}, {tb}, 2
s_add_u32 {tt4}, {tt4}, {w}
s_lshl_b32 {stok}, {tt4}, 15
s_add_u32 {stok}, {stok}, {WS_H2F:#x}
""")
    c_,r_,G_=v(),v(),v()
    k(f"""
v_and_b32 {c_}, 3, {lane}
v_bfe_u32 {r_}, {lane}, 2, 2
v_lshrrev_b32 {G_}, 4, {lane}
v_lshrrev_b32 {tv}, 1, {c_}
v_mul_u32_u24 {vA[0]}, {MAT}, {tv}
v_lshrrev_b32 {tv}, 1, {G_}
v_lshl_add_u32 {tv}, {tv}, 3, {r_}
v_mul_u32_u24 {tv}, 224, {tv}
v_add_u32 {vA[0]}, {vA[0]}, {tv}
v_and_b32 {tv}, 1, {c_}
v_lshl_add_u32 {vA[0]}, {tv}, 4, {vA[0]}
v_and_b32 {tv}, 1, {G_}
v_lshl_add_u32 {vA[0]}, {tv}, 3, {vA[0]}
""")
    for b in range(1,NB): k(f"v_add_u32 {vA[b]}, {b*CHUNK}, {vA[0]}")
    v.free(c_,r_,G_)
    def reads(c,kap,buf):
        out=[]
        for t7 in range(7):
            for e in range(2):
                out.append(f"ds_read_b64_tr_b16 {fr[buf][t7][2*e:2*e+2]}, {vA[c%NB]} offset:{kap*3584+e*896+t7*32}")
        return out
    sst=s()
    k(f"""
s_mul_i32 {sst}, {tt4}, 112
s_mul_i32 {t0}, {fb}, 7
s_add_u32 {sst}, {sst}, {t0}
s_lshl_b32 {sst}, {sst}, 10
s_add_u32 {sst}, {sst}, {WS_HHF:#x}
""")
    for x in reads(0,0,0): k(x)
    poll('POLLA')
    stamp('a',8); stamp('b',1)
    tl=[]
    for c in range(8):
        for kap in range(4):
            post=f"\ns_add_u32 {stok}, {stok}, 4096" if kap==3 else ""
            tl.append((f"buffer_load_dwordx4 {tok[16*c+4*kap:16*c+4*kap+4]}, {vtok}, {Rws}, {stok} offen offset:{kap*1024} sc1"+post, f"T{c}{kap}"))
    for _ in range(TUP): x,tg=tl.pop(0); vm.op(x,tg)
    stamp('b',2)
    pend=[]; step=0
    nsteps=32
    left=len(w5)
    sched={}
    first=V0; lastst=V1
    for q in range(left):
        st=first+(q*(lastst-first+1))//left
        sched[st]=sched.get(st,0)+1
    for c in range(8):
        for kap in range(4):
            buf=step&1
            last=(c==7 and kap==3)
            nc,nk=(c,kap+1) if kap<3 else (c+1,0)
            rd=[] if last else reads(nc,nk,buf^1)
            if kap==0 and c==1: stamp('b',3)
            if kap==0 and c==3: stamp('b',4)
            if kap==0 and c==5: stamp('b',5)
            if kap==3 and c<7:
                k("s_waitcnt lgkmcnt(0)")
                vm.wait(f"T{c}{kap}", f"W{c+1}")
                k("s_barrier")
                if c+NB<8: pend=pend+wgroup(c+NB)
            else:
                k("s_waitcnt lgkmcnt(8)")
                vm.wait(f"T{c}{kap}")
            extra=[]
            for _ in range(TPS):
                if tl: extra.append(tl.pop(0))
            for _ in range(sched.get(step,0)):
                x,tg=w5.pop(0)
                q=int(tg[1:])
                assert q<48 or step>=8, (q,step)
                extra.append((x,tg))
            ri=0
            for t7 in range(7):
                if t7==3 and not(kap==3 and c<7):
                    k(f"s_waitcnt lgkmcnt({0 if last else 9})")
                cin = 0 if step==0 else acc[t7]
                k(f"{MF} {acc[t7]}, {fr[buf][t7]}, {tok[16*c+4*kap:16*c+4*kap+4]}, {cin}")
                nrd=3 if t7<4 else 2
                for _ in range(nrd):
                    if ri<len(rd): k(rd[ri]); ri+=1
                if t7 in (1,3,5) and pend: x,tg=pend.pop(0); vm.op(x,tg)
                if (t7 in (0,2,4,6) or (t7 in (1,3,5) and not pend)) and extra: x,tg=extra.pop(0); vm.op(x,tg)
            assert ri==len(rd) and not extra
            step+=1
    assert not pend and not w5
    stamp('b',6); stamp('c',1)
    o=[fr[0][0],fr[0][1]]
    for t7 in range(7):
        A=acc[t7]; oo=o[t7&1]
        for r in range(4):
            k(f"v_mul_f32 {A[r]}, {A[r]}, {A[4+r]}")
            k(f"v_mul_f32 {A[8+r]}, {A[8+r]}, {A[12+r]}")
        k(f"v_cvt_pk_bf16_f32 {oo[0]}, {A[0]}, {A[1]}")
        k(f"v_cvt_pk_bf16_f32 {oo[1]}, {A[2]}, {A[3]}")
        k(f"v_cvt_pk_bf16_f32 {oo[2]}, {A[8]}, {A[9]}")
        k(f"v_cvt_pk_bf16_f32 {oo[3]}, {A[10]}, {A[11]}")
        if t7==4: k(f"s_add_u32 {sst}, {sst}, 4096")
        vm.op(f"buffer_store_dwordx4 {oo}, {vtok}, {Rws}, {sst} offen offset:{(t7&3)*1024} sc1",'st')
    stamp('c',2)
    k(f"s_add_u32 {sfl}, {sfl}, {256*128}")
    v.free(*vd); v.free(*vA)
    RED=0; WST=64*272
    vx1,vout,vgb,vrr,vrw=v(),v(),v(),v(),v()
    tau,pos,u1=v(),v(),v()
    sx5,stok5=stok,sst
    stk2=s()
    k(f"""
v_lshrrev_b32 {tau}, 2, v0
s_lshl_b32 {t0}, {tb5}, 6
v_add_u32 {pos}, {t0}, {tau}
v_and_b32 {tv}, 3, v0
v_lshlrev_b32 {vgb}, 5, {tv}
s_lshl_b32 {t0}, {nb}, 7
v_add_u32 {vgb}, {t0}, {vgb}                    ; nb*128 + c*32
v_lshl_add_u32 {vx1}, {pos}, 10, {vgb}
v_bfe_u32 {u1}, {pos}, 8, 2
v_lshlrev_b32 {vout}, 9, {u1}                   ; 512*kap
v_bfe_u32 {u1}, {pos}, 6, 2
v_lshl_add_u32 {vout}, {u1}, 7, {vout}          ; +128 g
v_and_b32 {u1}, 3, {pos}
v_lshl_add_u32 {vout}, {u1}, 5, {vout}          ; +32 e
v_lshrrev_b32 {u1}, 10, {pos}
v_lshl_add_u32 {vout}, {u1}, 4, {vout}          ; +16 t
v_bfe_u32 {u1}, {pos}, 2, 4
v_add_u32 {vout}, {vout}, {u1}                  ; + i
v_lshl_add_u32 {vout}, {vout}, 10, {vgb}        ; s*1024 + nb*128 + c*32
v_lshlrev_b32 {vgb}, 1, {vgb}
v_add_u32 {vgb}, {L_MOD+6144}, {vgb}
v_mul_u32_u24 {vrr}, 272, {tau}
v_lshl_add_u32 {vrr}, {tv}, 6, {vrr}            ; tau*272 + c*64
s_mul_i32 {t0}, {w}, {WST}
v_and_b32 {tv}, 31, {lane}
v_mul_u32_u24 {vrw}, 272, {tv}
v_lshrrev_b32 {tv}, 5, {lane}
v_lshl_add_u32 {vrw}, {tv}, 4, {vrw}
v_add_u32 {vrw}, {t0}, {vrw}
s_lshr_b32 {spo}, {tb5}, 1
s_lshl_b32 {spo}, {spo}, 4
s_lshl_b32 {t0}, {w}, 2
s_add_u32 {spo}, {spo}, {t0}
s_lshl_b32 {spo}, {spo}, 7
s_add_u32 {spo}, {spo}, {WS_FLG+256*128:#x}
""")
    v.free(tau,pos,u1)
    publish(k.label('PUB'))
    stamp('c',3)
    k(f"""
s_mul_i32 {stok5}, {tb5}, {2*112*1024}
s_mul_i32 {t0}, {w}, {28*1024}
s_add_u32 {stok5}, {stok5}, {t0}
s_add_u32 {stok5}, {stok5}, {WS_HHF:#x}
s_add_u32 {stk2}, {stok5}, {112*1024}
s_mov_b32 {sx5}, {WS_X1R:#x}
""")
    acc5=[[acc[0],acc[1]],[acc[2],acc[3]]]
    pool=[tok[32+4*q:36+4*q] for q in range(24)]
    for t7 in (4,5,6): pool+=[acc[t7][4*q:4*q+4] for q in range(4)]
    for b in range(2): pool+=[fr[b][t7] for t7 in range(7)]
    pool=pool[:2*D5]
    assert len(pool)==2*D5
    x1e=Reg('v',fr[1][5].idx,8)
    poll('POLLB')
    stamp('c',4)
    def tload(j):
        sl=j%D5
        o_=(j&3)*1024
        out=[(f"buffer_load_dwordx4 {pool[2*sl]}, {vtok}, {Rws}, {stok5} offen offset:{o_} sc1",f"H{j}"),
             (f"buffer_load_dwordx4 {pool[2*sl+1]}, {vtok}, {Rws}, {stk2} offen offset:{o_} sc1"+
              (f"\ns_add_u32 {stok5}, {stok5}, 4096\ns_add_u32 {stk2}, {stk2}, 4096" if j&3==3 else ""),f"H{j}")]
        return out
    for j in range(D5):
        for x,tg in tload(j): vm.op(x,tg)
    vm.op(f"buffer_load_dwordx4 {x1e[0:4]}, {vx1}, {Rws}, {sx5} offen sc1",'x1')
    vm.op(f"buffer_load_dwordx4 {x1e[4:8]}, {vx1}, {Rws}, {sx5} offen offset:16 sc1",'x1')
    stamp('c',5)
    for j in range(28):
        vm.wait(f"H{j}")
        if j==1: stamp('c',6)
        sl=j%D5
        for nu in range(2):
            for t_ in range(2):
                cin=0 if j==0 else acc5[nu][t_]
                k(f"{MF} {acc5[nu][t_]}, {Wf[2*j+nu]}, {pool[2*sl+t_]}, {cin}")
        if j+D5<28:
            for x,tg in tload(j+D5): vm.op(x,tg)
    stamp('c',7)
    for t_ in range(2):
        for nu in range(2):
            for q in range(4):
                k(f"ds_write_b128 {vrw}, {acc5[nu][t_][4*q:4*q+4]} offset:{t_*32*272+nu*128+q*32}")
    Ro=s(4); srd(k,Ro,pout,2048*1024)
    gb=W2[0:16]
    for q in range(4): k(f"ds_read_b128 {gb[4*q:4*q+4]}, {vgb} offset:{16*q}")
    k("s_waitcnt lgkmcnt(0)")
    k("s_barrier")
    S=[acc[0],acc[1],acc[2],acc[3]]
    for ww in range(4):
        for q in range(4):
            k(f"ds_read_b128 {S[ww][4*q:4*q+4]}, {vrr} offset:{ww*WST+q*16}")
    k("s_waitcnt lgkmcnt(8)")
    for j in range(16): k(f"v_add_f32 {S[0][j]}, {S[0][j]}, {S[1][j]}")
    k("s_waitcnt lgkmcnt(0)")
    for j in range(16): k(f"v_add_f32 {S[2][j]}, {S[2][j]}, {S[3][j]}")
    for j in range(16): k(f"v_add_f32 {S[0][j]}, {S[0][j]}, {S[2][j]}")
    vm.wait('x1')
    xe=S[1]
    for p_ in range(8):
        k(f"v_lshlrev_b32 {xe[2*p_]}, 16, {x1e[p_]}")
        k(f"v_and_b32 {xe[2*p_+1]}, 0xffff0000, {x1e[p_]}")
    for j in range(16): k(f"v_fmac_f32 {xe[j]}, {gb[j]}, {S[0][j]}")
    for p_ in range(8): k(f"v_cvt_pk_bf16_f32 {x1e[p_]}, {xe[2*p_]}, {xe[2*p_+1]}")
    k(f"buffer_store_dwordx4 {x1e[0:4]}, {vout}, {Ro}, 0 offen")
    k(f"buffer_store_dwordx4 {x1e[4:8]}, {vout}, {Ro}, 0 offen offset:16")
    k.stamp_flush(kidx)
    k(f"{END}:\ns_endpgm")
    code,desc=k.finish()
    return (k,code,desc)
```

```python
from common import *
import os
KDBG=int(os.environ.get('KDBG','0'))
def build_kA(name='ka_kernel', kidx=0):
    L_GV=0; L_MOD=2048; L_TR=2048+4096
    k=Kernel(name,256,512,lds=L_TR+8*260*4)
    v,s=k.v,k.s
    END=k.label('END')
    A=s.at(4,16); B=s.at(20,8)
    px,pwr,pwi,pc=A[0:2],A[2:4],A[4:6],A[14:16]
    pwm,pdbg,pws=B[0:2],B[4:6],B[6:8]
    beta,t0,t1,w,row=s(),s(),s(),s(),s()
    lane,vi,vg,tv=v(),v(),v(),v()
    k(f"""
s_cmp_ge_u32 s2, 256
s_cbranch_scc1 {END}""")
    k.stamp_init()
    k(f"""
s_load_dwordx16 {A}, s[0:1], 0
s_load_dwordx8 {B}, s[0:1], 64
v_lshrrev_b32 {tv}, 6, v0
v_and_b32 {lane}, 63, v0
v_readfirstlane_b32 {w}, {tv}
v_and_b32 {vi}, 15, v0
v_bfe_u32 {vg}, v0, 4, 2
""")
    beta_of_wg(k,beta,t0)
    row_of_pos(k,row,beta,w,t0,t1)
    k(f"s_lshl_b32 {row}, {row}, 10")
    wo,co,mbo,jst=s(),s(),s(),s()
    lb,r0=s(),s()
    k(f"""
s_and_b32 {lb}, s2, 15
s_lshr_b32 {r0}, s2, 4
s_lshl_b32 {r0}, {r0}, 7
s_lshl_b32 {mbo}, s2, 8
s_sub_u32 {t0}, s2, 192
s_and_b32 {t1}, {t0}, 31
s_add_u32 {t1}, {t1}, 16
s_lshr_b32 {jst}, {t0}, 5
s_lshl_b32 {jst}, {jst}, 8
s_lshl_b32 {t0}, {t0}, 8
s_add_u32 {t0}, {t0}, 0x4000
s_cmp_lt_u32 s2, 64
s_cselect_b32 {lb}, {lb}, {t1}
s_cselect_b32 {r0}, {r0}, {jst}
s_cselect_b32 {mbo}, {mbo}, {t0}
s_lshl_b32 {t0}, {w}, 3
s_add_u32 {r0}, {r0}, {t0}
s_lshl_b32 {co}, {r0}, 1
s_mul_i32 {wo}, {r0}, 6144
s_lshl_b32 {t0}, {lb}, 7
s_add_u32 {wo}, {wo}, {t0}
""")
    s.free(lb,r0,jst)
    vgv,vc2,vxo,vl16=v(),v(),v(),v()
    k(f"""
v_lshrrev_b32 {tv}, 3, {lane}               ; rr
v_lshlrev_b32 {vc2}, 1, {tv}
v_mul_u32_u24 {vgv}, 0x1800, {tv}
v_and_b32 {tv}, 7, {lane}
v_lshl_add_u32 {vgv}, {tv}, 4, {vgv}       ; rr*6144 + q*16
v_lshlrev_b32 {vxo}, 8, {vg}
v_lshl_add_u32 {vxo}, {vi}, 1, {vxo}     ; 256 g + 2 i
v_lshlrev_b32 {vl16}, 4, {lane}
""")
    bt,ks0=s(),s()
    k(f"""
s_sub_u32 {t0}, s2, 64
s_and_b32 {bt}, {t0}, 7
s_lshl_b32 {bt}, {bt}, 4
s_lshr_b32 {t0}, {t0}, 3
s_add_u32 {bt}, {bt}, {t0}
s_lshl_b32 {bt}, {bt}, 1
s_lshr_b32 {t0}, {w}, 2
s_add_u32 {bt}, {bt}, {t0}
s_and_b32 {bt}, {bt}, 255
s_lshr_b32 {t0}, {bt}, 6
s_lshl_b32 {ks0}, {t0}, 4
s_and_b32 {t0}, {bt}, 7
s_lshl_b32 {t0}, {t0}, 1
s_add_u32 {ks0}, {ks0}, {t0}
s_bfe_u32 {t0}, {bt}, 0x10005
s_lshl_b32 {t0}, {t0}, 10
s_add_u32 {ks0}, {ks0}, {t0}
s_bfe_u32 {t0}, {bt}, 0x20003
s_lshl_b32 {t0}, {t0}, 8
s_add_u32 {ks0}, {ks0}, {t0}
s_mul_i32 {ks0}, {ks0}, 514
""")
    vta,vts,vts2,u_,u2,vtp,vx=v(),v(),v(),v(),v(),v(),v()
    k(f"""
v_and_b32 {vtp}, 255, v0                    ; t'
v_and_b32 {u_}, 1, {vtp}                    ; half
v_mul_u32_u24 {vta}, 514, {u_}
v_lshrrev_b32 {u2}, 1, {vtp}                ; p
v_lshl_add_u32 {vta}, {u2}, 2, {vta}       ; half*514 + 4p
v_lshlrev_b32 {vts}, 14, {u2}              ; 2p*8192
v_lshl_add_u32 {vts}, {u_}, 4, {vts}
s_lshl_b32 {t0}, {bt}, 5
v_add_u32 {vts}, {t0}, {vts}
v_add_u32 {vts2}, 8192, {vts}
v_and_b32 {vx}, 3, {vtp}
v_mul_u32_u24 {vx}, 32896, {vx}
v_bfe_u32 {u_}, {vtp}, 2, 1
v_mul_u32_u24 {u_}, 514, {u_}
v_add3_u32 {vx}, {vx}, {u_}, {ks0}
v_add_u32 {vx}, 512, {vx}
""")
    so=s(4,align=1)
    for n in range(4): k(f"s_add_u32 {so[n]}, {ks0}, {n*32896}")
    s.free(ks0)
    Rx,Rmb,Rx1,Ra,Rb,Rdbg,Rwt=s(4),s(4),s(4),s(4),s(4),s(4),s(4)
    vzero=v(); k(f"v_mov_b32 {vzero}, 0")
    k("s_waitcnt lgkmcnt(0)")
    k.stamp(1)
    x=v(8,align=4); wmr=v(16,align=4); cv=v(4); zf=v(4,align=4)
    ra=v(4,align=4); rb=v(4,align=4); va_,vb_=v(),v()
    LNC=k.label('LNC'); LTR=k.label('LTR'); LX=k.label('LX'); NOZ=k.label('NOZ'); L1=k.label('L1'); NOZ2=k.label('NOZ2')
    srd(k,Rx,px,2048*1024); srd(k,Rmb,pws,32768,WS_MBOX); srd(k,Rdbg,pdbg,256)
    srd(k,Rx1,pws,COLB,WS_X1); srd(k,Rwt,pws,COLB,WS_WT)
    k(f"s_cmp_lt_u32 s2, 64")
    k(f"s_cbranch_scc0 {L1}")
    srd(k,Ra,pwm,512*6144); srd(k,Rb,pc,1024)
    k(f"s_add_u32 {t0}, {wo}, {64*6144}")
    k(f"buffer_load_short_d16_hi {cv[0]}, {vc2}, {Rb}, {co} offen")
    k(f"buffer_load_short_d16_hi {cv[1]}, {vc2}, {Rb}, {co} offen offset:128")
    k(f"buffer_load_dwordx4 {wmr[0:4]}, {vgv}, {Ra}, {wo} offen")
    k(f"buffer_load_dwordx4 {wmr[4:8]}, {vgv}, {Ra}, {t0} offen")
    for j in range(8): k(f"buffer_load_short_d16_hi {x[j]}, {vxo}, {Rx}, {row} offen offset:{32*j}")
    k(f"{L1}:")
    k(f"""
s_cmp_lg_u32 s2, 64
s_cbranch_scc1 {NOZ}
v_mov_b32 {zf[0]}, 0
v_mov_b32 {zf[1]}, 0
v_mov_b32 {zf[2]}, 0
v_mov_b32 {zf[3]}, 0
v_lshlrev_b32 {tv}, 4, v0
s_movk_i32 {t0}, 0x2000
buffer_store_dwordx4 {zf}, {tv}, {Rmb}, 0 offen sc1
buffer_store_dwordx4 {zf}, {tv}, {Rmb}, {t0} offen sc1
s_waitcnt vmcnt(0)
s_barrier
s_cmp_lg_u32 {w}, 0
s_cbranch_scc1 {NOZ}
v_mov_b32 {zf[1]}, 1
s_mov_b64 exec, 1
buffer_store_dword {zf[1]}, {vzero}, {Rdbg}, 0 offen sc1
s_mov_b64 exec, -1
{NOZ}:
""")
    k.stamp(2)
    fi,fg,f,arg,c0,c1=v(),v(),v(),v(),v(),v()
    k(f"v_cvt_f32_u32 {fi}, {vi}")
    k(f"v_cvt_f32_u32 {fg}, {vg}")
    BC=v(4,align=4); BS=v(4,align=4); BC1=v(4,align=4); BS1=v(4,align=4)
    k(f"v_mul_f32 {f}, 0x3d000000, {fi}")
    k(f"v_mul_f32 {arg}, 0x41000000, {fg}")
    k(f"v_mul_f32 {arg}, {arg}, {f}")
    s0,s1=v(),v()
    for p in range(4):
        k(f"v_cos_f32 {c0}, {arg}")
        k(f"v_sin_f32_e64 {s0}, -{arg}")
        k(f"v_add_f32 {arg}, {arg}, {f}")
        k(f"v_cos_f32 {c1}, {arg}")
        k(f"v_sin_f32_e64 {s1}, -{arg}")
        k(f"v_add_f32 {arg}, {arg}, {f}")
        k(f"v_cvt_pk_bf16_f32 {BC[p]}, {c0}, {c1}")
        k(f"v_cvt_pk_bf16_f32 {BS[p]}, {s0}, {s1}")
    for p in range(4):
        k(f"v_xor_b32 {BC1[p]}, 0x80000000, {BC[p]}")
        k(f"v_xor_b32 {BS1[p]}, 0x80000000, {BS[p]}")
    TC=v(8,align=4); TS=v(8,align=4); n0=v()
    k(f"v_mul_f32 {n0}, 4.0, {fg}")
    for u in range(2):
        if u==0: k(f"v_mul_f32 {f}, 0x3b000000, {fi}")
        else: k(f"v_add_f32 {f}, 0x3d000000, {f}")
        k(f"v_mul_f32 {arg}, {n0}, {f}")
        for r in range(4):
            k(f"v_cos_f32 {TC[4*u+r]}, {arg}")
            k(f"v_sin_f32 {TS[4*u+r]}, {arg}")
            if r<3: k(f"v_add_f32 {arg}, {arg}, {f}")
    A2=v(4,align=4); A3=v(4,align=4); sh0,sh1=v(),v()
    k(f"""
v_lshrrev_b32 {tv}, 1, {vi}
v_cvt_f32_u32 {f}, {tv}
v_mul_f32 {f}, 0x3d800000, {f}          ; k2/16
v_and_b32 {tv}, 1, {vi}
v_cvt_f32_u32 {sh0}, {tv}
v_mul_f32 {sh0}, 0x3e800000, {sh0}      ; 0.25 c
v_add_f32 {sh1}, 0xbe800000, {sh0}      ; 0.25 (c-1)
v_mul_f32 {arg}, {n0}, {f}
""")
    aa=v(4,align=2)
    for r in range(4):
        k(f"v_mov_b32 {aa[r]}, {arg}")
        if r<3: k(f"v_add_f32 {arg}, {arg}, {f}")
    for half,sh in ((0,sh0),(1,sh1)):
        for p in range(2):
            k(f"v_add_f32 {c0}, {aa[2*p]}, {sh}")
            k(f"v_add_f32 {c1}, {aa[2*p+1]}, {sh}")
            k(f"v_cos_f32 {c0}, {c0}")
            k(f"v_cos_f32 {c1}, {c1}")
            k(f"v_cvt_pk_bf16_f32 {A2[2*half+p]}, {c0}, {c1}")
    k(f"""
v_cmp_eq_u32 vcc, 0, {vi}
v_mov_b32 {tv}, 0xbf803f80
v_cndmask_b32 {A3[0]}, 0, {tv}, vcc
v_cndmask_b32 {A3[1]}, 0, {tv}, vcc
v_mov_b32 {A3[2]}, 0
v_mov_b32 {A3[3]}, 0
""")
    vlw,vlr,vst=v(),v(),v()
    k(f"""
s_mul_i32 {t0}, {w}, 1040
s_add_u32 {t0}, {t0}, {L_TR}
v_lshlrev_b32 {vlw}, 8, {vg}
v_lshl_add_u32 {vlw}, {vi}, 2, {vlw}
v_add_u32 {vlw}, {t0}, {vlw}            ; L_TR + w*1040 + (i+64g)*4
v_and_b32 {tv}, 1, v0
v_mul_u32_u24 {vlr}, 4160, {tv}
v_lshrrev_b32 {c0}, 1, v0               ; k
v_lshl_add_u32 {vlr}, {c0}, 2, {vlr}
v_add_u32 {vlr}, {L_TR}, {vlr}
v_lshlrev_b32 {vst}, 13, {c0}
v_lshl_add_u32 {vst}, {tv}, 4, {vst}
s_lshl_b32 {t0}, {beta}, 5
v_add_u32 {vst}, {t0}, {vst}
""")
    k.stamp(3)
    k(f"""
s_cmp_lt_u32 s2, 64
s_cbranch_scc1 {LX}
s_cmp_lt_u32 s2, 192
s_cbranch_scc1 {LTR}
""")
    for j in range(8): k(f"buffer_load_short_d16_hi {x[j]}, {vxo}, {Rx}, {row} offen offset:{32*j}")
    k(f"s_branch {LX}")
    k(f"{LTR}:")
    srd(k,Ra,pwr,2048*514); srd(k,Rb,pwi,2048*514)
    for j in range(8): k(f"buffer_load_short_d16_hi {x[j]}, {vxo}, {Rx}, {row} offen offset:{32*j}")
    for n in range(4):
        k(f"buffer_load_dword {ra[n]}, {vta}, {Ra}, {so[n]} offen")
        k(f"buffer_load_dword {rb[n]}, {vta}, {Rb}, {so[n]} offen")
    k(f"buffer_load_ushort {va_}, {vx}, {Ra}, 0 offen")
    k(f"buffer_load_short_d16_hi {vb_}, {vx}, {Rb}, 0 offen")
    k(f"{LX}:")
    s.free(A,B[0:6],so)
    sv=s(2); rdy=v()
    GNC=k.label('GNC'); GTR=k.label('GTR'); GX=k.label('GX'); GW=k.label('GW'); RDY=k.label('RDY'); RDY1=k.label('RDY1'); GW2=k.label('GW2')
    vl=v(); msk=s(2); te=v(); sc=v(4); acc=v(8,align=4); rd=v(8,align=4)
    def gemv(nj, base, crit):
        k(f"s_waitcnt vmcnt({base+nj})")
        if KDBG: k.stamp(5)
        for j in range(nj): silu_bf16(k,sc[j],cv[j],te)
        for j in range(nj):
            k(f"s_waitcnt vmcnt({base+nj-1-j})")
            if KDBG and j==0: k.stamp(6)
            if KDBG and j==nj-1: k.stamp(7)
            if crit and j==nj-1: k(f"buffer_load_dword {rdy}, {vzero}, {Rdbg}, 0 offen sc1")
            for p in range(4):
                src=wmr[4*j+p]
                k(f"v_lshlrev_b32 {u_}, 16, {src}")
                k(f"v_and_b32 {u2}, 0xffff0000, {src}")
                if j==0:
                    k(f"v_mul_f32 {acc[2*p]}, {sc[j]}, {u_}")
                    k(f"v_mul_f32 {acc[2*p+1]}, {sc[j]}, {u2}")
                else:
                    k(f"v_fmac_f32 {acc[2*p]}, {sc[j]}, {u_}")
                    k(f"v_fmac_f32 {acc[2*p+1]}, {sc[j]}, {u2}")
        gemv_reduce(k,acc,msk)
        k(f"ds_write_b32 {vl}, {acc[0]} offset:{L_GV}")
        k("s_waitcnt lgkmcnt(0)")
        k("s_barrier")
    gemv_lds_addr(k,vl,u_,lane,w,t0,msk)
    k(f"s_cmp_lt_u32 s2, 64")
    k(f"s_cbranch_scc0 {GNC}")
    gemv(2,8,True)
    k(f"s_branch {GW}")
    k(f"{GNC}:")
    k(f"s_cmp_lt_u32 s2, 192")
    k(f"s_cbranch_scc1 {GTR}")
    k(f"s_branch {GW2}")
    k(f"{GW}:")
    k(f"""
s_cmp_lg_u32 {w}, 0
s_cbranch_scc1 {GW2}
v_lshlrev_b32 {vl}, 2, {lane}
""")
    for n in range(8): k(f"ds_read_b32 {rd[n]}, {vl} offset:{L_GV+256*n}")
    k(f"""
s_waitcnt vmcnt(0)
{RDY}:
v_readfirstlane_b32 {t0}, {rdy}
s_cmp_lg_u32 {t0}, 0
s_cbranch_scc1 {RDY1}
buffer_load_dword {rdy}, {vzero}, {Rdbg}, 0 offen sc1
s_add_u32 {co}, {co}, 0x1000
s_waitcnt vmcnt(0)
s_cmp_lt_u32 {co}, 0x40000000
s_cbranch_scc1 {RDY}
{RDY1}:
s_waitcnt lgkmcnt(0)
""")
    for st in (1,2,4):
        for r in range(0,8,2*st): k(f"v_add_f32 {rd[r]}, {rd[r]}, {rd[r+st]}")
    k(f"""
v_or_b32 {rd[0]}, 1, {rd[0]}
buffer_store_dword {rd[0]}, {vl}, {Rmb}, {mbo} offen sc1
s_branch {GX}
{GW2}:
s_waitcnt vmcnt(0)
s_branch {GX}
{GTR}:
""")
    lo=v(4,align=4); hi=v(4,align=4); sl,sh_=wo,co
    k(f"s_mov_b32 {sl}, 0x05040100")
    k(f"s_mov_b32 {sh_}, 0x07060302")
    k("s_waitcnt vmcnt(2)")
    for n in range(4):
        k(f"v_perm_b32 {lo[n]}, {rb[n]}, {ra[n]}, {sl}")
        k(f"v_perm_b32 {hi[n]}, {rb[n]}, {ra[n]}, {sh_}")
    k(f"buffer_store_dwordx4 {lo}, {vts}, {Rwt}, 0 offen")
    k(f"buffer_store_dwordx4 {hi}, {vts2}, {Rwt}, 0 offen")
    k(f"""
s_waitcnt vmcnt(2)
v_or_b32 {va_}, {va_}, {vb_}
s_lshl_b32 {t0}, {bt}, 5
s_add_u32 {t0}, {t0}, {256*8192}
v_lshlrev_b32 {vx}, 2, {vtp}
v_cmp_gt_u32 vcc, 8, {vtp}
s_and_saveexec_b64 {sv}, vcc
buffer_store_dword {va_}, {vx}, {Rwt}, {t0} offen
s_mov_b64 exec, {sv}
{GX}:
""")
    k.stamp(4)
    sm,tt=v(),v()
    k(f"v_add_f32 {sm}, {x[0]}, {x[1]}")
    k(f"v_add_f32 {tt}, {x[2]}, {x[3]}")
    k(f"v_add_f32 {c0}, {x[4]}, {x[5]}")
    k(f"v_add_f32 {c1}, {x[6]}, {x[7]}")
    k(f"v_add_f32 {sm}, {sm}, {tt}")
    k(f"v_add_f32 {c0}, {c0}, {c1}")
    k(f"v_add_f32 {sm}, {sm}, {c0}")
    wave_allreduce_add(k,sm,tt)
    k(f"v_mul_f32 {sm}, 0xbb000000, {sm}")
    for j in range(8): k(f"v_add_f32 {x[j]}, {x[j]}, {sm}")
    k(f"v_mul_f32 {sm}, {x[0]}, {x[0]}")
    k(f"v_mul_f32 {c0}, {x[1]}, {x[1]}")
    for j in range(2,8,2):
        k(f"v_fmac_f32 {sm}, {x[j]}, {x[j]}")
        k(f"v_fmac_f32 {c0}, {x[j+1]}, {x[j+1]}")
    k(f"v_add_f32 {sm}, {sm}, {c0}")
    wave_allreduce_add(k,sm,tt)
    k(f"v_mov_b32 {tt}, 0x3727c5ac")
    k(f"v_fmac_f32 {tt}, 0x3b000000, {sm}")
    k(f"v_rsq_f32 {tt}, {tt}")
    for j in range(8): k(f"v_mul_f32 {x[j]}, {x[j]}, {tt}")
    if not KDBG: k.stamp(5)
    ma=v(8,align=4); mb=v(8,align=4)
    POLL=k.label('POLL'); PDONE=k.label('PDONE'); R2=k.label('R2'); R3=k.label('R3')
    P=[v(2),v(2),v(2),v(2)]; vmb,vlm=v(),v(); so4=s(4,align=1)
    k(f"""
s_lshl_b32 {t0}, {w}, 9
v_lshl_add_u32 {vmb}, {lane}, 3, {t0}      ; w*512 + lane*8
s_lshr_b32 {t0}, {w}, 2
s_lshl_b32 {t0}, {t0}, 11                   ; chunk*2048
s_and_b32 {t1}, {w}, 3
s_lshl_b32 {t1}, {t1}, 8                    ; 16 g * 16
s_add_u32 {t0}, {t0}, {t1}
s_add_u32 {t0}, {t0}, {L_MOD}
v_and_b32 {u_}, 7, {lane}
v_lshlrev_b32 {vlm}, 5, {u_}                ; i*16 , i = 2*(l&7)
v_bfe_u32 {u_}, {lane}, 3, 2
v_lshl_add_u32 {vlm}, {u_}, 2, {vlm}        ; (j&3)*4
v_lshrrev_b32 {u_}, 5, {lane}
v_lshl_add_u32 {vlm}, {u_}, 10, {vlm}       ; (j>>2)*1024
v_add_u32 {vlm}, {t0}, {vlm}
s_mov_b32 {t1}, 0
s_cmp_lg_u32 {w}, 0
s_cbranch_scc1 {R3}
{R2}:
buffer_load_dword {u_}, {vzero}, {Rdbg}, 0 offen sc1
s_waitcnt vmcnt(0)
v_readfirstlane_b32 {t0}, {u_}
s_cmp_lg_u32 {t0}, 0
s_cbranch_scc1 {R3}
s_add_u32 {t1}, {t1}, 1
s_cmp_lt_u32 {t1}, 0x40000
s_cbranch_scc1 {R2}
{R3}:
s_barrier
s_movk_i32 {so4[1]}, 0x1000
s_movk_i32 {so4[2]}, 0x2000
s_movk_i32 {so4[3]}, 0x3000
{POLL}:
buffer_load_dwordx2 {P[0]}, {vmb}, {Rmb}, 0 offen sc1
buffer_load_dwordx2 {P[1]}, {vmb}, {Rmb}, {so4[1]} offen sc1
buffer_load_dwordx2 {P[2]}, {vmb}, {Rmb}, {so4[2]} offen sc1
buffer_load_dwordx2 {P[3]}, {vmb}, {Rmb}, {so4[3]} offen sc1
s_add_u32 {t1}, {t1}, 1
s_waitcnt vmcnt(0)
v_min3_u32 {u_}, {P[0][0]}, {P[0][1]}, {P[1][0]}
v_min3_u32 {u2}, {P[1][1]}, {P[2][0]}, {P[2][1]}
v_min3_u32 {u_}, {u_}, {P[3][0]}, {P[3][1]}
v_min_u32 {u_}, {u_}, {u2}
v_cmp_eq_u32 vcc, 0, {u_}
s_cbranch_vccz {PDONE}
s_cmp_lt_u32 {t1}, 0x40000
s_cbranch_scc1 {POLL}
{PDONE}:
""")
    if not KDBG: k.stamp(6)
    k(f"""
v_add_f32 {P[0][0]}, {P[0][0]}, {P[1][0]}
v_add_f32 {P[0][1]}, {P[0][1]}, {P[1][1]}
v_add_f32 {P[2][0]}, {P[2][0]}, {P[3][0]}
v_add_f32 {P[2][1]}, {P[2][1]}, {P[3][1]}
v_add_f32 {P[0][0]}, {P[0][0]}, {P[2][0]}
v_add_f32 {P[0][1]}, {P[0][1]}, {P[2][1]}
s_cmp_ge_u32 {w}, 4
s_cselect_b32 {t0}, 1.0, 0
v_cvt_pk_bf16_f32 {u_}, {P[0][0]}, {P[0][1]}
v_lshlrev_b32 {P[0][0]}, 16, {u_}
v_and_b32 {P[0][1]}, 0xffff0000, {u_}
v_add_f32 {P[0][0]}, {t0}, {P[0][0]}
v_add_f32 {P[0][1]}, {t0}, {P[0][1]}
v_cvt_pk_bf16_f32 {u_}, {P[0][0]}, {P[0][1]}
v_lshlrev_b32 {P[0][0]}, 16, {u_}
v_and_b32 {P[0][1]}, 0xffff0000, {u_}
ds_write_b32 {vlm}, {P[0][0]}
ds_write_b32 {vlm}, {P[0][1]} offset:16
s_waitcnt lgkmcnt(0)
s_barrier
""")
    if not KDBG: k.stamp(7)
    k(f"ds_read_b128 {mb[0:4]}, {vl16} offset:{L_MOD}")
    k(f"ds_read_b128 {ma[0:4]}, {vl16} offset:{L_MOD+2048}")
    k(f"ds_read_b128 {mb[4:8]}, {vl16} offset:{L_MOD+1024}")
    k(f"ds_read_b128 {ma[4:8]}, {vl16} offset:{L_MOD+3072}")
    k("s_waitcnt lgkmcnt(2)")
    for j in range(4): k(f"v_fma_f32 {x[j]}, {x[j]}, {ma[j]}, {mb[j]}")
    k("s_waitcnt lgkmcnt(0)")
    for j in range(4,8): k(f"v_fma_f32 {x[j]}, {x[j]}, {ma[j]}, {mb[j]}")
    A1=v(4,align=4)
    for p in range(4): k(f"v_cvt_pk_bf16_f32 {A1[p]}, {x[2*p]}, {x[2*p+1]}")
    Tr=[v(4,align=4),v(4,align=4)]; Ti=[v(4,align=4),v(4,align=4)]
    k(f"v_mfma_f32_16x16x32_bf16 {Tr[0]}, {A1}, {BC}, 0")
    k(f"v_mfma_f32_16x16x32_bf16 {Ti[0]}, {A1}, {BS}, 0")
    k(f"v_mfma_f32_16x16x32_bf16 {Tr[1]}, {A1}, {BC1}, 0")
    k(f"v_mfma_f32_16x16x32_bf16 {Ti[1]}, {A1}, {BS1}, 0")
    B2=[v(4,align=4),v(4,align=4)]
    Ur=v(4,align=4); Ui=v(4,align=4)
    D=[v(4,align=4),v(4,align=4)]; DN=v(4,align=4)
    for u in range(2):
        for r in range(4):
            k(f"v_mul_f32 {Ur[r]}, {Tr[u][r]}, {TC[4*u+r]}")
            k(f"v_mul_f32 {Ui[r]}, {Ti[u][r]}, {TC[4*u+r]}")
        for r in range(4):
            k(f"v_fmac_f32 {Ur[r]}, {Ti[u][r]}, {TS[4*u+r]}")
            k(f"v_fma_f32 {Ui[r]}, -{Tr[u][r]}, {TS[4*u+r]}, {Ui[r]}")
        k(f"v_cvt_pk_bf16_f32 {B2[u][0]}, {Ur[0]}, {Ur[1]}")
        k(f"v_cvt_pk_bf16_f32 {B2[u][1]}, {Ur[2]}, {Ur[3]}")
        k(f"v_cvt_pk_bf16_f32 {B2[u][2]}, {Ui[0]}, {Ui[1]}")
        k(f"v_cvt_pk_bf16_f32 {B2[u][3]}, {Ui[2]}, {Ui[3]}")
        k(f"v_mfma_f32_16x16x32_bf16 {D[u]}, {A2}, {B2[u]}, 0")
        if u==0: k(f"v_mfma_f32_16x16x32_bf16 {DN}, {A3}, {B2[0]}, 0")
    o=v(4,align=4)
    for u in range(2):
        for b in range(2):
            k(f"v_cvt_pk_bf16_f32 {o[2*u+b]}, {D[u][2*b]}, {D[u][2*b+1]}")
    for u in range(2):
        for b in range(2):
            k(f"ds_write_b32 {vlw}, {o[2*u+b]} offset:{64*u+128*b}")
    k(f"""
v_cvt_pk_bf16_f32 {tt}, {DN[0]}, 0
s_lshl_b32 {t0}, {beta}, 3
s_add_u32 {t0}, {t0}, {w}
s_lshl_b32 {t0}, {t0}, 2
s_add_u32 {t0}, {t0}, {256*8192}
v_mov_b32 {c0}, {t0}
v_cmp_eq_u32 vcc, 0, {lane}
s_and_saveexec_b64 {sv}, vcc
buffer_store_dword {tt}, {c0}, {Rx1}, 0 offen
s_mov_b64 exec, {sv}
s_waitcnt lgkmcnt(0)
s_barrier
""")
    for e in range(4): k(f"ds_read_b32 {o[e]}, {vlr} offset:{1040*e}")
    k("s_waitcnt lgkmcnt(0)")
    k(f"buffer_store_dwordx4 {o}, {vst}, {Rx1}, 0 offen")
    k.stamp_flush(kidx)
    k(f"{END}:\ns_endpgm")
    code,desc=k.finish()
    return (k,code,desc)
```

```python
from common import *
MF="v_mfma_f32_16x16x32_bf16"
def interleave(k, mf, va, ratio=2):
    vi=0
    for m in mf:
        k(m)
        for _ in range(ratio):
            if vi<len(va): k(va[vi]); vi+=1
    while vi<len(va): k(va[vi]); vi+=1

NX_G=1; NX_R=112; NX_P=int(__import__('os').environ.get('NXP','128'))
def k2_extras(k,END):
    v,s=k.v,k.s
    RELAY=k.label('RELAY'); ZERO=k.label('ZERO'); PREF=k.label('PREF')
    pwd,pws=s(2),s(2)
    e,w,t0,t1=s(),s(),s(),s()
    lane,tv=v(),v()
    k(f"""
s_cmp_ge_u32 s2, {257+NX_G+NX_R+1+NX_P}
s_cbranch_scc1 {END}
s_load_dwordx2 {pwd}, s[0:1], {ARG['wd']}
s_load_dwordx2 {pws}, s[0:1], {ARG['ws']}
s_sub_u32 {e}, s2, 257
v_lshrrev_b32 {tv}, 6, v0
v_and_b32 {lane}, 63, v0
v_readfirstlane_b32 {w}, {tv}
s_cmp_gt_u32 {e}, {NX_G+NX_R}
s_cbranch_scc1 {PREF}
s_cmp_ge_u32 {e}, {NX_G+NX_R}
s_cbranch_scc1 {ZERO}
s_cmp_ge_u32 {e}, {NX_G}
s_cbranch_scc1 {RELAY}
""")
    Rm,Ro=s(4),s(4); va,vo,vo2=v(),v(),v(); so=s(4,align=1)
    k(f"""
v_lshlrev_b32 {va}, 5, v0
v_bfe_u32 {tv}, v0, 5, 1
v_lshlrev_b32 {vo}, 10, {tv}                ; T*1024
v_bfe_u32 {tv}, v0, 1, 4
v_lshl_add_u32 {vo}, {tv}, 4, {vo}          ; + i*16
v_and_b32 {tv}, 1, v0
v_lshl_add_u32 {vo}, {tv}, 9, {vo}          ; + 2(u&1)*256
v_add_u32 {vo2}, 256, {vo}
v_and_b32 {tv}, 63, v0
v_lshlrev_b32 {tv}, 5, {tv}
s_cmp_eq_u32 {w}, 3
s_cselect_b64 vcc, -1, 0
v_cndmask_b32 {vo}, {vo}, {tv}, vcc
v_add_u32 {tv}, 16, {tv}
v_cndmask_b32 {vo2}, {vo2}, {tv}, vcc
s_lshl_b32 {t0}, {w}, 11
v_add_u32 {vo}, {t0}, {vo}
v_add_u32 {vo2}, {t0}, {vo2}
""")
    k("s_waitcnt lgkmcnt(0)")
    srd(k,Rm,pws,16384,WS_MBOX+0x4000); srd(k,Ro,pws,8192,WS_MOD2)
    P=[v(8,align=4) for _ in range(2)]
    for q in range(2):
        k(f"s_mov_b32 {so[q]}, {q*8192}")
        k(f"buffer_load_dwordx4 {P[q][0:4]}, {va}, {Rm}, {so[q]} offen")
        k(f"buffer_load_dwordx4 {P[q][4:8]}, {va}, {Rm}, {so[q]} offen offset:16")
    k(f"s_cmp_eq_u32 {w}, 2")
    k(f"s_cselect_b32 {t1}, 1.0, 0")
    k("s_waitcnt vmcnt(0)")
    for j in range(8): k(f"v_add_f32 {P[0][j]}, {P[0][j]}, {P[1][j]}")
    for rnd in range(2):
        for p in range(4):
            k(f"v_cvt_pk_bf16_f32 {P[1][p]}, {P[0][2*p]}, {P[0][2*p+1]}")
        for p in range(4):
            k(f"v_lshlrev_b32 {P[0][2*p]}, 16, {P[1][p]}")
            k(f"v_and_b32 {P[0][2*p+1]}, 0xffff0000, {P[1][p]}")
        if rnd==0:
            for j in range(8): k(f"v_add_f32 {P[0][j]}, {t1}, {P[0][j]}")
    k(f"buffer_store_dwordx4 {P[0][0:4]}, {vo}, {Ro}, 0 offen")
    k(f"buffer_store_dwordx4 {P[0][4:8]}, {vo2}, {Ro}, 0 offen")
    k.stamp_flush(1)
    k("s_endpgm")
    k.reset_regs(keep=[pwd,pws,e,w,t0,t1,lane,tv])
    k(f"{RELAY}:")
    Rw,Ro=s(4),s(4); vd,vd2,row,u1=v(),v(),v(),v(); sw,sm0,sd=s(),s(),s()
    k(f"""
v_lshrrev_b32 {row}, 3, {lane}
v_bfe_u32 {tv}, {lane}, 4, 1
v_lshlrev_b32 {tv}, 2, {tv}
v_and_b32 {vd}, 7, {lane}
v_xor_b32 {vd}, {vd}, {tv}
v_lshlrev_b32 {vd}, 4, {vd}
v_lshl_add_u32 {vd}, {row}, 10, {vd}
v_add_u32 {vd2}, {8192-1024}, {vd}
s_sub_u32 {e}, {e}, {NX_G}                     ; F
s_lshl_b32 {sw}, {e}, 14
s_lshl_b32 {t0}, {w}, 8
s_add_u32 {sw}, {sw}, {t0}                     ; F*16384 + 2w*128
s_lshl_b32 {sm0}, {w}, 12
s_mul_i32 {sd}, {w}, {2*112*2048}
s_lshl_b32 {t0}, {e}, 11
s_add_u32 {sd}, {sd}, {t0}                     ; (2w)*229376 + F*2048
s_waitcnt lgkmcnt(0)
""")
    srd(k,Rw,pwd,1792*1024); srd(k,Ro,pws,1792*1024,WS_WDF)
    for b in range(2):
        k(f"s_add_u32 m0, {sm0}, {b*2048}")
        k(f"s_nop 0")
        k(f"buffer_load_dwordx4 {vd}, {Rw}, {sw} offen lds")
        k(f"buffer_load_dwordx4 {vd2}, {Rw}, {sw} offen offset:1024 lds")
        if b==0: k(f"s_add_u32 {sw}, {sw}, 128")
    vA=[v(),v()]; c_,r_,G_=v(),v(),v()
    k(f"""
v_and_b32 {c_}, 3, {lane}
v_bfe_u32 {r_}, {lane}, 2, 2
v_lshrrev_b32 {G_}, 4, {lane}
v_lshrrev_b32 {tv}, 1, {G_}
v_lshl_add_u32 {tv}, {tv}, 3, {r_}              ; 8h'+r'
v_lshlrev_b32 {vA[0]}, 7, {tv}
v_and_b32 {tv}, 1, {G_}
v_lshlrev_b32 {tv}, 1, {tv}
v_lshrrev_b32 {u1}, 1, {c_}
v_add_u32 {tv}, {tv}, {u1}                       ; 2(G&1) + (c>>1)
v_lshrrev_b32 {u1}, 1, {r_}
v_lshlrev_b32 {u1}, 2, {u1}
v_xor_b32 {tv}, {tv}, {u1}
v_lshl_add_u32 {vA[0]}, {tv}, 4, {vA[0]}
v_and_b32 {tv}, 1, {c_}
v_lshl_add_u32 {vA[0]}, {tv}, 3, {vA[0]}
v_add_u32 {vA[0]}, {sm0}, {vA[0]}
v_xor_b32 {vA[1]}, 64, {vA[0]}
v_lshlrev_b32 {u1}, 4, {lane}
""")
    fr=[v(4,align=4),v(4,align=4)]
    for b in range(2):
        k(f"s_waitcnt vmcnt({2 if b==0 else 2})")
        for nu in range(2):
            for e2 in range(2):
                k(f"ds_read_b64_tr_b16 {fr[nu][2*e2:2*e2+2]}, {vA[nu]} offset:{b*2048+e2*512}")
        k("s_waitcnt lgkmcnt(0)")
        k(f"buffer_store_dwordx4 {fr[0]}, {u1}, {Ro}, {sd} offen")
        k(f"buffer_store_dwordx4 {fr[1]}, {u1}, {Ro}, {sd} offen offset:1024")
        if b==0: k(f"s_add_u32 {sd}, {sd}, {112*2048}")
    k.stamp_flush(1)
    k("s_endpgm")
    k.reset_regs(keep=[pwd,pws,e,w,t0,t1,lane,tv])
    k(f"{ZERO}:")
    Rf=s(4); z=v(); ad=v()
    k(f"v_lshlrev_b32 {ad}, 7, v0")
    k(f"v_mov_b32 {z}, 0")
    k(f"s_mov_b32 {t0}, 0x8000")
    k("s_waitcnt lgkmcnt(0)")
    srd(k,Rf,pws,0x10000,WS_FLG)
    k(f"buffer_store_dword {z}, {ad}, {Rf}, 0 offen")
    k(f"buffer_store_dword {z}, {ad}, {Rf}, {t0} offen")
    k("s_endpgm")
    k.reset_regs(keep=[pwd,pws,e,w,t0,t1,lane,tv])
    k(f"{PREF}:")
    if NX_P:
        pgu=s(4); Rp=s(4); ad=v(); d=v(4,align=4)
        per=2*1792*1024//NX_P//4096
        half=NX_P//2
        k(f"s_load_dwordx4 {pgu}, s[0:1], {ARG['wg']}")
        k(f"s_sub_u32 {e}, {e}, {NX_G+NX_R+1}")
        k(f"s_cmp_ge_u32 {e}, {half}")
        k(f"s_cselect_b32 {t1}, {half}, 0")
        k(f"s_sub_u32 {t1}, {e}, {t1}")
        k(f"s_mul_i32 {t1}, {t1}, {per*4096}")
        k(f"v_lshlrev_b32 {ad}, 4, v0")
        k(f"v_add_u32 {ad}, {t1}, {ad}")
        k(f"s_cmp_ge_u32 {e}, {half}")
        k("s_waitcnt lgkmcnt(0)")
        k(f"s_cselect_b32 {Rp[0]}, {pgu[2]}, {pgu[0]}")
        k(f"s_cselect_b32 {Rp[1]}, {pgu[3]}, {pgu[1]}")
        k(f"s_mov_b32 {Rp[2]}, {1792*1024}")
        k(f"s_mov_b32 {Rp[3]}, 0x00020000")
        for n in range(per):
            k(f"buffer_load_dwordx4 {d}, {ad}, {Rp}, 0 offen")
            if n<per-1: k(f"v_add_u32 {ad}, 4096, {ad}")
        k.stamp_flush(1)
    k("s_endpgm")

def build_k2(name='k2_kernel'):
    k=Kernel(name,257+NX_G+NX_R+1+NX_P,256,lds=16384)
    v,s=k.v,k.s
    END=k.label('END')
    pws=s(2); w,t0,t1,so1,so2=s(),s(),s(),s(),s()
    lane,vi,vg,tv=v(),v(),v(),v()
    EXTRA=k.label('EXTRA')
    k.stamp_init()
    k(f"""
s_cmp_ge_u32 s2, 257
s_cbranch_scc1 {EXTRA}
s_setprio 3""")
    k(f"""
s_load_dwordx2 {pws}, s[0:1], {ARG['ws']}
v_lshrrev_b32 {tv}, 6, v0
v_and_b32 {lane}, 63, v0
v_readfirstlane_b32 {w}, {tv}
v_and_b32 {vi}, 15, v0
v_bfe_u32 {vg}, v0, 4, 2
s_lshl_b32 {so1}, s2, 13
s_lshl_b32 {t0}, {w}, 11
s_add_u32 {so2}, {so1}, {t0}
""")
    vo,vo2=v(),v()
    k(f"v_lshlrev_b32 {vo}, 4, {lane}")
    k(f"v_add_u32 {vo2}, 4096, {vo}")
    Rx1,Rwt,Ry=s(4),s(4),s(4)
    k("s_waitcnt lgkmcnt(0)")
    k.stamp(1)
    srd(k,Rx1,pws,COLB,WS_X1); srd(k,Rwt,pws,COLB,WS_WT); srd(k,Ry,pws,COLB,WS_Y)
    X=[[v(4,align=4) for kap in range(4)] for t in range(2)]
    W=[v(4,align=4),v(4,align=4)]
    for t in range(2):
        for kap in range(4):
            k(f"buffer_load_dwordx4 {X[t][kap]}, {vo if t==0 else vo2}, {Rx1}, {so1} offen offset:{kap*1024}")
    for t2 in range(2):
        k(f"buffer_load_dwordx4 {W[t2]}, {vo}, {Rwt}, {so2} offen offset:{t2*1024}")
    k.stamp(2)
    fi,fg4,k1f,f,f13,arg,c0,s0=v(),v(),v(),v(),v(),v(),v(),v()
    mi=v()
    k(f"""
v_cvt_f32_u32 {fi}, {vi}
v_cvt_f32_u32 {fg4}, {vg}
v_mul_f32 {fg4}, 4.0, {fg4}              ; 4g
s_lshl_b32 {t0}, {w}, 4
v_add_u32 {tv}, {t0}, {vi}
v_cvt_f32_u32 {k1f}, {tv}                ; 16w+i
v_and_b32 {tv}, 1, {vi}
v_mul_u32_u24 {mi}, 0x8000, {tv}
v_lshl_or_b32 {mi}, {mi}, 16, {mi}        ; (i&1) ? 0x80008000 : 0
""")
    BR=[v(4,align=4) for _ in range(4)]; BI=[v(4,align=4) for _ in range(4)]
    k(f"v_mul_f32 {f}, 0x3c800000, {k1f}")
    k(f"v_mul_f32 {f13}, 0x41500000, {f}")
    k(f"v_mul_f32 {arg}, {fg4}, {f}")
    c1,s1=v(),v()
    for kap in range(2):
        for e in range(4):
            cc,ss=(c0,s0) if e&1==0 else (c1,s1)
            k(f"v_cos_f32 {cc}, {arg}")
            k(f"v_sin_f32 {ss}, {arg}")
            if not(kap==1 and e==3): k(f"v_add_f32 {arg}, {arg}, {f if e<3 else f13}")
            k(f"v_cvt_pk_bf16_f32 {BR[kap][e]}, {cc}, {ss}")
            k(f"v_cvt_pk_bf16_f32 {BI[kap][e]}, -{ss}, {cc}")
    for kap in range(2,4):
        for e in range(4):
            k(f"v_xor_b32 {BR[kap][e]}, {mi}, {BR[kap-2][e]}")
            k(f"v_xor_b32 {BI[kap][e]}, {mi}, {BI[kap-2][e]}")
    T1C=v(8,align=4); T1S=v(8,align=4)
    k(f"v_mul_f32 {f}, 0x3a000000, {k1f}")
    k(f"v_mul_f32 {f13}, 0x41500000, {f}")
    k(f"v_mul_f32 {arg}, {fg4}, {f}")
    for t in range(2):
        for r in range(4):
            k(f"v_cos_f32 {T1C[4*t+r]}, {arg}")
            k(f"v_sin_f32 {T1S[4*t+r]}, {arg}")
            if not(t==1 and r==3): k(f"v_add_f32 {arg}, {arg}, {f if r<3 else f13}")
    CS=[[v(6,align=2) for b in range(2)] for a in range(2)]
    cc4=v(4,align=2); ss4=v(4,align=2)
    k(f"v_mul_f32 {f}, 0x3d000000, {fi}")
    k(f"v_mul_f32 {arg}, {fg4}, {f}")
    for j in range(4):
        k(f"v_cos_f32 {cc4[j]}, {arg}")
        k(f"v_sin_f32 {ss4[j]}, {arg}")
        if j<3: k(f"v_add_f32 {arg}, {arg}, {f}")
    c00=CS[0][0]
    k(f"v_cvt_pk_bf16_f32 {c00[0]}, -{ss4[0]}, -{ss4[1]}")
    k(f"v_cvt_pk_bf16_f32 {c00[1]}, -{ss4[2]}, -{ss4[3]}")
    k(f"v_cvt_pk_bf16_f32 {c00[2]}, {cc4[0]}, {cc4[1]}")
    k(f"v_cvt_pk_bf16_f32 {c00[3]}, {cc4[2]}, {cc4[3]}")
    k(f"v_cvt_pk_bf16_f32 {c00[4]}, {ss4[0]}, {ss4[1]}")
    k(f"v_cvt_pk_bf16_f32 {c00[5]}, {ss4[2]}, {ss4[3]}")
    for j in range(6): k(f"v_xor_b32 {CS[0][1][j]}, {mi}, {c00[j]}")
    for j in range(6): k(f"v_xor_b32 {CS[1][0][j]}, 0x80000000, {c00[j]}")
    for j in range(6): k(f"v_xor_b32 {CS[1][1][j]}, 0x80000000, {CS[0][1][j]}")
    T2C=v(8,align=4); T2S=v(8,align=4); scl=s(); kb=v()
    k(f"""
s_and_b32 {t0}, s2, 0xff
s_cmp_eq_u32 {t0}, 0
s_mov_b32 {scl}, 0x36000000
s_cselect_b32 {scl}, 0x35800000, {scl}
s_lshl_b32 {t0}, {w}, 4
v_cvt_f32_u32 {kb}, {t0}
v_add_f32 {kb}, {kb}, {fg4}              ; 16w+4g
""")
    for t in range(2):
        if t==0: k(f"v_mul_f32 {f}, 0x3a000000, {fi}")
        else: k(f"v_add_f32 {f}, 0x3c000000, {f}")
        k(f"v_mul_f32 {arg}, {kb}, {f}")
        for r in range(4):
            k(f"v_cos_f32 {T2C[4*t+r]}, {arg}")
            k(f"v_sin_f32 {T2S[4*t+r]}, {arg}")
            if r<3: k(f"v_add_f32 {arg}, {arg}, {f}")
    for j in range(8):
        k(f"v_mul_f32 {T2C[j]}, {scl}, {T2C[j]}")
        k(f"v_mul_f32 {T2S[j]}, {scl}, {T2S[j]}")
    vlw=v()
    k(f"s_lshl_b32 {t0}, {w}, 10")
    k(f"v_add_u32 {vlw}, {t0}, {vo}")
    so3=s()
    k(f"s_add_u32 {so3}, {so1}, {t0}")
    Ar=[v(4,align=4),v(4,align=4)]; Ai=[v(4,align=4),v(4,align=4)]
    def cmul_tw(dst_r,dst_i,xr,xi,tc,ts):
        out=[]
        for r in range(4):
            out.append(f"v_mul_f32 {dst_r[r]}, {xr[r]}, {tc[r]}")
            out.append(f"v_mul_f32 {dst_i[r]}, {xi[r]}, {tc[r]}")
        for r in range(4):
            out.append(f"v_fmac_f32 {dst_r[r]}, {xi[r]}, {ts[r]}")
            out.append(f"v_fma_f32 {dst_i[r]}, -{xr[r]}, {ts[r]}, {dst_i[r]}")
        return out
    Ur=v(4,align=4); Ui=v(4,align=4)
    B2=[v(4,align=4),v(4,align=4)]
    def pack_split(dst,ur,ui):
        return [f"v_cvt_pk_bf16_f32 {dst[0]}, {ur[0]}, {ur[1]}",f"v_cvt_pk_bf16_f32 {dst[1]}, {ur[2]}, {ur[3]}",
                f"v_cvt_pk_bf16_f32 {dst[2]}, {ui[0]}, {ui[1]}",f"v_cvt_pk_bf16_f32 {dst[3]}, {ui[2]}, {ui[3]}"]
    k.stamp(3)
    for kap in range(4):
        k(f"s_waitcnt vmcnt({9-kap})")
        if kap==0: k.stamp(4)
        k(f"{MF} {Ar[0]}, {X[0][kap]}, {BR[kap]}, {0 if kap==0 else Ar[0]}")
        k(f"{MF} {Ai[0]}, {X[0][kap]}, {BI[kap]}, {0 if kap==0 else Ai[0]}")
    k("s_waitcnt vmcnt(2)")
    mf=[]
    for kap in range(4):
        mf.append(f"{MF} {Ar[1]}, {X[1][kap]}, {BR[kap]}, {0 if kap==0 else Ar[1]}")
        mf.append(f"{MF} {Ai[1]}, {X[1][kap]}, {BI[kap]}, {0 if kap==0 else Ai[1]}")
    va=cmul_tw(Ur,Ui,Ar[0],Ai[0],T1C[0:4],T1S[0:4])+pack_split(B2[0],Ur,Ui)
    k(mf[0]); k(mf[1]); k(mf[2])
    interleave(k,mf[3:],va,ratio=3)
    Fr=[v(4,align=4),v(4,align=4)]; Fi=[v(4,align=4),v(4,align=4)]
    mf=[]
    for t2 in range(2):
        mf.append(f"{MF} {Fr[t2]}, {CS[t2][0][2:6]}, {B2[0]}, 0")
        mf.append(f"{MF} {Fi[t2]}, {CS[t2][0][0:4]}, {B2[0]}, 0")
    va=cmul_tw(Ur,Ui,Ar[1],Ai[1],T1C[4:8],T1S[4:8])+pack_split(B2[1],Ur,Ui)
    for m in mf[:2]: k(m)
    interleave(k,mf[2:],va,ratio=4)
    for t2 in range(2):
        k(f"{MF} {Fr[t2]}, {CS[t2][1][2:6]}, {B2[1]}, {Fr[t2]}")
        k(f"{MF} {Fi[t2]}, {CS[t2][1][0:4]}, {B2[1]}, {Fi[t2]}")
    k.stamp(5)
    k("s_waitcnt vmcnt(0)")
    wr4=v(4,align=4); wi4=v(4,align=4)
    A3=[v(4,align=4),v(4,align=4)]
    unp=[]
    Wr=[wr4,T1C[0:4]]; Wi=[wi4,T1S[0:4]]
    for t2 in range(2):
        for r in range(4):
            k(f"v_lshlrev_b32 {Wr[t2][r]}, 16, {W[t2][r]}")
            k(f"v_and_b32 {Wi[t2][r]}, 0xffff0000, {W[t2][r]}")
    def filt(t2):
        out=[]
        for r in range(4):
            out.append(f"v_mul_f32 {Ur[r]}, {Fr[t2][r]}, {Wr[t2][r]}")
            out.append(f"v_mul_f32_e64 {Ui[r]}, -{Fr[t2][r]}, {Wi[t2][r]}")
        for r in range(4):
            out.append(f"v_fma_f32 {Ur[r]}, -{Fi[t2][r]}, {Wi[t2][r]}, {Ur[r]}")
            out.append(f"v_fma_f32 {Ui[r]}, -{Fi[t2][r]}, {Wr[t2][r]}, {Ui[r]}")
        return out+pack_split(A3[t2],Ur,Ui)
    for x in filt(0): k(x)
    Vr=Ar; Vi=Ai
    mf=[]
    for t in range(2):
        mf.append(f"{MF} {Vr[t]}, {A3[0]}, {CS[t][0][2:6]}, 0")
        mf.append(f"{MF} {Vi[t]}, {A3[0]}, {CS[t][0][0:4]}, 0")
    interleave(k,mf,filt(1),ratio=4)
    for t in range(2):
        k(f"{MF} {Vr[t]}, {A3[1]}, {CS[t][1][2:6]}, {Vr[t]}")
        k(f"{MF} {Vi[t]}, {A3[1]}, {CS[t][1][0:4]}, {Vi[t]}")
    G=[B2[0],B2[1]]
    for t in range(2):
        for x in cmul_tw(Ur,Ui,Vr[t],Vi[t],T2C[4*t:4*t+4],T2S[4*t:4*t+4]): k(x)
        for r in range(4): k(f"v_cvt_pk_bf16_f32 {G[t][r]}, {Ur[r]}, {Ui[r]}")
        k(f"ds_write_b128 {vlw}, {G[t]} offset:{t*4096}")
    k.stamp(6)
    k("s_waitcnt lgkmcnt(0)")
    k("s_barrier")
    k.stamp(7)
    for t in range(2):
        for kap in range(4):
            k(f"ds_read_b128 {X[t][kap]}, {vo} offset:{(t*4+kap)*1024}")
    Yr=Fr; Yi=Fi
    for t in range(2):
        for kap in range(4):
            k(f"s_waitcnt lgkmcnt({7-(t*4+kap)})")
            k(f"{MF} {Yr[t]}, {BR[kap]}, {X[t][kap]}, {0 if kap==0 else Yr[t]}")
            k(f"{MF} {Yi[t]}, {BI[kap]}, {X[t][kap]}, {0 if kap==0 else Yi[t]}")
    for t in range(2):
        for r in range(4): k(f"v_cvt_pk_bf16_f32 {G[t][r]}, {Yr[t][r]}, -{Yi[t][r]}")
        k(f"buffer_store_dwordx4 {G[t]}, {vo if t==0 else vo2}, {Ry}, {so3} offen")
    k.stamp_flush(1)
    k(f"{END}:\ns_endpgm")
    k.reset_regs()
    k(f"{EXTRA}:")
    k2_extras(k,END)
    code,desc=k.finish()
    return (k,code,desc)
if __name__=='__main__':
    from k0 import build_k0
    from k1 import build_k1
    build_file([build_k0(),build_k1(),build_k2(NAME)],'t_k2.s')
```

```python
from common import *
import os
MF16x32="v_mfma_f32_16x16x32_bf16"; MF16="v_mfma_f32_16x16x16_bf16"; MF="v_mfma_f32_32x32x16_bf16"
MAT=14464; CHUNK=2*MAT; NB=5
SCR=4*CHUNK
L_Y=SCR; L_H=SCR+8320; L_X=L_H+8704
L_MOD=NB*CHUNK
LDS=L_MOD+8192
SPIN=0x20000
E_=lambda n,d: int(os.environ.get(n,d))
N2=E_('N2',0); WE=E_('WE',2); WUP=E_('WUP',0); PACE=E_('PACE',5); U5=E_('U5',10); TUP=E_('TUP',24); TPS=E_('TPS',1); V0=E_('V0',8); V1=E_('V1',30)
class VM:
    def __init__(s,k): s.k=k; s.ops=[]
    def op(s,text,tag=None):
        s.k(text); s.ops.append(tag); assert len(s.ops)<=63,len(s.ops)
    def wait(s,*tags,force=False):
        idx=[i for i,t in enumerate(s.ops) if t in tags]
        if not idx: return
        n=len(s.ops)-1-max(idx)
        s.k(f"s_waitcnt vmcnt({n})"); s.ops=s.ops[len(s.ops)-n:]
    def drain(s): s.k("s_waitcnt vmcnt(0)"); s.ops=[]

def build_k345(name=NAME, N1=int(os.environ.get('N1','16')), D5=24, kidx=3):
    k=Kernel(name,256,256,lds=LDS)
    v,s,a=k.v,k.s,k.a
    vm=VM(k)
    ST=os.environ.get('ST','a')
    def stamp(set_,i):
        if set_ in ST: k.stamp(i)
    END=k.label('END')
    px=s(2); pgu=s(4); pout=s(2); pws=s(2)
    w,t0,t1,tb,fb,beta,row=s(),s(),s(),s(),s(),s(),s()
    lane,tv,vtok,zero,vfl,one,vf=v(),v(),v(),v(),v(),v(),v()
    vd=[v() for _ in range(7)]; vA=[v() for _ in range(NB)]
    resv=v.at(v.hi,24-v.hi)
    vi,vg=v(),v()
    k(f"""
s_cmp_ge_u32 s2, 256
s_cbranch_scc1 {END}""")
    k.stamp_init()
    k(f"""
s_load_dwordx2 {pws}, s[0:1], {ARG['ws']}
s_load_dwordx2 {px}, s[0:1], {ARG['x']}
s_load_dwordx4 {pgu}, s[0:1], {ARG['wg']}
s_load_dwordx2 {pout}, s[0:1], {ARG['out']}
v_lshrrev_b32 {tv}, 6, v0
v_and_b32 {lane}, 63, v0
v_readfirstlane_b32 {w}, {tv}
v_and_b32 {vi}, 15, v0
v_bfe_u32 {vg}, v0, 4, 2
v_lshlrev_b32 {vtok}, 4, {lane}
s_and_b32 {t0}, s2, 7            ; x
s_lshr_b32 {t1}, s2, 3           ; slot
s_and_b32 {tb}, {t0}, 1
s_lshl_b32 {tb}, {tb}, 3
s_lshr_b32 {fb}, {t0}, 1
s_lshl_b32 {fb}, {fb}, 2
s_and_b32 {t0}, {t1}, 7
s_add_u32 {tb}, {tb}, {t0}
s_lshr_b32 {t0}, {t1}, 3
s_add_u32 {fb}, {fb}, {t0}
s_lshl_b32 {beta}, {tb}, 4
s_add_u32 {beta}, {beta}, {fb}
""")
    row_of_pos(k,row,beta,w,t0,t1)
    k(f"s_lshl_b32 {row}, {row}, 10")
    vy,vxo=v(),v()
    sy0,sy1,sny,smod=s(),s(),s(),s()
    k(f"""
v_and_b32 {tv}, 1, v0
v_lshrrev_b32 {vy}, 1, v0
v_lshlrev_b32 {vy}, 13, {vy}
v_lshl_add_u32 {vy}, {tv}, 4, {vy}       ; k*8192 + half*16
s_lshl_b32 {sy0}, {beta}, 5
s_add_u32 {sy0}, {sy0}, {WS_Y:#x}
s_add_u32 {sy1}, {sy0}, {128*8192:#x}
s_lshl_b32 {sny}, {beta}, 3
s_add_u32 {sny}, {sny}, {w}
s_lshl_b32 {sny}, {sny}, 2
s_add_u32 {sny}, {sny}, {WS_Y+256*8192:#x}
v_lshlrev_b32 {vxo}, 5, {vi}
v_lshl_add_u32 {vxo}, {vg}, 3, {vxo}
s_lshl_b32 {smod}, {w}, 11
s_add_u32 {t1}, {smod}, {L_MOD}
s_add_u32 {smod}, {smod}, {WS_MOD2:#x}
""")
    Rws,Rx,Rw=s(4),s(4),s(4)
    k(f"v_mov_b32 {zero}, 0")
    k(f"s_mov_b32 m0, {t1}")
    mat,dh,sm0,schunk=s(),s(),s(),s()
    k(f"""
s_and_b32 {mat}, {w}, 1
s_lshr_b32 {dh}, {w}, 1
s_mul_i32 {t0}, {dh}, {32*3584}
s_mul_i32 {t1}, {fb}, 224
s_add_u32 {t0}, {t0}, {t1}
s_mul_i32 {sm0}, {mat}, {MAT}
s_mul_i32 {t1}, {dh}, 7168
s_add_u32 {sm0}, {sm0}, {t1}
s_mov_b32 {schunk}, 0
""")
    s.free(dh)
    p,rw=v(),v()
    cdiv=s(); k(f"s_mov_b32 {cdiv}, 4682")
    for n in range(7):
        k(f"v_add_u32 {p}, {64*n}, {lane}")
        k(f"v_mul_u32_u24 {rw}, {cdiv}, {p}")
        k(f"v_lshrrev_b32 {rw}, 16, {rw}")
        k(f"v_mul_u32_u24 {tv}, 14, {rw}")
        k(f"v_sub_u32 {p}, {p}, {tv}")
        k(f"v_mul_u32_u24 {rw}, 3584, {rw}")
        k(f"v_lshl_add_u32 {vd[n]}, {p}, 4, {rw}")
        k(f"v_add_u32 {vd[n]}, {t0}, {vd[n]}")
        if n&3: k(f"v_subrev_u32 {vd[n]}, {(n&3)*1024}, {vd[n]}")
    v.free(p,rw); s.free(cdiv)
    keepC=[]
    def cv(n=1,align=None):
        r=v(n,align); keepC.append(r); return r
    fi,fg,f,arg,c0,s0,c1,s1,mi=cv(),cv(),cv(),cv(),cv(),cv(),cv(),cv(),cv()
    k(f"""
v_cvt_f32_u32 {fi}, {vi}
v_cvt_f32_u32 {fg}, {vg}
v_and_b32 {tv}, 1, {vi}
v_mul_u32_u24 {mi}, 0x8000, {tv}
v_lshl_or_b32 {mi}, {mi}, 16, {mi}
""")
    BAr=cv(2); BAi=cv(2)
    k(f"v_mul_f32 {f}, 0x3d800000, {fi}")
    k(f"v_add_f32 {arg}, {fg}, {fg}")
    k(f"v_mul_f32 {arg}, {arg}, {f}")
    for b in range(2):
        k(f"v_cos_f32 {c0}, {arg}")
        k(f"v_sin_f32 {s0}, {arg}")
        if b==0: k(f"v_add_f32 {arg}, {arg}, {f}")
        k(f"v_cvt_pk_bf16_f32 {BAr[b]}, {c0}, -{s0}")
        k(f"v_cvt_pk_bf16_f32 {BAi[b]}, {s0}, {c0}")
    TC=cv(8,align=4); TS=cv(8,align=4); f13,g4=cv(),cv()
    k(f"v_mul_f32 {g4}, 4.0, {fg}")
    k(f"v_mul_f32 {f}, 0x3b000000, {fi}")
    k(f"v_mul_f32 {f13}, 0x41500000, {f}")
    k(f"v_mul_f32 {arg}, {g4}, {f}")
    for u in range(2):
        for r in range(4):
            k(f"v_cos_f32 {TC[4*u+r]}, {arg}")
            k(f"v_sin_f32 {TS[4*u+r]}, {arg}")
            if not(u==1 and r==3): k(f"v_add_f32 {arg}, {arg}, {f if r<3 else f13}")
    k("s_waitcnt lgkmcnt(0)")
    stamp('a',1)
    srd(k,Rws,pws,0x1400000); srd(k,Rx,px,2048*1024)
    yv=[v(4,align=4),v(4,align=4)]; ny=v(2); xr=[[v(2),v(2)] for j in range(2)]
    vm.op(f"buffer_load_dwordx4 {yv[0]}, {vy}, {Rws}, {sy0} offen",'y')
    vm.op(f"buffer_load_dwordx4 {yv[1]}, {vy}, {Rws}, {sy1} offen",'y')
    vm.op(f"buffer_load_dwordx4 {vtok}, {Rws}, {smod} offen lds",'mod')
    vm.op(f"buffer_load_dwordx4 {vtok}, {Rws}, {smod} offen offset:1024 lds",'mod')
    for j in range(2): vm.op(f"buffer_load_short_d16_hi {ny[j]}, {zero}, {Rws}, {sny} offen offset:{16*j}",'ny')
    for j in range(2):
        for t in range(2): vm.op(f"buffer_load_dwordx2 {xr[j][t]}, {vxo}, {Rx}, {row} offen offset:{512*t+1024*j}",'x')
    s.free(sy0,sy1,sny,smod,row); s.free(px)
    k(f"""
s_cmp_eq_u32 {mat}, 0
s_cselect_b32 {Rw[0]}, {pgu[0]}, {pgu[2]}
s_cselect_b32 {Rw[1]}, {pgu[1]}, {pgu[3]}
s_mov_b32 {Rw[2]}, {512*3584}
s_mov_b32 {Rw[3]}, 0x00020000
""")
    s.free(mat,pgu)
    def wgroup(c):
        out=[]; slot=c%NB
        for n in range(7):
            pre=""
            if n==0: pre=f"s_add_u32 m0, {sm0}, {slot*CHUNK}\ns_nop 0\n"
            if n==4: pre=f"s_add_u32 m0, {sm0}, {slot*CHUNK+4096}\ns_nop 0\n"
            post=f"\ns_add_u32 {schunk}, {schunk}, {64*3584}" if n==6 else ""
            out.append((pre+f"buffer_load_dwordx4 {vd[n]}, {Rw}, {schunk} offen offset:{(n&3)*1024} lds"+post, f"W{c}"))
        return out
    early=[]
    for c in range(WE): early+=wgroup(c)
    for _ in range(WUP): x,tg=early.pop(0); vm.op(x,tg)
    class Pacer:
        def __init__(s): s.n=0; s.on=True; s.busy=False
        def __call__(s,text):
            for l in text.split('\n'):
                l=l.strip()
                if not l: continue
                k0(l)
                if s.on and not s.busy and early:
                    s.n+=1
                    if s.n%PACE==0:
                        s.busy=True; x,tg=early.pop(0); vm.op(x,tg); s.busy=False
        def __getattr__(s,n): return getattr(k0,n)
    k0=k; k=Pacer(); vm.k=k
    stamp('a',2)
    BB=[[cv(4,align=4) for u in range(2)] for t in range(2)]
    cc4=cv(4,align=2); ss4=cv(4,align=2)
    k(f"v_mul_f32 {f}, 0x3d000000, {fi}")
    k(f"v_mul_f32 {arg}, {g4}, {f}")
    for j in range(4):
        k(f"v_cos_f32 {cc4[j]}, {arg}")
        k(f"v_sin_f32 {ss4[j]}, {arg}")
        if j<3: k(f"v_add_f32 {arg}, {arg}, {f}")
    b00=BB[0][0]
    k(f"v_cvt_pk_bf16_f32 {b00[0]}, {cc4[0]}, {cc4[1]}")
    k(f"v_cvt_pk_bf16_f32 {b00[1]}, {cc4[2]}, {cc4[3]}")
    k(f"v_cvt_pk_bf16_f32 {b00[2]}, -{ss4[0]}, -{ss4[1]}")
    k(f"v_cvt_pk_bf16_f32 {b00[3]}, -{ss4[2]}, -{ss4[3]}")
    for j in range(4): k(f"v_xor_b32 {BB[0][1][j]}, {mi}, {b00[j]}")
    for j in range(4): k(f"v_xor_b32 {BB[1][0][j]}, 0x80000000, {b00[j]}")
    for j in range(4): k(f"v_xor_b32 {BB[1][1][j]}, 0x80000000, {BB[0][1][j]}")
    cny=cv()
    k(f"""
v_lshlrev_b32 {tv}, 31, {vi}
v_or_b32 {tv}, 1.0, {tv}
v_cmp_eq_u32 vcc, 0, {vg}
v_cndmask_b32 {cny}, 0, {tv}, vcc
""")
    vlw,vlr,vl2w,vl2r,vst,vxs=cv(),cv(),cv(),cv(),cv(),cv()
    sh2,sx1=s(),s()
    k(f"""
v_and_b32 {tv}, 1, v0
v_mul_u32_u24 {vlw}, 4160, {tv}
v_lshrrev_b32 {tv}, 1, v0
v_lshl_add_u32 {vlw}, {tv}, 2, {vlw}
v_add_u32 {vlw}, {L_Y}, {vlw}              ; half*4160 + k*4
s_mul_i32 {t0}, {w}, 1040
s_add_u32 {t0}, {t0}, {L_Y}
v_lshlrev_b32 {vlr}, 8, {vg}
v_lshl_add_u32 {vlr}, {vi}, 2, {vlr}
v_add_u32 {vlr}, {t0}, {vlr}               ; w*1040 + (i+64g)*4
s_lshl_b32 {t0}, {w}, 4
s_add_u32 {t0}, {t0}, {L_H}
v_mul_u32_u24 {vl2w}, 272, {vi}
v_lshrrev_b32 {tv}, 1, {vg}
v_lshl_add_u32 {vl2w}, {tv}, 7, {vl2w}
v_and_b32 {tv}, 1, {vg}
v_lshl_add_u32 {vl2w}, {tv}, 3, {vl2w}
v_add_u32 {vl2w}, {t0}, {vl2w}             ; i*272 + (g>>1)*128 + w*16 + (g&1)*8   (+ t*16*272 + j*64)
v_lshrrev_b32 {tv}, 4, v0                  ; p>>1
v_mul_u32_u24 {vl2r}, 272, {tv}
v_and_b32 {tv}, 15, v0                     ; (p&1)*8 + row
v_lshl_add_u32 {vl2r}, {tv}, 4, {vl2r}
v_add_u32 {vl2r}, {L_H}, {vl2r}
v_lshrrev_b32 {tv}, 3, v0                  ; p
v_lshlrev_b32 {vst}, 9, {tv}
v_and_b32 {tv}, 7, v0
v_lshl_add_u32 {vst}, {tv}, 4, {vst}       ; p*512 + row*16
s_lshr_b32 {sh2}, {beta}, 2
s_lshl_b32 {sh2}, {sh2}, 15
s_and_b32 {t1}, {beta}, 3
s_lshl_b32 {t1}, {t1}, 7
s_add_u32 {sh2}, {sh2}, {t1}
s_add_u32 {sh2}, {sh2}, {WS_H2F:#x}
s_lshl_b32 {sx1}, {beta}, 3
s_add_u32 {sx1}, {sx1}, {w}
s_lshl_b32 {sx1}, {sx1}, 10
s_add_u32 {sx1}, {sx1}, {WS_X1R:#x}
s_lshl_b32 {t0}, {w}, 11
s_add_u32 {t0}, {t0}, {L_X}
v_add_u32 {vxs}, {t0}, {vxo}
""")
    vxsr=cv(); k(f"v_add_u32 {vxsr}, {t0}, {vtok}")
    vmr=cv(); k(f"v_add_u32 {vmr}, {L_MOD}, {vtok}")
    stamp('a',3)
    k.on=False
    while early: x,tg=early.pop(0); vm.op(x,tg)
    vm.wait('y')
    stamp('a',4)
    for jj in range(2):
        for e in range(4): k(f"ds_write_b32 {vlw}, {yv[jj][e]} offset:{1040*e+512*jj}")
    vm.wait('mod')
    k("s_waitcnt lgkmcnt(0)")
    k("s_barrier")
    Ad=[[[cv() for b in range(2)] for u in range(2)] for j in range(2)]
    Ad=[[cv(2) for u in range(2)] for j in range(2)]
    for j in range(2):
        for u in range(2):
            for b in range(2):
                k(f"ds_read_b32 {Ad[j][u][b]}, {vlr} offset:{4160*j+64*u+128*b}")
    ga=[cv(4,align=4),cv(4,align=4)]; sb=[cv(4,align=4),cv(4,align=4)]; cb=[cv(4,align=4),cv(4,align=4)]
    for t in range(2): k(f"ds_read_b128 {ga[t]}, {vmr} offset:{1024*t}")
    Dr=[[cv(4,align=4),cv(4,align=4)] for j in range(2)]; Di=[[cv(4,align=4),cv(4,align=4)] for j in range(2)]
    nrd=10
    for j in range(2):
        for u in range(2):
            k(f"s_waitcnt lgkmcnt({nrd-2*(2*j+u+1)})")
            k(f"{MF16} {Dr[j][u]}, {Ad[j][u]}, {BAr}, 0")
            k(f"{MF16} {Di[j][u]}, {Ad[j][u]}, {BAi}, 0")
    for t in range(2): k(f"ds_read_b128 {sb[t]}, {vmr} offset:{2048+1024*t}")
    for t in range(2): k(f"ds_read_b128 {cb[t]}, {vmr} offset:{4096+1024*t}")
    vm.wait('ny')
    Ur=[cv(4,align=4),cv(4,align=4)]; Ui=[cv(4,align=4),cv(4,align=4)]
    AB=[[cv(4,align=4),cv(4,align=4)] for j in range(2)]
    Yo=[[cv(4,align=4),cv(4,align=4)] for j in range(2)]
    for j in range(2): k(f"v_fmac_f32 {Dr[j][0][0]}, {cny}, {ny[j]}")
    for u in range(2):
        for j in range(2):
            for r in range(4):
                k(f"v_mul_f32 {Ur[j][r]}, {Dr[j][u][r]}, {TC[4*u+r]}")
                k(f"v_mul_f32 {Ui[j][r]}, {Di[j][u][r]}, {TC[4*u+r]}")
            for r in range(4):
                k(f"v_fma_f32 {Ur[j][r]}, -{Di[j][u][r]}, {TS[4*u+r]}, {Ur[j][r]}")
                k(f"v_fmac_f32 {Ui[j][r]}, {Dr[j][u][r]}, {TS[4*u+r]}")
            k(f"v_cvt_pk_bf16_f32 {AB[j][u][0]}, {Ur[j][0]}, {Ur[j][1]}")
            k(f"v_cvt_pk_bf16_f32 {AB[j][u][1]}, {Ur[j][2]}, {Ur[j][3]}")
            k(f"v_cvt_pk_bf16_f32 {AB[j][u][2]}, {Ui[j][0]}, {Ui[j][1]}")
            k(f"v_cvt_pk_bf16_f32 {AB[j][u][3]}, {Ui[j][2]}, {Ui[j][3]}")
            for t in range(2):
                k(f"{MF16x32} {Yo[j][t]}, {AB[j][u]}, {BB[t][u]}, {0 if u==0 else Yo[j][t]}")
    stamp('a',5)
    vm.wait('x')
    x1=[cv(8,align=4),cv(8,align=4)]
    def unpack(j):
        for t in range(2):
            k(f"v_lshlrev_b32 {x1[j][4*t+0]}, 16, {xr[j][t][0]}")
            k(f"v_and_b32 {x1[j][4*t+1]}, 0xffff0000, {xr[j][t][0]}")
            k(f"v_lshlrev_b32 {x1[j][4*t+2]}, 16, {xr[j][t][1]}")
            k(f"v_and_b32 {x1[j][4*t+3]}, 0xffff0000, {xr[j][t][1]}")
    for j in range(2): unpack(j)
    k("s_waitcnt lgkmcnt(0)")
    for j in range(2):
        for t in range(2):
            for r in range(4): k(f"v_fmac_f32 {x1[j][4*t+r]}, {ga[t][r]}, {Yo[j][t][r]}")
        for t in range(2):
            k(f"v_cvt_pk_bf16_f32 {xr[j][t][0]}, {x1[j][4*t+0]}, {x1[j][4*t+1]}")
            k(f"v_cvt_pk_bf16_f32 {xr[j][t][1]}, {x1[j][4*t+2]}, {x1[j][4*t+3]}")
        for t in range(2): k(f"ds_write_b64 {vxs}, {xr[j][t]} offset:{1024*j+512*t}")
    for j in range(2): unpack(j)
    k("s_waitcnt lgkmcnt(0)")
    for j in range(2): k(f"ds_read_b128 {yv[j]}, {vxsr} offset:{1024*j}")
    sm=[cv(),cv()]; tt=[cv(),cv()]; ca=[c0,c1]; cb_=[s0,s1]
    def both(fn):
        for j in range(2): fn(j)
    for j in range(2):
        X=x1[j]
        k(f"v_add_f32 {sm[j]}, {X[0]}, {X[1]}")
        k(f"v_add_f32 {tt[j]}, {X[2]}, {X[3]}")
        k(f"v_add_f32 {ca[j]}, {X[4]}, {X[5]}")
        k(f"v_add_f32 {cb_[j]}, {X[6]}, {X[7]}")
    for j in range(2):
        k(f"v_add_f32 {sm[j]}, {sm[j]}, {tt[j]}")
        k(f"v_add_f32 {ca[j]}, {ca[j]}, {cb_[j]}")
    for j in range(2): k(f"v_add_f32 {sm[j]}, {sm[j]}, {ca[j]}")
    def allreduce2():
        for r in (8,4,2,1):
            for j in range(2): k(f"v_add_f32_dpp {sm[j]}, {sm[j]}, {sm[j]} row_ror:{r} row_mask:0xf bank_mask:0xf")
        for sw in ('16','32'):
            for j in range(2): k(f"v_mov_b32 {tt[j]}, {sm[j]}")
            for j in range(2): k(f"v_permlane{sw}_swap_b32 {sm[j]}, {tt[j]}")
            for j in range(2): k(f"v_add_f32 {sm[j]}, {sm[j]}, {tt[j]}")
    allreduce2()
    k("s_waitcnt lgkmcnt(0)")
    for j in range(2):
        pass
    vm.op(f"buffer_store_dwordx4 {yv[0]}, {vtok}, {Rws}, {sx1} offen sc1",'st')
    k(f"s_add_u32 {sx1}, {sx1}, 4096")
    vm.op(f"buffer_store_dwordx4 {yv[1]}, {vtok}, {Rws}, {sx1} offen sc1",'st')
    s.free(sx1)
    for j in range(2): k(f"v_mul_f32 {sm[j]}, 0xbb000000, {sm[j]}")
    for j in range(2):
        for q in range(8): k(f"v_add_f32 {x1[j][q]}, {x1[j][q]}, {sm[j]}")
    for j in range(2):
        k(f"v_mul_f32 {sm[j]}, {x1[j][0]}, {x1[j][0]}")
        k(f"v_mul_f32 {ca[j]}, {x1[j][1]}, {x1[j][1]}")
    for q in range(2,8,2):
        for j in range(2):
            k(f"v_fmac_f32 {sm[j]}, {x1[j][q]}, {x1[j][q]}")
            k(f"v_fmac_f32 {ca[j]}, {x1[j][q+1]}, {x1[j][q+1]}")
    for j in range(2): k(f"v_add_f32 {sm[j]}, {sm[j]}, {ca[j]}")
    allreduce2()
    for j in range(2):
        k(f"v_mov_b32 {tt[j]}, 0x3727c5ac")
        k(f"v_fmac_f32 {tt[j]}, 0x3b000000, {sm[j]}")
    for j in range(2): k(f"v_rsq_f32 {tt[j]}, {tt[j]}")
    for j in range(2):
        for q in range(8): k(f"v_mul_f32 {x1[j][q]}, {x1[j][q]}, {tt[j]}")
    for j in range(2):
        for t in range(2):
            for r in range(4): k(f"v_fma_f32 {x1[j][4*t+r]}, {x1[j][4*t+r]}, {cb[t][r]}, {sb[t][r]}")
        for t in range(2):
            k(f"v_cvt_pk_bf16_f32 {xr[j][t][0]}, {x1[j][4*t+0]}, {x1[j][4*t+1]}")
            k(f"v_cvt_pk_bf16_f32 {xr[j][t][1]}, {x1[j][4*t+2]}, {x1[j][4*t+3]}")
            k(f"ds_write_b64 {vl2w}, {xr[j][t]} offset:{t*16*272+64*j}")
    k("s_waitcnt lgkmcnt(0)")
    k("s_barrier")
    hv=[x1[0][0:4],x1[1][0:4]]
    for jj in range(2): k(f"ds_read_b128 {hv[jj]}, {vl2r} offset:{jj*16*272}")
    k("s_waitcnt lgkmcnt(1)")
    vm.op(f"buffer_store_dwordx4 {hv[0]}, {vst}, {Rws}, {sh2} offen sc1",'st')
    k(f"s_add_u32 {sh2}, {sh2}, {32*512}")
    k("s_waitcnt lgkmcnt(0)")
    vm.op(f"buffer_store_dwordx4 {hv[1]}, {vst}, {Rws}, {sh2} offen sc1",'st')
    s.free(sh2)
    k=k0; vm.k=k
    for c in range(WE,4):
        for x,tg in wgroup(c): vm.op(x,tg)
    stamp('a',6)
    sfl=s()
    k(f"s_lshl_b32 {sfl}, {beta}, 7")
    k(f"s_add_u32 {sfl}, {sfl}, {WS_FLG:#x}")
    k(f"v_mov_b32 {one}, 1")
    def publish(lab):
        vm.drain()
        k("s_barrier")
        k(f"s_cmp_lg_u32 {w}, 0")
        k(f"s_cbranch_scc1 {lab}")
        k("s_mov_b64 exec, 1")
        k(f"buffer_store_dword {one}, {zero}, {Rws}, {sfl} offen sc1")
        k("s_mov_b64 exec, -1")
        k(f"{lab}:")
        vm.ops.append('flag')
    publish(k.label('PUB'))
    stamp('a',7)
    for r in keepC: v.free(r)
    v.free(vy,vxo,ny,vi,vg,*yv)
    for j in range(2): v.free(*xr[j])
    acc=[v.at(24+16*q,16) for q in range(7)]
    fr=[[v.at(136+28*b+4*q,4) for q in range(7)] for b in range(2)]
    W2=v.at(192,64)
    v.free(resv)
    tok=a(128,align=4); W1=a(128,align=4)
    Wf=[W1[4*q:4*q+4] for q in range(32)]+[W2[4*q:4*q+4] for q in range(16)]+[tok[4*q:4*q+4] for q in range(8)]
    tb5,nb,sw5=s(),s(),s()
    k(f"""
s_and_b32 {t0}, s2, 7
s_lshr_b32 {t1}, s2, 3
s_lshl_b32 {tb5}, {t0}, 2
s_and_b32 {t0}, {t1}, 3
s_add_u32 {tb5}, {tb5}, {t0}
s_lshr_b32 {nb}, {t1}, 2
s_mul_i32 {sw5}, {nb}, {112*2048}
s_mul_i32 {t0}, {w}, {28*2048}
s_add_u32 {sw5}, {sw5}, {t0}
s_add_u32 {sw5}, {sw5}, {WS_WDF:#x}
""")
    w5=[]
    for q in range(56):
        post=f"\ns_add_u32 {sw5}, {sw5}, 4096" if q&3==3 else ""
        w5.append((f"buffer_load_dwordx4 {Wf[q]}, {vtok}, {Rws}, {sw5} offen offset:{(q&3)*1024}"+post, f"V{q}"))
    for x,tg in wgroup(4): vm.op(x,tg)
    for _ in range(N1): x,tg=w5.pop(0); vm.op(x,tg)
    cnt=s(); spo=s()
    def poll(lab):
        P,Dn=k.label(lab),k.label(lab+'D')
        k(f"""
s_mov_b32 {cnt}, 0
s_mov_b64 exec, 15
{P}:
buffer_load_dword {vf}, {vfl}, {Rws}, {spo} offen sc1
s_add_u32 {cnt}, {cnt}, 1
s_waitcnt vmcnt(0)
v_cmp_eq_u32 vcc, 0, {vf}
s_cbranch_vccz {Dn}
s_cmp_lt_u32 {cnt}, {SPIN:#x}
s_cbranch_scc1 {P}
{Dn}:
s_mov_b64 exec, -1
""")
        vm.ops=[]
    stok,tt4=s(),s()
    k(f"""
v_lshlrev_b32 {vfl}, 7, {lane}
s_lshl_b32 {spo}, {tb}, 4
s_lshl_b32 {t0}, {w}, 2
s_add_u32 {spo}, {spo}, {t0}
s_lshl_b32 {spo}, {spo}, 7
s_add_u32 {spo}, {spo}, {WS_FLG:#x}
s_lshl_b32 {tt4}, {tb}, 2
s_add_u32 {tt4}, {tt4}, {w}
s_lshl_b32 {stok}, {tt4}, 15
s_add_u32 {stok}, {stok}, {WS_H2F:#x}
""")
    c_,r_,G_=v(),v(),v()
    k(f"""
v_and_b32 {c_}, 3, {lane}
v_bfe_u32 {r_}, {lane}, 2, 2
v_lshrrev_b32 {G_}, 4, {lane}
v_lshrrev_b32 {tv}, 1, {c_}
v_mul_u32_u24 {vA[0]}, {MAT}, {tv}
v_lshrrev_b32 {tv}, 1, {G_}
v_lshl_add_u32 {tv}, {tv}, 3, {r_}
v_mul_u32_u24 {tv}, 224, {tv}
v_add_u32 {vA[0]}, {vA[0]}, {tv}
v_and_b32 {tv}, 1, {c_}
v_lshl_add_u32 {vA[0]}, {tv}, 4, {vA[0]}
v_and_b32 {tv}, 1, {G_}
v_lshl_add_u32 {vA[0]}, {tv}, 3, {vA[0]}
""")
    for b in range(1,NB): k(f"v_add_u32 {vA[b]}, {b*CHUNK}, {vA[0]}")
    v.free(c_,r_,G_)
    def reads(c,kap,buf):
        out=[]
        for t7 in range(7):
            for e in range(2):
                out.append(f"ds_read_b64_tr_b16 {fr[buf][t7][2*e:2*e+2]}, {vA[c%NB]} offset:{kap*3584+e*896+t7*32}")
        return out
    sst=s()
    k(f"""
s_mul_i32 {sst}, {tt4}, 112
s_mul_i32 {t0}, {fb}, 7
s_add_u32 {sst}, {sst}, {t0}
s_lshl_b32 {sst}, {sst}, 10
s_add_u32 {sst}, {sst}, {WS_HHF:#x}
""")
    for x in reads(0,0,0): k(x)
    poll('POLLA')
    stamp('a',8); stamp('b',1)
    tl=[]
    for c in range(8):
        for kap in range(4):
            post=f"\ns_add_u32 {stok}, {stok}, 4096" if kap==3 else ""
            tl.append((f"buffer_load_dwordx4 {tok[16*c+4*kap:16*c+4*kap+4]}, {vtok}, {Rws}, {stok} offen offset:{kap*1024} sc1"+post, f"T{c}{kap}"))
    for _ in range(TUP): x,tg=tl.pop(0); vm.op(x,tg)
    stamp('b',2)
    pend=[]; step=0
    nsteps=32
    w5late=w5[len(w5)-N2:] if N2 else []
    w5=w5[:len(w5)-N2]
    left=len(w5)
    sched={}
    first=V0; lastst=V1
    for q in range(left):
        st=first+(q*(lastst-first+1))//left
        sched[st]=sched.get(st,0)+1
    for c in range(8):
        for kap in range(4):
            buf=step&1
            last=(c==7 and kap==3)
            nc,nk=(c,kap+1) if kap<3 else (c+1,0)
            rd=[] if last else reads(nc,nk,buf^1)
            if kap==0 and c==1: stamp('b',3)
            if kap==0 and c==3: stamp('b',4)
            if kap==0 and c==5: stamp('b',5)
            if kap==3 and c<7:
                k("s_waitcnt lgkmcnt(0)")
                vm.wait(f"T{c}{kap}", f"W{c+1}")
                k("s_barrier")
                if c+NB<8: pend=pend+wgroup(c+NB)
            else:
                k("s_waitcnt lgkmcnt(8)")
                vm.wait(f"T{c}{kap}")
            extra=[]
            for _ in range(TPS):
                if tl: extra.append(tl.pop(0))
            for _ in range(sched.get(step,0)):
                x,tg=w5.pop(0)
                q=int(tg[1:])
                assert q<48 or step>=8, (q,step)
                extra.append((x,tg))
            ri=0
            for t7 in range(7):
                if t7==3 and not(kap==3 and c<7):
                    k(f"s_waitcnt lgkmcnt({0 if last else 9})")
                cin = 0 if step==0 else acc[t7]
                k(f"{MF} {acc[t7]}, {fr[buf][t7]}, {tok[16*c+4*kap:16*c+4*kap+4]}, {cin}")
                nrd=3 if t7<4 else 2
                for _ in range(nrd):
                    if ri<len(rd): k(rd[ri]); ri+=1
                if t7 in (1,3,5) and pend: x,tg=pend.pop(0); vm.op(x,tg)
                if (t7 in (0,2,4,6) or (t7 in (1,3,5) and not pend)) and extra: x,tg=extra.pop(0); vm.op(x,tg)
            assert ri==len(rd) and not extra
            step+=1
    assert not pend and not w5
    stamp('b',6); stamp('c',1)
    o=[fr[0][0],fr[0][1]]
    for t7 in range(7):
        A=acc[t7]; oo=o[t7&1]
        for r in range(4):
            k(f"v_mul_f32 {A[r]}, {A[r]}, {A[4+r]}")
            k(f"v_mul_f32 {A[8+r]}, {A[8+r]}, {A[12+r]}")
        k(f"v_cvt_pk_bf16_f32 {oo[0]}, {A[0]}, {A[1]}")
        k(f"v_cvt_pk_bf16_f32 {oo[1]}, {A[2]}, {A[3]}")
        k(f"v_cvt_pk_bf16_f32 {oo[2]}, {A[8]}, {A[9]}")
        k(f"v_cvt_pk_bf16_f32 {oo[3]}, {A[10]}, {A[11]}")
        if t7==4: k(f"s_add_u32 {sst}, {sst}, 4096")
        vm.op(f"buffer_store_dwordx4 {oo}, {vtok}, {Rws}, {sst} offen offset:{(t7&3)*1024} sc1",'st')
    stamp('c',2)
    k(f"s_add_u32 {sfl}, {sfl}, {256*128}")
    v.free(*vd); v.free(*vA)
    RED=0; WST=64*272
    vx1,vout,vgb,vrr,vrw=v(),v(),v(),v(),v()
    tau,pos,u1=v(),v(),v()
    sx5,stok5=stok,sst
    stk2=s()
    k(f"""
v_lshrrev_b32 {tau}, 2, v0
s_lshl_b32 {t0}, {tb5}, 6
v_add_u32 {pos}, {t0}, {tau}
v_and_b32 {tv}, 3, v0
v_lshlrev_b32 {vgb}, 5, {tv}
s_lshl_b32 {t0}, {nb}, 7
v_add_u32 {vgb}, {t0}, {vgb}                    ; nb*128 + c*32
v_lshl_add_u32 {vx1}, {pos}, 10, {vgb}
v_bfe_u32 {u1}, {pos}, 8, 2
v_lshlrev_b32 {vout}, 9, {u1}                   ; 512*kap
v_bfe_u32 {u1}, {pos}, 6, 2
v_lshl_add_u32 {vout}, {u1}, 7, {vout}          ; +128 g
v_and_b32 {u1}, 3, {pos}
v_lshl_add_u32 {vout}, {u1}, 5, {vout}          ; +32 e
v_lshrrev_b32 {u1}, 10, {pos}
v_lshl_add_u32 {vout}, {u1}, 4, {vout}          ; +16 t
v_bfe_u32 {u1}, {pos}, 2, 4
v_add_u32 {vout}, {vout}, {u1}                  ; + i
v_lshl_add_u32 {vout}, {vout}, 10, {vgb}        ; s*1024 + nb*128 + c*32
v_lshlrev_b32 {vgb}, 1, {vgb}
v_add_u32 {vgb}, {L_MOD+6144}, {vgb}
v_mul_u32_u24 {vrr}, 272, {tau}
v_lshl_add_u32 {vrr}, {tv}, 6, {vrr}            ; tau*272 + c*64
s_mul_i32 {t0}, {w}, {WST}
v_and_b32 {tv}, 31, {lane}
v_mul_u32_u24 {vrw}, 272, {tv}
v_lshrrev_b32 {tv}, 5, {lane}
v_lshl_add_u32 {vrw}, {tv}, 4, {vrw}
v_add_u32 {vrw}, {t0}, {vrw}
s_lshr_b32 {spo}, {tb5}, 1
s_lshl_b32 {spo}, {spo}, 4
s_lshl_b32 {t0}, {w}, 2
s_add_u32 {spo}, {spo}, {t0}
s_lshl_b32 {spo}, {spo}, 7
s_add_u32 {spo}, {spo}, {WS_FLG+256*128:#x}
""")
    v.free(tau,pos,u1)
    publish(k.label('PUB'))
    stamp('c',3)
    for x,tg in w5late: vm.op(x,tg)
    k(f"""
s_mul_i32 {stok5}, {tb5}, {2*112*1024}
s_mul_i32 {t0}, {w}, {28*1024}
s_add_u32 {stok5}, {stok5}, {t0}
s_add_u32 {stok5}, {stok5}, {WS_HHF:#x}
s_add_u32 {stk2}, {stok5}, {112*1024}
s_mov_b32 {sx5}, {WS_X1R:#x}
""")
    acc5=[[acc[0],acc[1]],[acc[2],acc[3]]]
    pool=[tok[32+4*q:36+4*q] for q in range(24)]
    for t7 in (4,5,6): pool+=[acc[t7][4*q:4*q+4] for q in range(4)]
    for b in range(2): pool+=[fr[b][t7] for t7 in range(7)]
    pool=pool[:2*D5]
    assert len(pool)==2*D5
    x1e=Reg('v',fr[1][5].idx,8)
    poll('POLLB')
    stamp('c',4)
    def tload(j):
        sl=j%D5
        o_=(j&3)*1024
        out=[(f"buffer_load_dwordx4 {pool[2*sl]}, {vtok}, {Rws}, {stok5} offen offset:{o_} sc1",f"H{j}"),
             (f"buffer_load_dwordx4 {pool[2*sl+1]}, {vtok}, {Rws}, {stk2} offen offset:{o_} sc1"+
              (f"\ns_add_u32 {stok5}, {stok5}, 4096\ns_add_u32 {stk2}, {stk2}, 4096" if j&3==3 else ""),f"H{j}")]
        return out
    for j in range(U5):
        for x,tg in tload(j): vm.op(x,tg)
    stamp('c',5)
    x1l=[(f"buffer_load_dwordx4 {x1e[0:4]}, {vx1}, {Rws}, {sx5} offen sc1",'x1'),
         (f"buffer_load_dwordx4 {x1e[4:8]}, {vx1}, {Rws}, {sx5} offen offset:16 sc1",'x1')]
    for j in range(28):
        vm.wait(f"H{j}")
        if j==1: stamp('c',6)
        sl=j%D5
        ld=tload(j+U5) if j+U5<28 else (x1l if j+U5==28 else [])
        n=0
        for nu in range(2):
            for t_ in range(2):
                cin=0 if j==0 else acc5[nu][t_]
                k(f"{MF} {acc5[nu][t_]}, {Wf[2*j+nu]}, {pool[2*sl+t_]}, {cin}")
                if n in (0,2) and ld: x,tg=ld.pop(0); vm.op(x,tg)
                n+=1
    stamp('c',7)
    for t_ in range(2):
        for nu in range(2):
            for q in range(4):
                k(f"ds_write_b128 {vrw}, {acc5[nu][t_][4*q:4*q+4]} offset:{t_*32*272+nu*128+q*32}")
    Ro=s(4); srd(k,Ro,pout,2048*1024)
    gb=W2[0:16]
    for q in range(4): k(f"ds_read_b128 {gb[4*q:4*q+4]}, {vgb} offset:{16*q}")
    k("s_waitcnt lgkmcnt(0)")
    k("s_barrier")
    S=[acc[0],acc[1],acc[2],acc[3]]
    for ww in range(4):
        for q in range(4):
            k(f"ds_read_b128 {S[ww][4*q:4*q+4]}, {vrr} offset:{ww*WST+q*16}")
    k("s_waitcnt lgkmcnt(8)")
    for j in range(16): k(f"v_add_f32 {S[0][j]}, {S[0][j]}, {S[1][j]}")
    k("s_waitcnt lgkmcnt(0)")
    for j in range(16): k(f"v_add_f32 {S[2][j]}, {S[2][j]}, {S[3][j]}")
    for j in range(16): k(f"v_add_f32 {S[0][j]}, {S[0][j]}, {S[2][j]}")
    vm.wait('x1')
    xe=S[1]
    for p_ in range(8):
        k(f"v_lshlrev_b32 {xe[2*p_]}, 16, {x1e[p_]}")
        k(f"v_and_b32 {xe[2*p_+1]}, 0xffff0000, {x1e[p_]}")
    for j in range(16): k(f"v_fmac_f32 {xe[j]}, {gb[j]}, {S[0][j]}")
    for p_ in range(8): k(f"v_cvt_pk_bf16_f32 {x1e[p_]}, {xe[2*p_]}, {xe[2*p_+1]}")
    k(f"buffer_store_dwordx4 {x1e[0:4]}, {vout}, {Ro}, 0 offen")
    k(f"buffer_store_dwordx4 {x1e[4:8]}, {vout}, {Ro}, 0 offen offset:16")
    k.stamp_flush(kidx)
    k(f"{END}:\ns_endpgm")
    code,desc=k.finish()
    return (k,code,desc)
```

```python
from common import *
import os
KDBG=int(os.environ.get('KDBG','0'))
def build_kA(name='ka_kernel', kidx=0):
    L_GV=0; L_MOD=2048; L_TR=2048+4096
    k=Kernel(name,256,512,lds=L_TR+8*260*4)
    v,s=k.v,k.s
    END=k.label('END')
    A=s.at(4,16); B=s.at(20,8)
    px,pwr,pwi,pc=A[0:2],A[2:4],A[4:6],A[14:16]
    pwm,pdbg,pws=B[0:2],B[4:6],B[6:8]
    beta,t0,t1,w,row=s(),s(),s(),s(),s()
    lane,vi,vg,tv=v(),v(),v(),v()
    k(f"""
s_cmp_ge_u32 s2, 256
s_cbranch_scc1 {END}""")
    k.stamp_init()
    k(f"""
s_load_dwordx16 {A}, s[0:1], 0
s_load_dwordx8 {B}, s[0:1], 64
v_lshrrev_b32 {tv}, 6, v0
v_and_b32 {lane}, 63, v0
v_readfirstlane_b32 {w}, {tv}
v_and_b32 {vi}, 15, v0
v_bfe_u32 {vg}, v0, 4, 2
""")
    beta_of_wg(k,beta,t0)
    row_of_pos(k,row,beta,w,t0,t1)
    k(f"s_lshl_b32 {row}, {row}, 10")
    wo,co,mbo,jst=s(),s(),s(),s()
    lb,r0=s(),s()
    k(f"""
s_and_b32 {lb}, s2, 15
s_lshr_b32 {r0}, s2, 4
s_lshl_b32 {r0}, {r0}, 7
s_lshl_b32 {mbo}, s2, 8
s_sub_u32 {t0}, s2, 192
s_and_b32 {t1}, {t0}, 31
s_add_u32 {t1}, {t1}, 16
s_lshr_b32 {jst}, {t0}, 5
s_lshl_b32 {jst}, {jst}, 8
s_lshl_b32 {t0}, {t0}, 8
s_add_u32 {t0}, {t0}, 0x4000
s_cmp_lt_u32 s2, 64
s_cselect_b32 {lb}, {lb}, {t1}
s_cselect_b32 {r0}, {r0}, {jst}
s_cselect_b32 {mbo}, {mbo}, {t0}
s_lshl_b32 {t0}, {w}, 3
s_add_u32 {r0}, {r0}, {t0}
s_lshl_b32 {co}, {r0}, 1
s_mul_i32 {wo}, {r0}, 6144
s_lshl_b32 {t0}, {lb}, 7
s_add_u32 {wo}, {wo}, {t0}
""")
    s.free(lb,r0,jst)
    vgv,vc2,vxo,vl16=v(),v(),v(),v()
    k(f"""
v_lshrrev_b32 {tv}, 3, {lane}               ; rr
v_lshlrev_b32 {vc2}, 1, {tv}
v_mul_u32_u24 {vgv}, 0x1800, {tv}
v_and_b32 {tv}, 7, {lane}
v_lshl_add_u32 {vgv}, {tv}, 4, {vgv}       ; rr*6144 + q*16
v_lshlrev_b32 {vxo}, 8, {vg}
v_lshl_add_u32 {vxo}, {vi}, 1, {vxo}     ; 256 g + 2 i
v_lshlrev_b32 {vl16}, 4, {lane}
""")
    bt,ks0=s(),s()
    k(f"""
s_sub_u32 {t0}, s2, 64
s_and_b32 {bt}, {t0}, 7
s_lshl_b32 {bt}, {bt}, 4
s_lshr_b32 {t0}, {t0}, 3
s_add_u32 {bt}, {bt}, {t0}
s_lshl_b32 {bt}, {bt}, 1
s_lshr_b32 {t0}, {w}, 2
s_add_u32 {bt}, {bt}, {t0}
s_and_b32 {bt}, {bt}, 255
s_lshr_b32 {t0}, {bt}, 6
s_lshl_b32 {ks0}, {t0}, 4
s_and_b32 {t0}, {bt}, 7
s_lshl_b32 {t0}, {t0}, 1
s_add_u32 {ks0}, {ks0}, {t0}
s_bfe_u32 {t0}, {bt}, 0x10005
s_lshl_b32 {t0}, {t0}, 10
s_add_u32 {ks0}, {ks0}, {t0}
s_bfe_u32 {t0}, {bt}, 0x20003
s_lshl_b32 {t0}, {t0}, 8
s_add_u32 {ks0}, {ks0}, {t0}
s_mul_i32 {ks0}, {ks0}, 514
""")
    vta,vts,vts2,u_,u2,vtp,vx=v(),v(),v(),v(),v(),v(),v()
    k(f"""
v_and_b32 {vtp}, 255, v0                    ; t'
v_and_b32 {u_}, 1, {vtp}                    ; half
v_mul_u32_u24 {vta}, 514, {u_}
v_lshrrev_b32 {u2}, 1, {vtp}                ; p
v_lshl_add_u32 {vta}, {u2}, 2, {vta}       ; half*514 + 4p
v_lshlrev_b32 {vts}, 14, {u2}              ; 2p*8192
v_lshl_add_u32 {vts}, {u_}, 4, {vts}
s_lshl_b32 {t0}, {bt}, 5
v_add_u32 {vts}, {t0}, {vts}
v_add_u32 {vts2}, 8192, {vts}
v_and_b32 {vx}, 3, {vtp}
v_mul_u32_u24 {vx}, 32896, {vx}
v_bfe_u32 {u_}, {vtp}, 2, 1
v_mul_u32_u24 {u_}, 514, {u_}
v_add3_u32 {vx}, {vx}, {u_}, {ks0}
v_add_u32 {vx}, 512, {vx}
""")
    so=s(4,align=1)
    for n in range(4): k(f"s_add_u32 {so[n]}, {ks0}, {n*32896}")
    s.free(ks0)
    Rx,Rmb,Rx1,Ra,Rb,Rdbg,Rwt=s(4),s(4),s(4),s(4),s(4),s(4),s(4)
    vzero=v(); k(f"v_mov_b32 {vzero}, 0")
    k("s_waitcnt lgkmcnt(0)")
    k.stamp(1)
    x=v(8,align=4); wmr=v(16,align=4); cv=v(4); zf=v(4,align=4)
    ra=v(4,align=4); rb=v(4,align=4); va_,vb_=v(),v()
    LNC=k.label('LNC'); LTR=k.label('LTR'); LX=k.label('LX'); NOZ=k.label('NOZ'); L1=k.label('L1'); NOZ2=k.label('NOZ2')
    srd(k,Rx,px,2048*1024); srd(k,Rmb,pws,32768,WS_MBOX); srd(k,Rdbg,pdbg,256)
    srd(k,Rx1,pws,COLB,WS_X1); srd(k,Rwt,pws,COLB,WS_WT)
    k(f"s_cmp_lt_u32 s2, 64")
    k(f"s_cbranch_scc0 {L1}")
    srd(k,Ra,pwm,512*6144); srd(k,Rb,pc,1024)
    k(f"s_add_u32 {t0}, {wo}, {64*6144}")
    k(f"buffer_load_short_d16_hi {cv[0]}, {vc2}, {Rb}, {co} offen")
    k(f"buffer_load_short_d16_hi {cv[1]}, {vc2}, {Rb}, {co} offen offset:128")
    k(f"buffer_load_dwordx4 {wmr[0:4]}, {vgv}, {Ra}, {wo} offen")
    k(f"buffer_load_dwordx4 {wmr[4:8]}, {vgv}, {Ra}, {t0} offen")
    for j in range(8): k(f"buffer_load_short_d16_hi {x[j]}, {vxo}, {Rx}, {row} offen offset:{32*j}")
    k(f"{L1}:")
    k(f"""
s_cmp_lg_u32 s2, 64
s_cbranch_scc1 {NOZ}
v_mov_b32 {zf[0]}, 0
v_mov_b32 {zf[1]}, 0
v_mov_b32 {zf[2]}, 0
v_mov_b32 {zf[3]}, 0
v_lshlrev_b32 {tv}, 4, v0
s_movk_i32 {t0}, 0x2000
buffer_store_dwordx4 {zf}, {tv}, {Rmb}, 0 offen sc1
buffer_store_dwordx4 {zf}, {tv}, {Rmb}, {t0} offen sc1
s_waitcnt vmcnt(0)
s_barrier
s_cmp_lg_u32 {w}, 0
s_cbranch_scc1 {NOZ}
v_mov_b32 {zf[1]}, 1
s_mov_b64 exec, 1
buffer_store_dword {zf[1]}, {vzero}, {Rdbg}, 0 offen sc1
s_mov_b64 exec, -1
{NOZ}:
""")
    k.stamp(2)
    fi,fg,f,arg,c0,c1=v(),v(),v(),v(),v(),v()
    k(f"v_cvt_f32_u32 {fi}, {vi}")
    k(f"v_cvt_f32_u32 {fg}, {vg}")
    BC=v(4,align=4); BS=v(4,align=4); BC1=v(4,align=4); BS1=v(4,align=4)
    k(f"v_mul_f32 {f}, 0x3d000000, {fi}")
    k(f"v_mul_f32 {arg}, 0x41000000, {fg}")
    k(f"v_mul_f32 {arg}, {arg}, {f}")
    s0,s1=v(),v()
    for p in range(4):
        k(f"v_cos_f32 {c0}, {arg}")
        k(f"v_sin_f32_e64 {s0}, -{arg}")
        k(f"v_add_f32 {arg}, {arg}, {f}")
        k(f"v_cos_f32 {c1}, {arg}")
        k(f"v_sin_f32_e64 {s1}, -{arg}")
        k(f"v_add_f32 {arg}, {arg}, {f}")
        k(f"v_cvt_pk_bf16_f32 {BC[p]}, {c0}, {c1}")
        k(f"v_cvt_pk_bf16_f32 {BS[p]}, {s0}, {s1}")
    for p in range(4):
        k(f"v_xor_b32 {BC1[p]}, 0x80000000, {BC[p]}")
        k(f"v_xor_b32 {BS1[p]}, 0x80000000, {BS[p]}")
    TC=v(8,align=4); TS=v(8,align=4); n0=v()
    k(f"v_mul_f32 {n0}, 4.0, {fg}")
    for u in range(2):
        if u==0: k(f"v_mul_f32 {f}, 0x3b000000, {fi}")
        else: k(f"v_add_f32 {f}, 0x3d000000, {f}")
        k(f"v_mul_f32 {arg}, {n0}, {f}")
        for r in range(4):
            k(f"v_cos_f32 {TC[4*u+r]}, {arg}")
            k(f"v_sin_f32 {TS[4*u+r]}, {arg}")
            if r<3: k(f"v_add_f32 {arg}, {arg}, {f}")
    A2=v(4,align=4); A3=v(4,align=4); sh0,sh1=v(),v()
    k(f"""
v_lshrrev_b32 {tv}, 1, {vi}
v_cvt_f32_u32 {f}, {tv}
v_mul_f32 {f}, 0x3d800000, {f}          ; k2/16
v_and_b32 {tv}, 1, {vi}
v_cvt_f32_u32 {sh0}, {tv}
v_mul_f32 {sh0}, 0x3e800000, {sh0}      ; 0.25 c
v_add_f32 {sh1}, 0xbe800000, {sh0}      ; 0.25 (c-1)
v_mul_f32 {arg}, {n0}, {f}
""")
    aa=v(4,align=2)
    for r in range(4):
        k(f"v_mov_b32 {aa[r]}, {arg}")
        if r<3: k(f"v_add_f32 {arg}, {arg}, {f}")
    for half,sh in ((0,sh0),(1,sh1)):
        for p in range(2):
            k(f"v_add_f32 {c0}, {aa[2*p]}, {sh}")
            k(f"v_add_f32 {c1}, {aa[2*p+1]}, {sh}")
            k(f"v_cos_f32 {c0}, {c0}")
            k(f"v_cos_f32 {c1}, {c1}")
            k(f"v_cvt_pk_bf16_f32 {A2[2*half+p]}, {c0}, {c1}")
    k(f"""
v_cmp_eq_u32 vcc, 0, {vi}
v_mov_b32 {tv}, 0xbf803f80
v_cndmask_b32 {A3[0]}, 0, {tv}, vcc
v_cndmask_b32 {A3[1]}, 0, {tv}, vcc
v_mov_b32 {A3[2]}, 0
v_mov_b32 {A3[3]}, 0
""")
    vlw,vlr,vst=v(),v(),v()
    k(f"""
s_mul_i32 {t0}, {w}, 1040
s_add_u32 {t0}, {t0}, {L_TR}
v_lshlrev_b32 {vlw}, 8, {vg}
v_lshl_add_u32 {vlw}, {vi}, 2, {vlw}
v_add_u32 {vlw}, {t0}, {vlw}            ; L_TR + w*1040 + (i+64g)*4
v_and_b32 {tv}, 1, v0
v_mul_u32_u24 {vlr}, 4160, {tv}
v_lshrrev_b32 {c0}, 1, v0               ; k
v_lshl_add_u32 {vlr}, {c0}, 2, {vlr}
v_add_u32 {vlr}, {L_TR}, {vlr}
v_lshlrev_b32 {vst}, 13, {c0}
v_lshl_add_u32 {vst}, {tv}, 4, {vst}
s_lshl_b32 {t0}, {beta}, 5
v_add_u32 {vst}, {t0}, {vst}
""")
    k.stamp(3)
    k(f"""
s_cmp_lt_u32 s2, 64
s_cbranch_scc1 {LX}
s_cmp_lt_u32 s2, 192
s_cbranch_scc1 {LTR}
""")
    for j in range(8): k(f"buffer_load_short_d16_hi {x[j]}, {vxo}, {Rx}, {row} offen offset:{32*j}")
    k(f"s_branch {LX}")
    k(f"{LTR}:")
    srd(k,Ra,pwr,2048*514); srd(k,Rb,pwi,2048*514)
    for j in range(8): k(f"buffer_load_short_d16_hi {x[j]}, {vxo}, {Rx}, {row} offen offset:{32*j}")
    for n in range(4):
        k(f"buffer_load_dword {ra[n]}, {vta}, {Ra}, {so[n]} offen")
        k(f"buffer_load_dword {rb[n]}, {vta}, {Rb}, {so[n]} offen")
    k(f"buffer_load_ushort {va_}, {vx}, {Ra}, 0 offen")
    k(f"buffer_load_short_d16_hi {vb_}, {vx}, {Rb}, 0 offen")
    k(f"{LX}:")
    s.free(A[0:8],B[2:6],so)
    Rnc,Rnc2=Ra,Rb
    sv=s(2); rdy=v()
    GNC=k.label('GNC'); GTR=k.label('GTR'); GX=k.label('GX'); GW=k.label('GW'); RDY=k.label('RDY'); RDY1=k.label('RDY1'); GW2=k.label('GW2')
    vl=v(); msk=s(2); te=v(); sc=v(4); acc=v(8,align=4); rd=v(8,align=4)
    def gemv(nj, base, crit):
        k(f"s_waitcnt vmcnt({base+nj})")
        if KDBG: k.stamp(5)
        for j in range(nj): silu_bf16(k,sc[j],cv[j],te)
        for j in range(nj):
            k(f"s_waitcnt vmcnt({base+nj-1-j})")
            if KDBG and j==0: k.stamp(6)
            if KDBG and j==nj-1: k.stamp(7)
            if crit and j==nj-1: k(f"buffer_load_dword {rdy}, {vzero}, {Rdbg}, 0 offen sc1")
            for p in range(4):
                src=wmr[4*j+p]
                k(f"v_lshlrev_b32 {u_}, 16, {src}")
                k(f"v_and_b32 {u2}, 0xffff0000, {src}")
                if j==0:
                    k(f"v_mul_f32 {acc[2*p]}, {sc[j]}, {u_}")
                    k(f"v_mul_f32 {acc[2*p+1]}, {sc[j]}, {u2}")
                else:
                    k(f"v_fmac_f32 {acc[2*p]}, {sc[j]}, {u_}")
                    k(f"v_fmac_f32 {acc[2*p+1]}, {sc[j]}, {u2}")
        gemv_reduce(k,acc,msk)
        k(f"ds_write_b32 {vl}, {acc[0]} offset:{L_GV}")
        k("s_waitcnt lgkmcnt(0)")
        k("s_barrier")
    gemv_lds_addr(k,vl,u_,lane,w,t0,msk)
    k(f"s_cmp_lt_u32 s2, 64")
    k(f"s_cbranch_scc0 {GNC}")
    gemv(2,8,True)
    k(f"s_branch {GW}")
    k(f"{GNC}:")
    k(f"s_cmp_lt_u32 s2, 192")
    k(f"s_cbranch_scc1 {GTR}")
    k(f"s_branch {GW2}")
    k(f"{GW}:")
    k(f"""
s_cmp_lg_u32 {w}, 0
s_cbranch_scc1 {GW2}
v_lshlrev_b32 {vl}, 2, {lane}
""")
    for n in range(8): k(f"ds_read_b32 {rd[n]}, {vl} offset:{L_GV+256*n}")
    k(f"""
s_waitcnt vmcnt(0)
{RDY}:
v_readfirstlane_b32 {t0}, {rdy}
s_cmp_lg_u32 {t0}, 0
s_cbranch_scc1 {RDY1}
buffer_load_dword {rdy}, {vzero}, {Rdbg}, 0 offen sc1
s_add_u32 {co}, {co}, 0x1000
s_waitcnt vmcnt(0)
s_cmp_lt_u32 {co}, 0x40000000
s_cbranch_scc1 {RDY}
{RDY1}:
s_waitcnt lgkmcnt(0)
""")
    for st in (1,2,4):
        for r in range(0,8,2*st): k(f"v_add_f32 {rd[r]}, {rd[r]}, {rd[r+st]}")
    k(f"""
v_or_b32 {rd[0]}, 1, {rd[0]}
buffer_store_dword {rd[0]}, {vl}, {Rmb}, {mbo} offen sc1
s_branch {GX}
{GW2}:
s_waitcnt vmcnt(0)
s_branch {GX}
{GTR}:
""")
    lo=v(4,align=4); hi=v(4,align=4); sl,sh_=wo,co
    k(f"s_mov_b32 {sl}, 0x05040100")
    k(f"s_mov_b32 {sh_}, 0x07060302")
    k("s_waitcnt vmcnt(2)")
    for n in range(4):
        k(f"v_perm_b32 {lo[n]}, {rb[n]}, {ra[n]}, {sl}")
        k(f"v_perm_b32 {hi[n]}, {rb[n]}, {ra[n]}, {sh_}")
    k(f"buffer_store_dwordx4 {lo}, {vts}, {Rwt}, 0 offen")
    k(f"buffer_store_dwordx4 {hi}, {vts2}, {Rwt}, 0 offen")
    k(f"""
s_waitcnt vmcnt(2)
v_or_b32 {va_}, {va_}, {vb_}
s_lshl_b32 {t0}, {bt}, 5
s_add_u32 {t0}, {t0}, {256*8192}
v_lshlrev_b32 {vx}, 2, {vtp}
v_cmp_gt_u32 vcc, 8, {vtp}
s_and_saveexec_b64 {sv}, vcc
buffer_store_dword {va_}, {vx}, {Rwt}, {t0} offen
s_mov_b64 exec, {sv}
{GX}:
""")
    k.stamp(4)
    sm,tt=v(),v()
    k(f"v_add_f32 {sm}, {x[0]}, {x[1]}")
    k(f"v_add_f32 {tt}, {x[2]}, {x[3]}")
    k(f"v_add_f32 {c0}, {x[4]}, {x[5]}")
    k(f"v_add_f32 {c1}, {x[6]}, {x[7]}")
    k(f"v_add_f32 {sm}, {sm}, {tt}")
    k(f"v_add_f32 {c0}, {c0}, {c1}")
    k(f"v_add_f32 {sm}, {sm}, {c0}")
    wave_allreduce_add(k,sm,tt)
    k(f"v_mul_f32 {sm}, 0xbb000000, {sm}")
    for j in range(8): k(f"v_add_f32 {x[j]}, {x[j]}, {sm}")
    k(f"v_mul_f32 {sm}, {x[0]}, {x[0]}")
    k(f"v_mul_f32 {c0}, {x[1]}, {x[1]}")
    for j in range(2,8,2):
        k(f"v_fmac_f32 {sm}, {x[j]}, {x[j]}")
        k(f"v_fmac_f32 {c0}, {x[j+1]}, {x[j+1]}")
    k(f"v_add_f32 {sm}, {sm}, {c0}")
    wave_allreduce_add(k,sm,tt)
    k(f"v_mov_b32 {tt}, 0x3727c5ac")
    k(f"v_fmac_f32 {tt}, 0x3b000000, {sm}")
    k(f"v_rsq_f32 {tt}, {tt}")
    for j in range(8): k(f"v_mul_f32 {x[j]}, {x[j]}, {tt}")
    if not KDBG: k.stamp(5)
    NC=int(os.environ.get('NC','1'))
    if NC:
        NONC=k.label('NONC')
        k(f"s_cmp_lt_u32 s2, 192")
        k(f"s_cbranch_scc1 {NONC}")
        srd(k,Rnc,pwm,512*6144); srd(k,Rnc2,pc,1024)
        for j in range(4): k(f"buffer_load_short_d16_hi {cv[j]}, {vc2}, {Rnc2}, {co} offen offset:{128*j}")
        for j in range(4):
            k(f"buffer_load_dwordx4 {wmr[4*j:4*j+4]}, {vgv}, {Rnc}, {wo} offen")
            if j<3: k(f"s_add_u32 {wo}, {wo}, {64*6144}")
        k(f"{NONC}:")
    PFM=int(os.environ.get('PFM','0'))
    if PFM:
        NOPF=k.label('NOPF'); Rp=s(4); pf=v(4,align=4); vpf,vpm=v(),v(); sp0,sp1=s(),s()
        k(f"""
s_cmp_lt_u32 s2, 64
s_cbranch_scc1 {NOPF}
s_sub_u32 {sp0}, s2, 64
v_lshlrev_b32 {vpf}, 4, v0
v_lshrrev_b32 {vpm}, 8, v0
v_mul_u32_u24 {vpm}, 0x1800, {vpm}
v_and_b32 {u_}, 255, v0
v_lshl_add_u32 {vpm}, {u_}, 4, {vpm}
s_mul_i32 {sp1}, {sp0}, {2*6144}
s_add_u32 {sp1}, {sp1}, 2048
v_add_u32 {vpm}, {sp1}, {vpm}
s_lshl_b32 {sp0}, {sp0}, 13
""")
        n=0
        if PFM&1:
            srd(k,Rp,B[0:2],512*6144)
            k(f"buffer_load_dwordx4 {pf}, {vpm}, {Rp}, 0 offen"); n+=1
            k(f"v_add_u32 {vpm}, {192*2*6144}, {vpm}")
            k(f"buffer_load_dwordx4 {pf}, {vpm}, {Rp}, 0 offen"); n+=1
        vpf2=v(); k(f"v_add_u32 {vpf2}, {192*8192}, {vpf}")
        k(f"v_add_u32 {vpf}, {sp0}, {vpf}")
        k(f"v_add_u32 {vpf2}, {sp0}, {vpf2}")
        for bit,ptr in ((2,A[12:14]),(4,A[8:10]),(8,A[10:12])):
            if PFM&bit:
                srd(k,Rp,ptr,1792*1024)
                k(f"buffer_load_dwordx4 {pf}, {vpf}, {Rp}, 0 offen"); n+=1
                k(f"buffer_load_dwordx4 {pf}, {vpf2}, {Rp}, 0 offen"); n+=1
        k(f"{NOPF}:")
    ma=v(8,align=4); mb=v(8,align=4)
    POLL=k.label('POLL'); PDONE=k.label('PDONE'); R2=k.label('R2'); R3=k.label('R3')
    P=[v(2),v(2),v(2),v(2)]; vmb,vlm=v(),v(); so4=s(4,align=1)
    k(f"""
s_lshl_b32 {t0}, {w}, 9
v_lshl_add_u32 {vmb}, {lane}, 3, {t0}      ; w*512 + lane*8
s_lshr_b32 {t0}, {w}, 2
s_lshl_b32 {t0}, {t0}, 11                   ; chunk*2048
s_and_b32 {t1}, {w}, 3
s_lshl_b32 {t1}, {t1}, 8                    ; 16 g * 16
s_add_u32 {t0}, {t0}, {t1}
s_add_u32 {t0}, {t0}, {L_MOD}
v_and_b32 {u_}, 7, {lane}
v_lshlrev_b32 {vlm}, 5, {u_}                ; i*16 , i = 2*(l&7)
v_bfe_u32 {u_}, {lane}, 3, 2
v_lshl_add_u32 {vlm}, {u_}, 2, {vlm}        ; (j&3)*4
v_lshrrev_b32 {u_}, 5, {lane}
v_lshl_add_u32 {vlm}, {u_}, 10, {vlm}       ; (j>>2)*1024
v_add_u32 {vlm}, {t0}, {vlm}
s_mov_b32 {t1}, 0
s_cmp_lg_u32 {w}, 0
s_cbranch_scc1 {R3}
{R2}:
buffer_load_dword {u_}, {vzero}, {Rdbg}, 0 offen sc1
s_waitcnt vmcnt(0)
v_readfirstlane_b32 {t0}, {u_}
s_cmp_lg_u32 {t0}, 0
s_cbranch_scc1 {R3}
s_add_u32 {t1}, {t1}, 1
s_cmp_lt_u32 {t1}, 0x40000
s_cbranch_scc1 {R2}
{R3}:
s_barrier
s_movk_i32 {so4[1]}, 0x1000
s_movk_i32 {so4[2]}, 0x2000
s_movk_i32 {so4[3]}, 0x3000
{POLL}:
buffer_load_dwordx2 {P[0]}, {vmb}, {Rmb}, 0 offen sc1
buffer_load_dwordx2 {P[1]}, {vmb}, {Rmb}, {so4[1]} offen sc1
buffer_load_dwordx2 {P[2]}, {vmb}, {Rmb}, {so4[2]} offen sc1
buffer_load_dwordx2 {P[3]}, {vmb}, {Rmb}, {so4[3]} offen sc1
s_add_u32 {t1}, {t1}, 1
s_waitcnt vmcnt(0)
v_min3_u32 {u_}, {P[0][0]}, {P[0][1]}, {P[1][0]}
v_min3_u32 {u2}, {P[1][1]}, {P[2][0]}, {P[2][1]}
v_min3_u32 {u_}, {u_}, {P[3][0]}, {P[3][1]}
v_min_u32 {u_}, {u_}, {u2}
v_cmp_eq_u32 vcc, 0, {u_}
s_cbranch_vccz {PDONE}
s_cmp_lt_u32 {t1}, 0x40000
s_cbranch_scc1 {POLL}
{PDONE}:
""")
    if not KDBG: k.stamp(6)
    k(f"""
v_add_f32 {P[0][0]}, {P[0][0]}, {P[1][0]}
v_add_f32 {P[0][1]}, {P[0][1]}, {P[1][1]}
v_add_f32 {P[2][0]}, {P[2][0]}, {P[3][0]}
v_add_f32 {P[2][1]}, {P[2][1]}, {P[3][1]}
v_add_f32 {P[0][0]}, {P[0][0]}, {P[2][0]}
v_add_f32 {P[0][1]}, {P[0][1]}, {P[2][1]}
s_cmp_ge_u32 {w}, 4
s_cselect_b32 {t0}, 1.0, 0
v_cvt_pk_bf16_f32 {u_}, {P[0][0]}, {P[0][1]}
v_lshlrev_b32 {P[0][0]}, 16, {u_}
v_and_b32 {P[0][1]}, 0xffff0000, {u_}
v_add_f32 {P[0][0]}, {t0}, {P[0][0]}
v_add_f32 {P[0][1]}, {t0}, {P[0][1]}
v_cvt_pk_bf16_f32 {u_}, {P[0][0]}, {P[0][1]}
v_lshlrev_b32 {P[0][0]}, 16, {u_}
v_and_b32 {P[0][1]}, 0xffff0000, {u_}
ds_write_b32 {vlm}, {P[0][0]}
ds_write_b32 {vlm}, {P[0][1]} offset:16
s_waitcnt lgkmcnt(0)
s_barrier
""")
    if not KDBG: k.stamp(7)
    k(f"ds_read_b128 {mb[0:4]}, {vl16} offset:{L_MOD}")
    k(f"ds_read_b128 {ma[0:4]}, {vl16} offset:{L_MOD+2048}")
    k(f"ds_read_b128 {mb[4:8]}, {vl16} offset:{L_MOD+1024}")
    k(f"ds_read_b128 {ma[4:8]}, {vl16} offset:{L_MOD+3072}")
    k("s_waitcnt lgkmcnt(2)")
    for j in range(4): k(f"v_fma_f32 {x[j]}, {x[j]}, {ma[j]}, {mb[j]}")
    k("s_waitcnt lgkmcnt(0)")
    for j in range(4,8): k(f"v_fma_f32 {x[j]}, {x[j]}, {ma[j]}, {mb[j]}")
    A1=v(4,align=4)
    for p in range(4): k(f"v_cvt_pk_bf16_f32 {A1[p]}, {x[2*p]}, {x[2*p+1]}")
    Tr=[v(4,align=4),v(4,align=4)]; Ti=[v(4,align=4),v(4,align=4)]
    k(f"v_mfma_f32_16x16x32_bf16 {Tr[0]}, {A1}, {BC}, 0")
    k(f"v_mfma_f32_16x16x32_bf16 {Ti[0]}, {A1}, {BS}, 0")
    k(f"v_mfma_f32_16x16x32_bf16 {Tr[1]}, {A1}, {BC1}, 0")
    k(f"v_mfma_f32_16x16x32_bf16 {Ti[1]}, {A1}, {BS1}, 0")
    B2=[v(4,align=4),v(4,align=4)]
    Ur=v(4,align=4); Ui=v(4,align=4)
    D=[v(4,align=4),v(4,align=4)]; DN=v(4,align=4)
    for u in range(2):
        for r in range(4):
            k(f"v_mul_f32 {Ur[r]}, {Tr[u][r]}, {TC[4*u+r]}")
            k(f"v_mul_f32 {Ui[r]}, {Ti[u][r]}, {TC[4*u+r]}")
        for r in range(4):
            k(f"v_fmac_f32 {Ur[r]}, {Ti[u][r]}, {TS[4*u+r]}")
            k(f"v_fma_f32 {Ui[r]}, -{Tr[u][r]}, {TS[4*u+r]}, {Ui[r]}")
        k(f"v_cvt_pk_bf16_f32 {B2[u][0]}, {Ur[0]}, {Ur[1]}")
        k(f"v_cvt_pk_bf16_f32 {B2[u][1]}, {Ur[2]}, {Ur[3]}")
        k(f"v_cvt_pk_bf16_f32 {B2[u][2]}, {Ui[0]}, {Ui[1]}")
        k(f"v_cvt_pk_bf16_f32 {B2[u][3]}, {Ui[2]}, {Ui[3]}")
        k(f"v_mfma_f32_16x16x32_bf16 {D[u]}, {A2}, {B2[u]}, 0")
        if u==0: k(f"v_mfma_f32_16x16x32_bf16 {DN}, {A3}, {B2[0]}, 0")
    o=v(4,align=4)
    for u in range(2):
        for b in range(2):
            k(f"v_cvt_pk_bf16_f32 {o[2*u+b]}, {D[u][2*b]}, {D[u][2*b+1]}")
    for u in range(2):
        for b in range(2):
            k(f"ds_write_b32 {vlw}, {o[2*u+b]} offset:{64*u+128*b}")
    k(f"""
v_cvt_pk_bf16_f32 {tt}, {DN[0]}, 0
s_lshl_b32 {t0}, {beta}, 3
s_add_u32 {t0}, {t0}, {w}
s_lshl_b32 {t0}, {t0}, 2
s_add_u32 {t0}, {t0}, {256*8192}
v_mov_b32 {c0}, {t0}
v_cmp_eq_u32 vcc, 0, {lane}
s_and_saveexec_b64 {sv}, vcc
buffer_store_dword {tt}, {c0}, {Rx1}, 0 offen
s_mov_b64 exec, {sv}
s_waitcnt lgkmcnt(0)
s_barrier
""")
    for e in range(4): k(f"ds_read_b32 {o[e]}, {vlr} offset:{1040*e}")
    k("s_waitcnt lgkmcnt(0)")
    k(f"buffer_store_dwordx4 {o}, {vst}, {Rx1}, 0 offen")
    if NC:
        NC2=k.label('NC2')
        k(f"s_cmp_lt_u32 s2, 192")
        k(f"s_cbranch_scc1 {NC2}")
        gemv(4,8,False)
        k(f"s_cmp_lg_u32 {w}, 0")
        k(f"s_cbranch_scc1 {NC2}")
        k(f"v_lshlrev_b32 {vl}, 2, {lane}")
        for n in range(8): k(f"ds_read_b32 {rd[n]}, {vl} offset:{L_GV+256*n}")
        k("s_waitcnt lgkmcnt(0)")
        for st in (1,2,4):
            for r in range(0,8,2*st): k(f"v_add_f32 {rd[r]}, {rd[r]}, {rd[r+st]}")
        k(f"buffer_store_dword {rd[0]}, {vl}, {Rmb}, {mbo} offen")
        k(f"{NC2}:")
    k.stamp_flush(kidx)
    k(f"{END}:\ns_endpgm")
    code,desc=k.finish()
    return (k,code,desc)
```

```python
from common import *
MF="v_mfma_f32_16x16x32_bf16"
def interleave(k, mf, va, ratio=2):
    vi=0
    for m in mf:
        k(m)
        for _ in range(ratio):
            if vi<len(va): k(va[vi]); vi+=1
    while vi<len(va): k(va[vi]); vi+=1

SWD=__import__('os').environ.get('SWD','').replace('_',' '); SY=__import__('os').environ.get('SY','').replace('_',' ')
NX_G=1; NX_R=112; NX_P=int(__import__('os').environ.get('NXP','128'))
def k2_extras(k,END):
    v,s=k.v,k.s
    RELAY=k.label('RELAY'); ZERO=k.label('ZERO'); PREF=k.label('PREF')
    pwd,pws=s(2),s(2)
    e,w,t0,t1=s(),s(),s(),s()
    lane,tv=v(),v()
    k(f"""
s_cmp_ge_u32 s2, {257+NX_G+NX_R+1+NX_P}
s_cbranch_scc1 {END}
s_load_dwordx2 {pwd}, s[0:1], {ARG['wd']}
s_load_dwordx2 {pws}, s[0:1], {ARG['ws']}
s_sub_u32 {e}, s2, 257
v_lshrrev_b32 {tv}, 6, v0
v_and_b32 {lane}, 63, v0
v_readfirstlane_b32 {w}, {tv}
s_cmp_gt_u32 {e}, {NX_G+NX_R}
s_cbranch_scc1 {PREF}
s_cmp_ge_u32 {e}, {NX_G+NX_R}
s_cbranch_scc1 {ZERO}
s_cmp_ge_u32 {e}, {NX_G}
s_cbranch_scc1 {RELAY}
""")
    Rm,Ro=s(4),s(4); va,vo,vo2=v(),v(),v(); so=s(4,align=1)
    k(f"""
v_lshlrev_b32 {va}, 5, v0
v_bfe_u32 {tv}, v0, 5, 1
v_lshlrev_b32 {vo}, 10, {tv}                ; T*1024
v_bfe_u32 {tv}, v0, 1, 4
v_lshl_add_u32 {vo}, {tv}, 4, {vo}          ; + i*16
v_and_b32 {tv}, 1, v0
v_lshl_add_u32 {vo}, {tv}, 9, {vo}          ; + 2(u&1)*256
v_add_u32 {vo2}, 256, {vo}
v_and_b32 {tv}, 63, v0
v_lshlrev_b32 {tv}, 5, {tv}
s_cmp_eq_u32 {w}, 3
s_cselect_b64 vcc, -1, 0
v_cndmask_b32 {vo}, {vo}, {tv}, vcc
v_add_u32 {tv}, 16, {tv}
v_cndmask_b32 {vo2}, {vo2}, {tv}, vcc
s_lshl_b32 {t0}, {w}, 11
v_add_u32 {vo}, {t0}, {vo}
v_add_u32 {vo2}, {t0}, {vo2}
""")
    k("s_waitcnt lgkmcnt(0)")
    srd(k,Rm,pws,16384,WS_MBOX+0x4000); srd(k,Ro,pws,8192,WS_MOD2)
    P=[v(8,align=4) for _ in range(2)]
    for q in range(2):
        k(f"s_mov_b32 {so[q]}, {q*8192}")
        k(f"buffer_load_dwordx4 {P[q][0:4]}, {va}, {Rm}, {so[q]} offen")
        k(f"buffer_load_dwordx4 {P[q][4:8]}, {va}, {Rm}, {so[q]} offen offset:16")
    k(f"s_cmp_eq_u32 {w}, 2")
    k(f"s_cselect_b32 {t1}, 1.0, 0")
    k("s_waitcnt vmcnt(0)")
    for j in range(8): k(f"v_add_f32 {P[0][j]}, {P[0][j]}, {P[1][j]}")
    for rnd in range(2):
        for p in range(4):
            k(f"v_cvt_pk_bf16_f32 {P[1][p]}, {P[0][2*p]}, {P[0][2*p+1]}")
        for p in range(4):
            k(f"v_lshlrev_b32 {P[0][2*p]}, 16, {P[1][p]}")
            k(f"v_and_b32 {P[0][2*p+1]}, 0xffff0000, {P[1][p]}")
        if rnd==0:
            for j in range(8): k(f"v_add_f32 {P[0][j]}, {t1}, {P[0][j]}")
    k(f"buffer_store_dwordx4 {P[0][0:4]}, {vo}, {Ro}, 0 offen")
    k(f"buffer_store_dwordx4 {P[0][4:8]}, {vo2}, {Ro}, 0 offen")
    k.stamp_flush(1)
    k("s_endpgm")
    k.reset_regs(keep=[pwd,pws,e,w,t0,t1,lane,tv])
    k(f"{RELAY}:")
    Rw,Ro=s(4),s(4); vd,vd2,row,u1=v(),v(),v(),v(); sw,sm0,sd=s(),s(),s()
    k(f"""
v_lshrrev_b32 {row}, 3, {lane}
v_bfe_u32 {tv}, {lane}, 4, 1
v_lshlrev_b32 {tv}, 2, {tv}
v_and_b32 {vd}, 7, {lane}
v_xor_b32 {vd}, {vd}, {tv}
v_lshlrev_b32 {vd}, 4, {vd}
v_lshl_add_u32 {vd}, {row}, 10, {vd}
v_add_u32 {vd2}, {8192-1024}, {vd}
s_sub_u32 {e}, {e}, {NX_G}                     ; F
s_lshl_b32 {sw}, {e}, 14
s_lshl_b32 {t0}, {w}, 8
s_add_u32 {sw}, {sw}, {t0}                     ; F*16384 + 2w*128
s_lshl_b32 {sm0}, {w}, 12
s_mul_i32 {sd}, {w}, {2*112*2048}
s_lshl_b32 {t0}, {e}, 11
s_add_u32 {sd}, {sd}, {t0}                     ; (2w)*229376 + F*2048
s_waitcnt lgkmcnt(0)
""")
    srd(k,Rw,pwd,1792*1024); srd(k,Ro,pws,1792*1024,WS_WDF)
    for b in range(2):
        k(f"s_add_u32 m0, {sm0}, {b*2048}")
        k(f"s_nop 0")
        k(f"buffer_load_dwordx4 {vd}, {Rw}, {sw} offen lds")
        k(f"buffer_load_dwordx4 {vd2}, {Rw}, {sw} offen offset:1024 lds")
        if b==0: k(f"s_add_u32 {sw}, {sw}, 128")
    vA=[v(),v()]; c_,r_,G_=v(),v(),v()
    k(f"""
v_and_b32 {c_}, 3, {lane}
v_bfe_u32 {r_}, {lane}, 2, 2
v_lshrrev_b32 {G_}, 4, {lane}
v_lshrrev_b32 {tv}, 1, {G_}
v_lshl_add_u32 {tv}, {tv}, 3, {r_}              ; 8h'+r'
v_lshlrev_b32 {vA[0]}, 7, {tv}
v_and_b32 {tv}, 1, {G_}
v_lshlrev_b32 {tv}, 1, {tv}
v_lshrrev_b32 {u1}, 1, {c_}
v_add_u32 {tv}, {tv}, {u1}                       ; 2(G&1) + (c>>1)
v_lshrrev_b32 {u1}, 1, {r_}
v_lshlrev_b32 {u1}, 2, {u1}
v_xor_b32 {tv}, {tv}, {u1}
v_lshl_add_u32 {vA[0]}, {tv}, 4, {vA[0]}
v_and_b32 {tv}, 1, {c_}
v_lshl_add_u32 {vA[0]}, {tv}, 3, {vA[0]}
v_add_u32 {vA[0]}, {sm0}, {vA[0]}
v_xor_b32 {vA[1]}, 64, {vA[0]}
v_lshlrev_b32 {u1}, 4, {lane}
""")
    fr=[v(4,align=4),v(4,align=4)]
    for b in range(2):
        k(f"s_waitcnt vmcnt({2 if b==0 else 2})")
        for nu in range(2):
            for e2 in range(2):
                k(f"ds_read_b64_tr_b16 {fr[nu][2*e2:2*e2+2]}, {vA[nu]} offset:{b*2048+e2*512}")
        k("s_waitcnt lgkmcnt(0)")
        k(f"buffer_store_dwordx4 {fr[0]}, {u1}, {Ro}, {sd} offen {SWD}")
        k(f"buffer_store_dwordx4 {fr[1]}, {u1}, {Ro}, {sd} offen offset:1024 {SWD}")
        if b==0: k(f"s_add_u32 {sd}, {sd}, {112*2048}")
    k.stamp_flush(1)
    k("s_endpgm")
    k.reset_regs(keep=[pwd,pws,e,w,t0,t1,lane,tv])
    k(f"{ZERO}:")
    Rf=s(4); z=v(); ad=v()
    k(f"v_lshlrev_b32 {ad}, 7, v0")
    k(f"v_mov_b32 {z}, 0")
    k(f"s_mov_b32 {t0}, 0x8000")
    k("s_waitcnt lgkmcnt(0)")
    srd(k,Rf,pws,0x10000,WS_FLG)
    k(f"buffer_store_dword {z}, {ad}, {Rf}, 0 offen")
    k(f"buffer_store_dword {z}, {ad}, {Rf}, {t0} offen")
    k("s_endpgm")
    k.reset_regs(keep=[pwd,pws,e,w,t0,t1,lane,tv])
    k(f"{PREF}:")
    if NX_P:
        pgu=s(4); Rp=s(4); ad=v(); d=v(4,align=4)
        per=2*1792*1024//NX_P//4096
        half=NX_P//2
        k(f"s_load_dwordx4 {pgu}, s[0:1], {ARG['wg']}")
        k(f"s_sub_u32 {e}, {e}, {NX_G+NX_R+1}")
        k(f"s_cmp_ge_u32 {e}, {half}")
        k(f"s_cselect_b32 {t1}, {half}, 0")
        k(f"s_sub_u32 {t1}, {e}, {t1}")
        k(f"s_mul_i32 {t1}, {t1}, {per*4096}")
        k(f"v_lshlrev_b32 {ad}, 4, v0")
        k(f"v_add_u32 {ad}, {t1}, {ad}")
        k(f"s_cmp_ge_u32 {e}, {half}")
        k("s_waitcnt lgkmcnt(0)")
        k(f"s_cselect_b32 {Rp[0]}, {pgu[2]}, {pgu[0]}")
        k(f"s_cselect_b32 {Rp[1]}, {pgu[3]}, {pgu[1]}")
        k(f"s_mov_b32 {Rp[2]}, {1792*1024}")
        k(f"s_mov_b32 {Rp[3]}, 0x00020000")
        for n in range(per):
            k(f"buffer_load_dwordx4 {d}, {ad}, {Rp}, 0 offen")
            if n<per-1: k(f"v_add_u32 {ad}, 4096, {ad}")
        k.stamp_flush(1)
    k("s_endpgm")

def build_k2(name='k2_kernel'):
    k=Kernel(name,257+NX_G+NX_R+1+NX_P,256,lds=16384)
    v,s=k.v,k.s
    END=k.label('END')
    pws=s(2); w,t0,t1,so1,so2=s(),s(),s(),s(),s()
    lane,vi,vg,tv=v(),v(),v(),v()
    EXTRA=k.label('EXTRA')
    k.stamp_init()
    k(f"""
s_cmp_ge_u32 s2, 257
s_cbranch_scc1 {EXTRA}
s_setprio 3""")
    k(f"""
s_load_dwordx2 {pws}, s[0:1], {ARG['ws']}
v_lshrrev_b32 {tv}, 6, v0
v_and_b32 {lane}, 63, v0
v_readfirstlane_b32 {w}, {tv}
v_and_b32 {vi}, 15, v0
v_bfe_u32 {vg}, v0, 4, 2
s_lshl_b32 {so1}, s2, 13
s_lshl_b32 {t0}, {w}, 11
s_add_u32 {so2}, {so1}, {t0}
""")
    vo,vo2=v(),v()
    k(f"v_lshlrev_b32 {vo}, 4, {lane}")
    k(f"v_add_u32 {vo2}, 4096, {vo}")
    Rx1,Rwt,Ry=s(4),s(4),s(4)
    k("s_waitcnt lgkmcnt(0)")
    k.stamp(1)
    srd(k,Rx1,pws,COLB,WS_X1); srd(k,Rwt,pws,COLB,WS_WT); srd(k,Ry,pws,COLB,WS_Y)
    X=[[v(4,align=4) for kap in range(4)] for t in range(2)]
    W=[v(4,align=4),v(4,align=4)]
    for t in range(2):
        for kap in range(4):
            k(f"buffer_load_dwordx4 {X[t][kap]}, {vo if t==0 else vo2}, {Rx1}, {so1} offen offset:{kap*1024}")
    for t2 in range(2):
        k(f"buffer_load_dwordx4 {W[t2]}, {vo}, {Rwt}, {so2} offen offset:{t2*1024}")
    k.stamp(2)
    fi,fg4,k1f,f,f13,arg,c0,s0=v(),v(),v(),v(),v(),v(),v(),v()
    mi=v()
    k(f"""
v_cvt_f32_u32 {fi}, {vi}
v_cvt_f32_u32 {fg4}, {vg}
v_mul_f32 {fg4}, 4.0, {fg4}              ; 4g
s_lshl_b32 {t0}, {w}, 4
v_add_u32 {tv}, {t0}, {vi}
v_cvt_f32_u32 {k1f}, {tv}                ; 16w+i
v_and_b32 {tv}, 1, {vi}
v_mul_u32_u24 {mi}, 0x8000, {tv}
v_lshl_or_b32 {mi}, {mi}, 16, {mi}        ; (i&1) ? 0x80008000 : 0
""")
    BR=[v(4,align=4) for _ in range(4)]; BI=[v(4,align=4) for _ in range(4)]
    k(f"v_mul_f32 {f}, 0x3c800000, {k1f}")
    k(f"v_mul_f32 {f13}, 0x41500000, {f}")
    k(f"v_mul_f32 {arg}, {fg4}, {f}")
    c1,s1=v(),v()
    for kap in range(2):
        for e in range(4):
            cc,ss=(c0,s0) if e&1==0 else (c1,s1)
            k(f"v_cos_f32 {cc}, {arg}")
            k(f"v_sin_f32 {ss}, {arg}")
            if not(kap==1 and e==3): k(f"v_add_f32 {arg}, {arg}, {f if e<3 else f13}")
            k(f"v_cvt_pk_bf16_f32 {BR[kap][e]}, {cc}, {ss}")
            k(f"v_cvt_pk_bf16_f32 {BI[kap][e]}, -{ss}, {cc}")
    for kap in range(2,4):
        for e in range(4):
            k(f"v_xor_b32 {BR[kap][e]}, {mi}, {BR[kap-2][e]}")
            k(f"v_xor_b32 {BI[kap][e]}, {mi}, {BI[kap-2][e]}")
    T1C=v(8,align=4); T1S=v(8,align=4)
    k(f"v_mul_f32 {f}, 0x3a000000, {k1f}")
    k(f"v_mul_f32 {f13}, 0x41500000, {f}")
    k(f"v_mul_f32 {arg}, {fg4}, {f}")
    for t in range(2):
        for r in range(4):
            k(f"v_cos_f32 {T1C[4*t+r]}, {arg}")
            k(f"v_sin_f32 {T1S[4*t+r]}, {arg}")
            if not(t==1 and r==3): k(f"v_add_f32 {arg}, {arg}, {f if r<3 else f13}")
    CS=[[v(6,align=2) for b in range(2)] for a in range(2)]
    cc4=v(4,align=2); ss4=v(4,align=2)
    k(f"v_mul_f32 {f}, 0x3d000000, {fi}")
    k(f"v_mul_f32 {arg}, {fg4}, {f}")
    for j in range(4):
        k(f"v_cos_f32 {cc4[j]}, {arg}")
        k(f"v_sin_f32 {ss4[j]}, {arg}")
        if j<3: k(f"v_add_f32 {arg}, {arg}, {f}")
    c00=CS[0][0]
    k(f"v_cvt_pk_bf16_f32 {c00[0]}, -{ss4[0]}, -{ss4[1]}")
    k(f"v_cvt_pk_bf16_f32 {c00[1]}, -{ss4[2]}, -{ss4[3]}")
    k(f"v_cvt_pk_bf16_f32 {c00[2]}, {cc4[0]}, {cc4[1]}")
    k(f"v_cvt_pk_bf16_f32 {c00[3]}, {cc4[2]}, {cc4[3]}")
    k(f"v_cvt_pk_bf16_f32 {c00[4]}, {ss4[0]}, {ss4[1]}")
    k(f"v_cvt_pk_bf16_f32 {c00[5]}, {ss4[2]}, {ss4[3]}")
    for j in range(6): k(f"v_xor_b32 {CS[0][1][j]}, {mi}, {c00[j]}")
    for j in range(6): k(f"v_xor_b32 {CS[1][0][j]}, 0x80000000, {c00[j]}")
    for j in range(6): k(f"v_xor_b32 {CS[1][1][j]}, 0x80000000, {CS[0][1][j]}")
    T2C=v(8,align=4); T2S=v(8,align=4); scl=s(); kb=v()
    k(f"""
s_and_b32 {t0}, s2, 0xff
s_cmp_eq_u32 {t0}, 0
s_mov_b32 {scl}, 0x36000000
s_cselect_b32 {scl}, 0x35800000, {scl}
s_lshl_b32 {t0}, {w}, 4
v_cvt_f32_u32 {kb}, {t0}
v_add_f32 {kb}, {kb}, {fg4}              ; 16w+4g
""")
    for t in range(2):
        if t==0: k(f"v_mul_f32 {f}, 0x3a000000, {fi}")
        else: k(f"v_add_f32 {f}, 0x3c000000, {f}")
        k(f"v_mul_f32 {arg}, {kb}, {f}")
        for r in range(4):
            k(f"v_cos_f32 {T2C[4*t+r]}, {arg}")
            k(f"v_sin_f32 {T2S[4*t+r]}, {arg}")
            if r<3: k(f"v_add_f32 {arg}, {arg}, {f}")
    for j in range(8):
        k(f"v_mul_f32 {T2C[j]}, {scl}, {T2C[j]}")
        k(f"v_mul_f32 {T2S[j]}, {scl}, {T2S[j]}")
    vlw=v()
    k(f"s_lshl_b32 {t0}, {w}, 10")
    k(f"v_add_u32 {vlw}, {t0}, {vo}")
    so3=s()
    k(f"s_add_u32 {so3}, {so1}, {t0}")
    Ar=[v(4,align=4),v(4,align=4)]; Ai=[v(4,align=4),v(4,align=4)]
    def cmul_tw(dst_r,dst_i,xr,xi,tc,ts):
        out=[]
        for r in range(4):
            out.append(f"v_mul_f32 {dst_r[r]}, {xr[r]}, {tc[r]}")
            out.append(f"v_mul_f32 {dst_i[r]}, {xi[r]}, {tc[r]}")
        for r in range(4):
            out.append(f"v_fmac_f32 {dst_r[r]}, {xi[r]}, {ts[r]}")
            out.append(f"v_fma_f32 {dst_i[r]}, -{xr[r]}, {ts[r]}, {dst_i[r]}")
        return out
    Ur=v(4,align=4); Ui=v(4,align=4)
    B2=[v(4,align=4),v(4,align=4)]
    def pack_split(dst,ur,ui):
        return [f"v_cvt_pk_bf16_f32 {dst[0]}, {ur[0]}, {ur[1]}",f"v_cvt_pk_bf16_f32 {dst[1]}, {ur[2]}, {ur[3]}",
                f"v_cvt_pk_bf16_f32 {dst[2]}, {ui[0]}, {ui[1]}",f"v_cvt_pk_bf16_f32 {dst[3]}, {ui[2]}, {ui[3]}"]
    k.stamp(3)
    for kap in range(4):
        k(f"s_waitcnt vmcnt({9-kap})")
        if kap==0: k.stamp(4)
        k(f"{MF} {Ar[0]}, {X[0][kap]}, {BR[kap]}, {0 if kap==0 else Ar[0]}")
        k(f"{MF} {Ai[0]}, {X[0][kap]}, {BI[kap]}, {0 if kap==0 else Ai[0]}")
    k("s_waitcnt vmcnt(2)")
    mf=[]
    for kap in range(4):
        mf.append(f"{MF} {Ar[1]}, {X[1][kap]}, {BR[kap]}, {0 if kap==0 else Ar[1]}")
        mf.append(f"{MF} {Ai[1]}, {X[1][kap]}, {BI[kap]}, {0 if kap==0 else Ai[1]}")
    va=cmul_tw(Ur,Ui,Ar[0],Ai[0],T1C[0:4],T1S[0:4])+pack_split(B2[0],Ur,Ui)
    k(mf[0]); k(mf[1]); k(mf[2])
    interleave(k,mf[3:],va,ratio=3)
    Fr=[v(4,align=4),v(4,align=4)]; Fi=[v(4,align=4),v(4,align=4)]
    mf=[]
    for t2 in range(2):
        mf.append(f"{MF} {Fr[t2]}, {CS[t2][0][2:6]}, {B2[0]}, 0")
        mf.append(f"{MF} {Fi[t2]}, {CS[t2][0][0:4]}, {B2[0]}, 0")
    va=cmul_tw(Ur,Ui,Ar[1],Ai[1],T1C[4:8],T1S[4:8])+pack_split(B2[1],Ur,Ui)
    for m in mf[:2]: k(m)
    interleave(k,mf[2:],va,ratio=4)
    for t2 in range(2):
        k(f"{MF} {Fr[t2]}, {CS[t2][1][2:6]}, {B2[1]}, {Fr[t2]}")
        k(f"{MF} {Fi[t2]}, {CS[t2][1][0:4]}, {B2[1]}, {Fi[t2]}")
    k.stamp(5)
    k("s_waitcnt vmcnt(0)")
    wr4=v(4,align=4); wi4=v(4,align=4)
    A3=[v(4,align=4),v(4,align=4)]
    unp=[]
    Wr=[wr4,T1C[0:4]]; Wi=[wi4,T1S[0:4]]
    for t2 in range(2):
        for r in range(4):
            k(f"v_lshlrev_b32 {Wr[t2][r]}, 16, {W[t2][r]}")
            k(f"v_and_b32 {Wi[t2][r]}, 0xffff0000, {W[t2][r]}")
    def filt(t2):
        out=[]
        for r in range(4):
            out.append(f"v_mul_f32 {Ur[r]}, {Fr[t2][r]}, {Wr[t2][r]}")
            out.append(f"v_mul_f32_e64 {Ui[r]}, -{Fr[t2][r]}, {Wi[t2][r]}")
        for r in range(4):
            out.append(f"v_fma_f32 {Ur[r]}, -{Fi[t2][r]}, {Wi[t2][r]}, {Ur[r]}")
            out.append(f"v_fma_f32 {Ui[r]}, -{Fi[t2][r]}, {Wr[t2][r]}, {Ui[r]}")
        return out+pack_split(A3[t2],Ur,Ui)
    for x in filt(0): k(x)
    Vr=Ar; Vi=Ai
    mf=[]
    for t in range(2):
        mf.append(f"{MF} {Vr[t]}, {A3[0]}, {CS[t][0][2:6]}, 0")
        mf.append(f"{MF} {Vi[t]}, {A3[0]}, {CS[t][0][0:4]}, 0")
    interleave(k,mf,filt(1),ratio=4)
    for t in range(2):
        k(f"{MF} {Vr[t]}, {A3[1]}, {CS[t][1][2:6]}, {Vr[t]}")
        k(f"{MF} {Vi[t]}, {A3[1]}, {CS[t][1][0:4]}, {Vi[t]}")
    G=[B2[0],B2[1]]
    for t in range(2):
        for x in cmul_tw(Ur,Ui,Vr[t],Vi[t],T2C[4*t:4*t+4],T2S[4*t:4*t+4]): k(x)
        for r in range(4): k(f"v_cvt_pk_bf16_f32 {G[t][r]}, {Ur[r]}, {Ui[r]}")
        k(f"ds_write_b128 {vlw}, {G[t]} offset:{t*4096}")
    k.stamp(6)
    k("s_waitcnt lgkmcnt(0)")
    k("s_barrier")
    k.stamp(7)
    for t in range(2):
        for kap in range(4):
            k(f"ds_read_b128 {X[t][kap]}, {vo} offset:{(t*4+kap)*1024}")
    Yr=Fr; Yi=Fi
    for t in range(2):
        for kap in range(4):
            k(f"s_waitcnt lgkmcnt({7-(t*4+kap)})")
            k(f"{MF} {Yr[t]}, {BR[kap]}, {X[t][kap]}, {0 if kap==0 else Yr[t]}")
            k(f"{MF} {Yi[t]}, {BI[kap]}, {X[t][kap]}, {0 if kap==0 else Yi[t]}")
    for t in range(2):
        for r in range(4): k(f"v_cvt_pk_bf16_f32 {G[t][r]}, {Yr[t][r]}, -{Yi[t][r]}")
        k(f"buffer_store_dwordx4 {G[t]}, {vo if t==0 else vo2}, {Ry}, {so3} offen {SY}")
    k.stamp_flush(1)
    k(f"{END}:\ns_endpgm")
    k.reset_regs()
    k(f"{EXTRA}:")
    k2_extras(k,END)
    code,desc=k.finish()
    return (k,code,desc)
if __name__=='__main__':
    from k0 import build_k0
    from k1 import build_k1
    build_file([build_k0(),build_k1(),build_k2(NAME)],'t_k2.s')
```

```python
from common import *
from k2 import interleave
import os
MFB="v_mfma_f32_16x16x32_bf16"
MF16x32="v_mfma_f32_16x16x32_bf16"; MF16="v_mfma_f32_16x16x16_bf16"; MF="v_mfma_f32_32x32x16_bf16"
MAT=14464; CHUNK=2*MAT; NB=5
SCR=4*CHUNK
L_Y=SCR; L_H=SCR+8320; L_X=L_H+8704
L_MOD=NB*CHUNK
LDS=L_MOD+8192
SPIN=0x20000
L_RL=SCR+16896
WS_FLB=WS_FLG+0x10000
E_=lambda n,d: int(os.environ.get(n,d))
N2=E_('N2',0); WE=E_('WE',2); WUP=E_('WUP',0); PACE=E_('PACE',5); U5=E_('U5',10); TUP=E_('TUP',24); TPS=E_('TPS',1); V0=E_('V0',8); V1=E_('V1',30); PW=E_('PW',1); WY=E_('WY',0); CB1=E_('CB1',1); PFB=E_('PFB',1); FF=E_('FF',0); XL=E_('XL',0); MAP=E_('MAP',0); LOCAL=E_('LOCAL',0); LB=E_('LB',1); SM='' if LOCAL else 'sc1'; LDM=os.environ.get('LDM','sc1').replace('_',' '); LBM=os.environ.get('LBM','sc1').replace('_',' '); PLM=os.environ.get('PLM','sc1'); SM=os.environ.get('SM',SM); STM=os.environ.get('STM','sc1').replace('_',' ')
class VM:
    def __init__(s,k): s.k=k; s.ops=[]
    def op(s,text,tag=None):
        s.k(text); s.ops.append(tag); assert len(s.ops)<=63,len(s.ops)
    def wait(s,*tags,force=False):
        idx=[i for i,t in enumerate(s.ops) if t in tags]
        if not idx: return
        n=len(s.ops)-1-max(idx)
        s.k(f"s_waitcnt vmcnt({n})"); s.ops=s.ops[len(s.ops)-n:]
    def drain(s): s.k("s_waitcnt vmcnt(0)"); s.ops=[]

def build_k2345(name=NAME, N1=int(os.environ.get('N1','16')), D5=24, kidx=1):
    k=Kernel(name,256,256,lds=LDS)
    v,s,a=k.v,k.s,k.a
    vm=VM(k)
    ST=os.environ.get('ST','a')
    def stamp(set_,i):
        if set_ in ST: k.stamp(i)
    END=k.label('END')
    px=s(2); pgu=s(4); pout=s(2); pws=s(2); pwd=s(2)
    w,t0,t1,tb,fb,beta,row=s(),s(),s(),s(),s(),s(),s()
    lane,tv,vtok,zero,vfl,one,vf=v(),v(),v(),v(),v(),v(),v()
    vd=[v() for _ in range(7)]; vA=[v() for _ in range(NB)]
    resv=v.at(v.hi,24-v.hi)
    vi,vg=v(),v()
    k(f"""
s_cmp_ge_u32 s2, 256
s_cbranch_scc1 {END}""")
    k.stamp_init()
    k(f"""
s_load_dwordx2 {pws}, s[0:1], {ARG['ws']}
s_load_dwordx2 {px}, s[0:1], {ARG['x']}
s_load_dwordx4 {pgu}, s[0:1], {ARG['wg']}
s_load_dwordx2 {pwd}, s[0:1], {ARG['wd']}
s_load_dwordx2 {pout}, s[0:1], {ARG['out']}
v_lshrrev_b32 {tv}, 6, v0
v_and_b32 {lane}, 63, v0
v_readfirstlane_b32 {w}, {tv}
v_and_b32 {vi}, 15, v0
v_bfe_u32 {vg}, v0, 4, 2
v_lshlrev_b32 {vtok}, 4, {lane}
s_and_b32 {t0}, s2, 7            ; x
s_lshr_b32 {t1}, s2, 3           ; slot
""")
    if MAP==0:
        k(f"""
s_and_b32 {tb}, {t0}, 1
s_lshl_b32 {tb}, {tb}, 3
s_lshr_b32 {fb}, {t0}, 1
s_lshl_b32 {fb}, {fb}, 2
s_and_b32 {t0}, {t1}, 7
s_add_u32 {tb}, {tb}, {t0}
s_lshr_b32 {t0}, {t1}, 3
s_add_u32 {fb}, {fb}, {t0}
""")
    else:
        k(f"""
s_lshl_b32 {tb}, {t0}, 1
s_and_b32 {t0}, {t1}, 1
s_add_u32 {tb}, {tb}, {t0}
s_lshr_b32 {fb}, {t1}, 1
""")
    k(f"""
s_lshl_b32 {beta}, {tb}, 4
s_add_u32 {beta}, {beta}, {fb}
""")
    row_of_pos(k,row,beta,w,t0,t1)
    k(f"s_lshl_b32 {row}, {row}, 10")
    k(f"v_mov_b32 {zero}, 0")
    keepB=[]
    def bv(n=1,align=None):
        r=v(n,align); keepB.append(r); return r
    xr=[[v(2),v(2)] for j in range(2)]; vxo=v()
    sxb,swt,swn,syb=s(),s(),s(),s()
    vo2,vlwB,vxrB=bv(),bv(),bv()
    k(f"""
s_lshl_b32 {sxb}, s2, 13
s_lshl_b32 {t0}, {w}, 11
s_add_u32 {swt}, {sxb}, {t0}
s_add_u32 {swt}, {swt}, {WS_WT:#x}
s_add_u32 {swn}, {t0}, {WS_WT+256*8192:#x}
s_lshl_b32 {t0}, {w}, 10
s_add_u32 {syb}, {sxb}, {t0}
s_add_u32 {syb}, {syb}, {WS_Y:#x}
s_add_u32 {sxb}, {sxb}, {WS_X1:#x}
v_add_u32 {vo2}, 4096, {vtok}
s_add_u32 {t0}, {t0}, {SCR}
v_add_u32 {vlwB}, {t0}, {vtok}
v_add_u32 {vxrB}, {SCR}, {vtok}
v_lshlrev_b32 {vxo}, 5, {vi}
v_lshl_add_u32 {vxo}, {vg}, 3, {vxo}
""")
    vdd,vdd2,vpp,vpf=bv(),bv(),bv(),bv(); sw_,sd_,spf=s(),s(),s()
    k(f"""
v_lshrrev_b32 {vpp}, 3, {lane}               ; row
v_bfe_u32 {tv}, {lane}, 4, 1
v_lshlrev_b32 {tv}, 2, {tv}
v_and_b32 {vdd}, 7, {lane}
v_xor_b32 {vdd}, {vdd}, {tv}
v_lshlrev_b32 {vdd}, 4, {vdd}
v_lshl_add_u32 {vdd}, {vpp}, 10, {vdd}
s_sub_u32 {t0}, s2, 32
s_cselect_b32 {t0}, 0, {t0}
s_and_b32 {t1}, {t0}, 1
s_lshl_b32 {t1}, {t1}, 2
s_add_u32 {t1}, {t1}, {w}
s_lshr_b32 {t0}, {t0}, 1                     ; F
s_lshl_b32 {sw_}, {t0}, 14
s_lshl_b32 {sd_}, {t1}, 7
s_add_u32 {sw_}, {sw_}, {sd_}                ; F*16384 + nb*128
s_mul_i32 {sd_}, {t1}, {112*2048}
s_lshl_b32 {t0}, {t0}, 11
s_add_u32 {sd_}, {sd_}, {t0}
s_add_u32 {sd_}, {sd_}, {WS_WDF:#x}          ; nb*229376 + F*2048
v_add_u32 {vdd2}, {8192-1024}, {vdd}
v_lshlrev_b32 {vpp}, 5, v0
s_mul_i32 {t0}, s2, 7168
s_and_b32 {t1}, {w}, 1
s_lshl_b32 {t1}, {t1}, 12
s_add_u32 {t0}, {t0}, {t1}
v_add_u32 {vpf}, {t0}, {vtok}
s_lshl_b32 {t1}, {w}, 11
s_add_u32 {t1}, {t1}, {L_RL}
s_mov_b32 m0, {t1}
""")
    fi,fg4,k1f,f,f13,arg,c0,s0,c1,s1,mi=[bv() for _ in range(11)]
    k(f"""
v_cvt_f32_u32 {fi}, {vi}
v_cvt_f32_u32 {fg4}, {vg}
v_mul_f32 {fg4}, 4.0, {fg4}              ; 4g
s_lshl_b32 {t0}, {w}, 4
v_add_u32 {tv}, {t0}, {vi}
v_cvt_f32_u32 {k1f}, {tv}                ; 16w+i
v_and_b32 {tv}, 1, {vi}
v_mul_u32_u24 {mi}, 0x8000, {tv}
v_lshl_or_b32 {mi}, {mi}, 16, {mi}        ; (i&1) ? 0x80008000 : 0
""")
    BR=[bv(4,align=4) for _ in range(4)]; BI=[bv(4,align=4) for _ in range(4)]
    k(f"v_mul_f32 {f}, 0x3c800000, {k1f}")
    k(f"v_mul_f32 {f13}, 0x41500000, {f}")
    k(f"v_mul_f32 {arg}, {fg4}, {f}")
    for kap in range(2):
        for e in range(4):
            cc,ss=(c0,s0) if e&1==0 else (c1,s1)
            k(f"v_cos_f32 {cc}, {arg}")
            k(f"v_sin_f32 {ss}, {arg}")
            if not(kap==1 and e==3): k(f"v_add_f32 {arg}, {arg}, {f if e<3 else f13}")
            k(f"v_cvt_pk_bf16_f32 {BR[kap][e]}, {cc}, {ss}")
            k(f"v_cvt_pk_bf16_f32 {BI[kap][e]}, -{ss}, {cc}")
    for kap in range(2,4):
        for e in range(4):
            k(f"v_xor_b32 {BR[kap][e]}, {mi}, {BR[kap-2][e]}")
            k(f"v_xor_b32 {BI[kap][e]}, {mi}, {BI[kap-2][e]}")
    T1C=bv(8,align=4); T1S=bv(8,align=4)
    def t1const():
        k(f"v_mul_f32 {f}, 0x3a000000, {k1f}")
        k(f"v_mul_f32 {f13}, 0x41500000, {f}")
        k(f"v_mul_f32 {arg}, {fg4}, {f}")
        for t in range(2):
            for r in range(4):
                k(f"v_cos_f32 {T1C[4*t+r]}, {arg}")
                k(f"v_sin_f32 {T1S[4*t+r]}, {arg}")
                if not(t==1 and r==3): k(f"v_add_f32 {arg}, {arg}, {f if r<3 else f13}")
    if CB1>=1: t1const()
    k("s_waitcnt lgkmcnt(0)")
    stamp('p',1)
    Rws,Rx,Rw,Rd=s(4),s(4),s(4),s(4)
    srd(k,Rws,pws,0x1400000)
    XA=a(32,align=4); X=[[XA[16*t+4*kap:16*t+4*kap+4] for kap in range(4)] for t in range(2)]
    PP=a(16,align=4); PFD=a(4,align=4)
    W=[bv(4,align=4),bv(4,align=4)]; Wn=[bv(4,align=4),bv(4,align=4)]
    for t2 in range(2): vm.op(f"buffer_load_dwordx4 {W[t2]}, {vtok}, {Rws}, {swt} offen offset:{t2*1024}",'W')
    for t2 in range(2): vm.op(f"buffer_load_dwordx4 {Wn[t2]}, {vtok}, {Rws}, {swn} offen offset:{t2*1024}",'W')
    for t in range(2):
        for kap in range(4):
            vm.op(f"buffer_load_dwordx4 {X[t][kap]}, {vtok if t==0 else vo2}, {Rws}, {sxb} offen offset:{kap*1024}",f"X{t}{kap}")
    srd(k,Rd,pwd,1792*1024); srd(k,Rx,px,2048*1024)
    vm.op(f"buffer_load_dwordx4 {vdd}, {Rd}, {sw_} offen lds",'rl')
    vm.op(f"buffer_load_dwordx4 {vdd2}, {Rd}, {sw_} offen offset:1024 lds",'rl')
    k(f"""
s_and_b32 {t0}, {w}, 2
s_cmp_eq_u32 {t0}, 0
s_cselect_b32 {Rd[0]}, {pgu[0]}, {pgu[2]}
s_cselect_b32 {Rd[1]}, {pgu[1]}, {pgu[3]}
""")
    if PFB:
        for n in range(4): vm.op(f"buffer_load_dwordx4 {PFD}, {vpf}, {Rd}, 0 offen offset:{n*1024}",'pf')
    for q in range(2):
        k(f"s_mov_b32 {t1}, {WS_MBOX+0x4000+q*8192:#x}")
        vm.op(f"buffer_load_dwordx4 {PP[8*q:8*q+4]}, {vpp}, {Rws}, {t1} offen",'pp')
        vm.op(f"buffer_load_dwordx4 {PP[8*q+4:8*q+8]}, {vpp}, {Rws}, {t1} offen offset:16",'pp')
    for j in range(2):
        for t in range(2): vm.op(f"buffer_load_dwordx2 {xr[j][t]}, {vxo}, {Rx}, {row} offen offset:{512*t+1024*j}",'x')
    s.free(row,px,pwd,sxb,swt,swn,sw_,spf,Rd,Rx)
    stamp('p',2)
    if CB1<1: t1const()
    CS=[[bv(6,align=2) for b in range(2)] for a_ in range(2)]
    cc4=bv(4,align=4); ss4=bv(4,align=4)
    k(f"v_mul_f32 {f}, 0x3d000000, {fi}")
    k(f"v_mul_f32 {arg}, {fg4}, {f}")
    for j in range(4):
        k(f"v_cos_f32 {cc4[j]}, {arg}")
        k(f"v_sin_f32 {ss4[j]}, {arg}")
        if j<3: k(f"v_add_f32 {arg}, {arg}, {f}")
    c00=CS[0][0]
    k(f"v_cvt_pk_bf16_f32 {c00[0]}, -{ss4[0]}, -{ss4[1]}")
    k(f"v_cvt_pk_bf16_f32 {c00[1]}, -{ss4[2]}, -{ss4[3]}")
    k(f"v_cvt_pk_bf16_f32 {c00[2]}, {cc4[0]}, {cc4[1]}")
    k(f"v_cvt_pk_bf16_f32 {c00[3]}, {cc4[2]}, {cc4[3]}")
    k(f"v_cvt_pk_bf16_f32 {c00[4]}, {ss4[0]}, {ss4[1]}")
    k(f"v_cvt_pk_bf16_f32 {c00[5]}, {ss4[2]}, {ss4[3]}")
    for j in range(6): k(f"v_xor_b32 {CS[0][1][j]}, {mi}, {c00[j]}")
    for j in range(6): k(f"v_xor_b32 {CS[1][0][j]}, 0x80000000, {c00[j]}")
    for j in range(6): k(f"v_xor_b32 {CS[1][1][j]}, 0x80000000, {CS[0][1][j]}")
    T2C=bv(8,align=4); T2S=bv(8,align=4); scl=s(); kb=bv()
    k(f"""
s_cmp_eq_u32 s2, 0
s_mov_b32 {scl}, 0x36000000
s_cselect_b32 {scl}, 0x34800000, {scl}
s_lshl_b32 {t0}, {w}, 4
v_cvt_f32_u32 {kb}, {t0}
v_add_f32 {kb}, {kb}, {fg4}              ; 16w+4g
""")
    for t in range(2):
        if t==0: k(f"v_mul_f32 {f}, 0x3a000000, {fi}")
        else: k(f"v_add_f32 {f}, 0x3c000000, {f}")
        k(f"v_mul_f32 {arg}, {kb}, {f}")
        for r in range(4):
            k(f"v_cos_f32 {T2C[4*t+r]}, {arg}")
            k(f"v_sin_f32 {T2S[4*t+r]}, {arg}")
            if r<3: k(f"v_add_f32 {arg}, {arg}, {f}")
    for j in range(8):
        k(f"v_mul_f32 {T2C[j]}, {scl}, {T2C[j]}")
        k(f"v_mul_f32 {T2S[j]}, {scl}, {T2S[j]}")
    s.free(scl)
    Ar=[bv(4,align=4),bv(4,align=4)]; Ai=[bv(4,align=4),bv(4,align=4)]
    Ur=bv(4,align=4); Ui=bv(4,align=4)
    B2=[bv(4,align=4),bv(4,align=4)]
    Fr=[bv(4,align=4),bv(4,align=4)]; Fi=[bv(4,align=4),bv(4,align=4)]
    A3=[bv(4,align=4),bv(4,align=4)]
    PQ=[[bv(4,align=4) for c in range(4)] for t in range(2)]
    vq,vrev=bv(),bv()
    PQ0,PQ1,FS,FJ=k.label('PQ'),k.label('PQR'),k.label('FS'),k.label('FJ')
    def rev_exchange(src,dst):
        out=[]
        for arr in range(2):
            for t2 in range(2):
                for r in (0,2):
                    out.append(f"ds_write2st64_b32 {vq}, {src[arr][t2][r]}, {src[arr][t2][r+1]} offset0:{33*arr+16*t2+r} offset1:{33*arr+16*t2+r+1}")
        L=k.label('RX')
        out.append(f"s_cmp_lg_u32 {w}, 0\ns_cbranch_scc1 {L}\ns_mov_b64 exec, 1")
        for arr in range(2): out.append(f"ds_write_b32 {vq}, {src[arr][0][0]} offset:{8448*arr+8192}")
        out.append(f"s_mov_b64 exec, -1\n{L}:\ns_waitcnt lgkmcnt(0)\ns_barrier")
        for arr in range(2):
            for t2 in range(2):
                for r in (0,2):
                    out.append(f"ds_read2st64_b32 {dst[arr][t2][r:r+2]}, {vrev} offset0:{33*arr+19-16*t2-r} offset1:{33*arr+18-16*t2-r}")
        out.append("s_waitcnt lgkmcnt(0)\ns_barrier")
        return out
    nafter=len(vm.ops)-4
    spec=[]
    spec.append(f"{PQ0}:")
    spec.append(f"""
s_lshl_b32 {t0}, {w}, 4
v_add_u32 {tv}, {t0}, {vi}
v_lshl_add_u32 {tv}, {vg}, 8, {tv}          ; k1 + 256 g
v_lshlrev_b32 {tv}, 2, {tv}
v_add_u32 {vq}, {SCR}, {tv}
v_sub_u32 {vrev}, {SCR+8192-256*19}, {tv}
s_waitcnt vmcnt({nafter})""")
    spec+=rev_exchange([W,Wn],[Ar,Ai])
    for t2 in range(2):
        for r in range(4):
            Pr,Pi,Qr,Qi=[PQ[t2][c][r] for c in range(4)]
            a0,an,b0,bn=W[t2][r],Wn[t2][r],Ar[t2][r],Ai[t2][r]
            spec.append(f"""
v_lshlrev_b32 {c0}, 16, {a0}
v_lshlrev_b32 {s0}, 16, {b0}
v_and_b32 {c1}, 0xffff0000, {a0}
v_and_b32 {s1}, 0xffff0000, {b0}
v_add_f32 {Pr}, {c0}, {s0}
v_sub_f32 {Pi}, {c1}, {s1}
v_lshlrev_b32 {c0}, 16, {an}
v_lshlrev_b32 {s0}, 16, {bn}
v_and_b32 {c1}, 0xffff0000, {an}
v_and_b32 {s1}, 0xffff0000, {bn}
v_add_f32 {c0}, {c0}, {s0}
v_sub_f32 {c1}, {c1}, {s1}
v_sub_f32 {Qr}, {Pr}, {c0}
v_sub_f32 {Qi}, {Pi}, {c1}
v_add_f32 {Pr}, {Pr}, {c0}
v_add_f32 {Pi}, {Pi}, {c1}""")
    spec.append(f"s_branch {PQ1}")
    k(f"s_cmp_eq_u32 s2, 0")
    k(f"s_cbranch_scc1 {PQ0}")
    k(f"{PQ1}:")
    def cmul_tw(dst_r,dst_i,xr_,xi_,tc,ts):
        out=[]
        for r in range(4):
            out.append(f"v_mul_f32 {dst_r[r]}, {xr_[r]}, {tc[r]}")
            out.append(f"v_mul_f32 {dst_i[r]}, {xi_[r]}, {tc[r]}")
        for r in range(4):
            out.append(f"v_fmac_f32 {dst_r[r]}, {xi_[r]}, {ts[r]}")
            out.append(f"v_fma_f32 {dst_i[r]}, -{xr_[r]}, {ts[r]}, {dst_i[r]}")
        return out
    def pack_split(dst,ur,ui):
        return [f"v_cvt_pk_bf16_f32 {dst[0]}, {ur[0]}, {ur[1]}",f"v_cvt_pk_bf16_f32 {dst[1]}, {ur[2]}, {ur[3]}",
                f"v_cvt_pk_bf16_f32 {dst[2]}, {ui[0]}, {ui[1]}",f"v_cvt_pk_bf16_f32 {dst[3]}, {ui[2]}, {ui[3]}"]
    stamp('p',3)
    MF_=MFB
    for kap in range(4):
        vm.wait(f"X0{kap}")
        if kap==0: stamp('p',4)
        k(f"{MF_} {Ar[0]}, {X[0][kap]}, {BR[kap]}, {0 if kap==0 else Ar[0]}")
        k(f"{MF_} {Ai[0]}, {X[0][kap]}, {BI[kap]}, {0 if kap==0 else Ai[0]}")
    vm.wait("X13")
    mf=[]
    for kap in range(4):
        mf.append(f"{MF_} {Ar[1]}, {X[1][kap]}, {BR[kap]}, {0 if kap==0 else Ar[1]}")
        mf.append(f"{MF_} {Ai[1]}, {X[1][kap]}, {BI[kap]}, {0 if kap==0 else Ai[1]}")
    va=cmul_tw(Ur,Ui,Ar[0],Ai[0],T1C[0:4],T1S[0:4])+pack_split(B2[0],Ur,Ui)
    k(mf[0]); k(mf[1]); k(mf[2])
    interleave(k,mf[3:],va,ratio=3)
    mf=[]
    for t2 in range(2):
        mf.append(f"{MF_} {Fr[t2]}, {CS[t2][0][2:6]}, {B2[0]}, 0")
        mf.append(f"{MF_} {Fi[t2]}, {CS[t2][0][0:4]}, {B2[0]}, 0")
    va=cmul_tw(Ur,Ui,Ar[1],Ai[1],T1C[4:8],T1S[4:8])+pack_split(B2[1],Ur,Ui)
    for m in mf[:2]: k(m)
    interleave(k,mf[2:],va,ratio=4)
    for t2 in range(2):
        k(f"{MF_} {Fr[t2]}, {CS[t2][1][2:6]}, {B2[1]}, {Fr[t2]}")
        k(f"{MF_} {Fi[t2]}, {CS[t2][1][0:4]}, {B2[1]}, {Fi[t2]}")
    stamp('p',5)
    k(f"s_cmp_eq_u32 s2, 0")
    k(f"s_cbranch_scc1 {FS}")
    Wr=[cc4,T1C[0:4]]; Wi=[ss4,T1S[0:4]]
    for t2 in range(2):
        for r in range(4):
            k(f"v_lshlrev_b32 {Wr[t2][r]}, 16, {W[t2][r]}")
            k(f"v_and_b32 {Wi[t2][r]}, 0xffff0000, {W[t2][r]}")
    def filt(t2):
        out=[]
        for r in range(4):
            out.append(f"v_mul_f32 {Ur[r]}, {Fr[t2][r]}, {Wr[t2][r]}")
            out.append(f"v_mul_f32_e64 {Ui[r]}, -{Fr[t2][r]}, {Wi[t2][r]}")
        for r in range(4):
            out.append(f"v_fma_f32 {Ur[r]}, -{Fi[t2][r]}, {Wi[t2][r]}, {Ur[r]}")
            out.append(f"v_fma_f32 {Ui[r]}, -{Fi[t2][r]}, {Wr[t2][r]}, {Ui[r]}")
        return out+pack_split(A3[t2],Ur,Ui)
    for x in filt(0): k(x)
    Vr=Ar; Vi=Ai
    mf3=[]
    for t in range(2):
        mf3.append(f"{MF_} {Vr[t]}, {A3[0]}, {CS[t][0][2:6]}, 0")
        mf3.append(f"{MF_} {Vi[t]}, {A3[0]}, {CS[t][0][0:4]}, 0")
    interleave(k,mf3,filt(1),ratio=4)
    k(f"{FJ}:")
    spec.append(f"{FS}:")
    Zr=[T1C[0:4],T1C[4:8]]; Zi=[T1S[0:4],T1S[4:8]]
    spec+=rev_exchange([Fr,Fi],[Zr,Zi])
    for t2 in range(2):
        Pr,Pi,Qr,Qi=PQ[t2]
        for r in range(4):
            spec.append(f"v_mul_f32 {Ur[r]}, {Fr[t2][r]}, {Pr[r]}")
            spec.append(f"v_mul_f32_e64 {Ui[r]}, -{Fr[t2][r]}, {Pi[r]}")
        for r in range(4):
            spec.append(f"v_fma_f32 {Ur[r]}, -{Fi[t2][r]}, {Pi[r]}, {Ur[r]}")
            spec.append(f"v_fma_f32 {Ui[r]}, -{Fi[t2][r]}, {Pr[r]}, {Ui[r]}")
        for r in range(4):
            spec.append(f"v_fmac_f32 {Ur[r]}, {Zr[t2][r]}, {Qr[r]}")
            spec.append(f"v_fma_f32 {Ui[r]}, -{Zr[t2][r]}, {Qi[r]}, {Ui[r]}")
        for r in range(4):
            spec.append(f"v_fmac_f32 {Ur[r]}, {Zi[t2][r]}, {Qi[r]}")
            spec.append(f"v_fmac_f32 {Ui[r]}, {Zi[t2][r]}, {Qr[r]}")
        spec+=pack_split(A3[t2],Ur,Ui)
    spec+=mf3
    spec.append(f"s_branch {FJ}")
    for t in range(2):
        k(f"{MF_} {Vr[t]}, {A3[1]}, {CS[t][1][2:6]}, {Vr[t]}")
        k(f"{MF_} {Vi[t]}, {A3[1]}, {CS[t][1][0:4]}, {Vi[t]}")
    G=[B2[0],B2[1]]
    for t in range(2):
        for x in cmul_tw(Ur,Ui,Vr[t],Vi[t],T2C[4*t:4*t+4],T2S[4*t:4*t+4]): k(x)
        for r in range(4): k(f"v_cvt_pk_bf16_f32 {G[t][r]}, {Ur[r]}, {Ui[r]}")
        k(f"ds_write_b128 {vlwB}, {G[t]} offset:{t*4096}")
    k("s_waitcnt lgkmcnt(0)")
    k("s_barrier")
    for t in range(2):
        for kap in range(4):
            k(f"ds_read_b128 {X[t][kap]}, {vxrB} offset:{(t*4+kap)*1024}")
    Yr=Fr; Yi=Fi
    for t in range(2):
        for kap in range(4):
            k(f"s_waitcnt lgkmcnt({7-(t*4+kap)})")
            k(f"{MF_} {Yr[t]}, {BR[kap]}, {X[t][kap]}, {0 if kap==0 else Yr[t]}")
            k(f"{MF_} {Yi[t]}, {BI[kap]}, {X[t][kap]}, {0 if kap==0 else Yi[t]}")
    for t in range(2):
        for r in range(4): k(f"v_cvt_pk_bf16_f32 {G[t][r]}, {Yr[t][r]}, -{Yi[t][r]}")
        vm.op(f"buffer_store_dwordx4 {G[t]}, {vtok if t==0 else vo2}, {Rws}, {syb} offen sc1",'st')
    s.free(syb)
    stamp('p',6)
    NORL=k.label('NORL')
    vR=[Ur[0],Ur[1]]; c_,r_,G_,u1=Ui[0],Ui[1],Ui[2],Ui[3]
    k(f"""
v_and_b32 {c_}, 3, {lane}
v_bfe_u32 {r_}, {lane}, 2, 2
v_lshrrev_b32 {G_}, 4, {lane}
v_lshrrev_b32 {tv}, 1, {G_}
v_lshl_add_u32 {tv}, {tv}, 3, {r_}              ; 8h'+r'
v_lshlrev_b32 {vR[0]}, 7, {tv}
v_and_b32 {tv}, 1, {G_}
v_lshlrev_b32 {tv}, 1, {tv}
v_lshrrev_b32 {u1}, 1, {c_}
v_add_u32 {tv}, {tv}, {u1}                       ; 2(G&1) + (c>>1)
v_lshrrev_b32 {u1}, 1, {r_}
v_lshlrev_b32 {u1}, 2, {u1}
v_xor_b32 {tv}, {tv}, {u1}
v_lshl_add_u32 {vR[0]}, {tv}, 4, {vR[0]}
v_and_b32 {tv}, 1, {c_}
v_lshl_add_u32 {vR[0]}, {tv}, 3, {vR[0]}
s_lshl_b32 {t0}, {w}, 11
s_add_u32 {t0}, {t0}, {L_RL}
v_add_u32 {vR[0]}, {t0}, {vR[0]}
v_xor_b32 {vR[1]}, 64, {vR[0]}
s_cmp_lt_u32 s2, 32
s_cbranch_scc1 {NORL}
""")
    idx=max(i for i,t in enumerate(vm.ops) if t=='rl')
    k(f"s_waitcnt vmcnt({len(vm.ops)-1-idx})")
    frl=[Ar[0],Ar[1]]
    for nu in range(2):
        for e2 in range(2):
            k(f"ds_read_b64_tr_b16 {frl[nu][2*e2:2*e2+2]}, {vR[nu]} offset:{e2*512}")
    k("s_waitcnt lgkmcnt(0)")
    k(f"buffer_store_dwordx4 {frl[0]}, {vtok}, {Rws}, {sd_} offen sc1")
    k(f"buffer_store_dwordx4 {frl[1]}, {vtok}, {Rws}, {sd_} offen offset:1024 sc1")
    k(f"{NORL}:")
    s.free(sd_)
    sfb=s()
    k(f"""
s_lshr_b32 {sfb}, s2, 3
s_lshl_b32 {sfb}, {sfb}, 7
s_and_b32 {t0}, s2, 7
s_lshl_b32 {t0}, {t0}, 2
s_add_u32 {sfb}, {sfb}, {t0}
s_add_u32 {sfb}, {sfb}, {WS_FLB:#x}
v_mov_b32 {one}, 1
""")
    vm.drain()
    PB=k.label('PUBB')
    k(f"""
s_barrier
s_cmp_lg_u32 {w}, 0
s_cbranch_scc1 {PB}
s_mov_b64 exec, 1
buffer_store_dword {one}, {zero}, {Rws}, {sfb} offen sc1
s_mov_b64 exec, -1
{PB}:""")
    vm.ops.append('flag')
    s.free(sfb)
    stamp('p',7)
    for r in keepB: v.free(r)
    vy=v()
    sy0,sy1=s(),s()
    k(f"""
v_and_b32 {tv}, 1, v0
v_lshrrev_b32 {vy}, 1, v0
v_lshlrev_b32 {vy}, 13, {vy}
v_lshl_add_u32 {vy}, {tv}, 4, {vy}       ; k*8192 + half*16
s_lshl_b32 {sy0}, {beta}, 5
s_add_u32 {sy0}, {sy0}, {WS_Y:#x}
s_add_u32 {sy1}, {sy0}, {128*8192:#x}
""")
    Rw=s(4)
    mat,dh,sm0,schunk=s(),s(),s(),s()
    k(f"""
s_and_b32 {mat}, {w}, 1
s_lshr_b32 {dh}, {w}, 1
s_mul_i32 {t0}, {dh}, {32*3584}
s_mul_i32 {t1}, {fb}, 224
s_add_u32 {t0}, {t0}, {t1}
s_mul_i32 {sm0}, {mat}, {MAT}
s_mul_i32 {t1}, {dh}, 7168
s_add_u32 {sm0}, {sm0}, {t1}
s_mov_b32 {schunk}, 0
""")
    s.free(dh)
    p,rw=v(),v()
    cdiv=s(); k(f"s_mov_b32 {cdiv}, 4682")
    for n in range(7):
        k(f"v_add_u32 {p}, {64*n}, {lane}")
        k(f"v_mul_u32_u24 {rw}, {cdiv}, {p}")
        k(f"v_lshrrev_b32 {rw}, 16, {rw}")
        k(f"v_mul_u32_u24 {tv}, 14, {rw}")
        k(f"v_sub_u32 {p}, {p}, {tv}")
        k(f"v_mul_u32_u24 {rw}, 3584, {rw}")
        k(f"v_lshl_add_u32 {vd[n]}, {p}, 4, {rw}")
        k(f"v_add_u32 {vd[n]}, {t0}, {vd[n]}")
        if n&3: k(f"v_subrev_u32 {vd[n]}, {(n&3)*1024}, {vd[n]}")
    v.free(p,rw); s.free(cdiv)
    k(f"""
s_cmp_eq_u32 {mat}, 0
s_cselect_b32 {Rw[0]}, {pgu[0]}, {pgu[2]}
s_cselect_b32 {Rw[1]}, {pgu[1]}, {pgu[3]}
s_mov_b32 {Rw[2]}, {512*3584}
s_mov_b32 {Rw[3]}, 0x00020000
""")
    s.free(mat,pgu)
    def wgroup(c):
        out=[]; slot=c%NB
        for n in range(7):
            pre=""
            if n==0: pre=f"s_add_u32 m0, {sm0}, {slot*CHUNK}\ns_nop 0\n"
            if n==4: pre=f"s_add_u32 m0, {sm0}, {slot*CHUNK+4096}\ns_nop 0\n"
            post=f"\ns_add_u32 {schunk}, {schunk}, {64*3584}" if n==6 else ""
            out.append((pre+f"buffer_load_dwordx4 {vd[n]}, {Rw}, {schunk} offen offset:{(n&3)*1024} lds"+post, f"W{c}"))
        return out
    for c in range(WE):
        for x,tg in wgroup(c): vm.op(x,tg)
    stamp('a',1)
    Pm=[v(8,align=4),v(8,align=4)]; vo_,vo2_=v(),v(); sone=s()
    k(f"""
v_bfe_u32 {tv}, v0, 5, 1
v_lshlrev_b32 {vo_}, 10, {tv}                ; T*1024
v_bfe_u32 {tv}, v0, 1, 4
v_lshl_add_u32 {vo_}, {tv}, 4, {vo_}          ; + i*16
v_and_b32 {tv}, 1, v0
v_lshl_add_u32 {vo_}, {tv}, 9, {vo_}          ; + 2(u&1)*256
v_add_u32 {vo2_}, 256, {vo_}
v_lshlrev_b32 {tv}, 5, {lane}
s_cmp_eq_u32 {w}, 3
s_cselect_b64 vcc, -1, 0
v_cndmask_b32 {vo_}, {vo_}, {tv}, vcc
v_add_u32 {tv}, 16, {tv}
v_cndmask_b32 {vo2_}, {vo2_}, {tv}, vcc
s_lshl_b32 {t0}, {w}, 11
s_add_u32 {t0}, {t0}, {L_MOD}
v_add_u32 {vo_}, {t0}, {vo_}
v_add_u32 {vo2_}, {t0}, {vo2_}
s_cmp_eq_u32 {w}, 2
s_cselect_b32 {sone}, 1.0, 0
""")
    for q in range(2):
        for j in range(8): k(f"v_accvgpr_read_b32 {Pm[q][j]}, {PP[8*q+j]}")
    for j in range(8): k(f"v_add_f32 {Pm[0][j]}, {Pm[0][j]}, {Pm[1][j]}")
    for rnd in range(2):
        for p in range(4):
            k(f"v_cvt_pk_bf16_f32 {Pm[1][p]}, {Pm[0][2*p]}, {Pm[0][2*p+1]}")
        for p in range(4):
            k(f"v_lshlrev_b32 {Pm[0][2*p]}, 16, {Pm[1][p]}")
            k(f"v_and_b32 {Pm[0][2*p+1]}, 0xffff0000, {Pm[1][p]}")
        if rnd==0:
            for j in range(8): k(f"v_add_f32 {Pm[0][j]}, {sone}, {Pm[0][j]}")
    k(f"ds_write_b128 {vo_}, {Pm[0][0:4]}")
    k(f"ds_write_b128 {vo2_}, {Pm[0][4:8]}")
    v.free(Pm[0],Pm[1],vo_,vo2_); s.free(sone)
    a.free(XA,PP,PFD)
    keepC=[]
    def cv(n=1,align=None):
        r=v(n,align); keepC.append(r); return r
    fi,fg,f,arg,c0,s0,c1,s1,mi=cv(),cv(),cv(),cv(),cv(),cv(),cv(),cv(),cv()
    k(f"""
v_cvt_f32_u32 {fi}, {vi}
v_cvt_f32_u32 {fg}, {vg}
v_and_b32 {tv}, 1, {vi}
v_mul_u32_u24 {mi}, 0x8000, {tv}
v_lshl_or_b32 {mi}, {mi}, 16, {mi}
""")
    BAr=cv(2); BAi=cv(2)
    k(f"v_mul_f32 {f}, 0x3d800000, {fi}")
    k(f"v_add_f32 {arg}, {fg}, {fg}")
    k(f"v_mul_f32 {arg}, {arg}, {f}")
    for b in range(2):
        k(f"v_cos_f32 {c0}, {arg}")
        k(f"v_sin_f32 {s0}, {arg}")
        if b==0: k(f"v_add_f32 {arg}, {arg}, {f}")
        k(f"v_cvt_pk_bf16_f32 {BAr[b]}, {c0}, -{s0}")
        k(f"v_cvt_pk_bf16_f32 {BAi[b]}, {s0}, {c0}")
    TC=cv(8,align=4); TS=cv(8,align=4); f13,g4=cv(),cv()
    k(f"v_mul_f32 {g4}, 4.0, {fg}")
    k(f"v_mul_f32 {f}, 0x3b000000, {fi}")
    k(f"v_mul_f32 {f13}, 0x41500000, {f}")
    k(f"v_mul_f32 {arg}, {g4}, {f}")
    for u in range(2):
        for r in range(4):
            k(f"v_cos_f32 {TC[4*u+r]}, {arg}")
            k(f"v_sin_f32 {TS[4*u+r]}, {arg}")
            if not(u==1 and r==3): k(f"v_add_f32 {arg}, {arg}, {f if r<3 else f13}")
    yv=[v(4,align=4),v(4,align=4)]; ny=v(2)
    BB=[[cv(4,align=4) for u in range(2)] for t in range(2)]
    cc4=cv(4,align=2); ss4=cv(4,align=2)
    k(f"v_mul_f32 {f}, 0x3d000000, {fi}")
    k(f"v_mul_f32 {arg}, {g4}, {f}")
    for j in range(4):
        k(f"v_cos_f32 {cc4[j]}, {arg}")
        k(f"v_sin_f32 {ss4[j]}, {arg}")
        if j<3: k(f"v_add_f32 {arg}, {arg}, {f}")
    b00=BB[0][0]
    k(f"v_cvt_pk_bf16_f32 {b00[0]}, {cc4[0]}, {cc4[1]}")
    k(f"v_cvt_pk_bf16_f32 {b00[1]}, {cc4[2]}, {cc4[3]}")
    k(f"v_cvt_pk_bf16_f32 {b00[2]}, -{ss4[0]}, -{ss4[1]}")
    k(f"v_cvt_pk_bf16_f32 {b00[3]}, -{ss4[2]}, -{ss4[3]}")
    for j in range(4): k(f"v_xor_b32 {BB[0][1][j]}, {mi}, {b00[j]}")
    for j in range(4): k(f"v_xor_b32 {BB[1][0][j]}, 0x80000000, {b00[j]}")
    for j in range(4): k(f"v_xor_b32 {BB[1][1][j]}, 0x80000000, {BB[0][1][j]}")
    cny=cv()
    k(f"""
v_lshlrev_b32 {tv}, 31, {vi}
v_or_b32 {tv}, 1.0, {tv}
v_cmp_eq_u32 vcc, 0, {vg}
v_cndmask_b32 {cny}, 0, {tv}, vcc
""")
    vlw,vlr,vl2w,vl2r,vst,vxs=cv(),cv(),cv(),cv(),cv(),cv()
    sh2,sx1=s(),s()
    k(f"""
v_and_b32 {tv}, 1, v0
v_mul_u32_u24 {vlw}, 4160, {tv}
v_lshrrev_b32 {tv}, 1, v0
v_lshl_add_u32 {vlw}, {tv}, 2, {vlw}
v_add_u32 {vlw}, {L_Y}, {vlw}              ; half*4160 + k*4
s_mul_i32 {t0}, {w}, 1040
s_add_u32 {t0}, {t0}, {L_Y}
v_lshlrev_b32 {vlr}, 8, {vg}
v_lshl_add_u32 {vlr}, {vi}, 2, {vlr}
v_add_u32 {vlr}, {t0}, {vlr}               ; w*1040 + (i+64g)*4
s_lshl_b32 {t0}, {w}, 4
s_add_u32 {t0}, {t0}, {L_H}
v_mul_u32_u24 {vl2w}, 272, {vi}
v_lshrrev_b32 {tv}, 1, {vg}
v_lshl_add_u32 {vl2w}, {tv}, 7, {vl2w}
v_and_b32 {tv}, 1, {vg}
v_lshl_add_u32 {vl2w}, {tv}, 3, {vl2w}
v_add_u32 {vl2w}, {t0}, {vl2w}             ; i*272 + (g>>1)*128 + w*16 + (g&1)*8   (+ t*16*272 + j*64)
v_lshrrev_b32 {tv}, 4, v0                  ; p>>1
v_mul_u32_u24 {vl2r}, 272, {tv}
v_and_b32 {tv}, 15, v0                     ; (p&1)*8 + row
v_lshl_add_u32 {vl2r}, {tv}, 4, {vl2r}
v_add_u32 {vl2r}, {L_H}, {vl2r}
v_lshrrev_b32 {tv}, 3, v0                  ; p
v_lshlrev_b32 {vst}, 9, {tv}
v_and_b32 {tv}, 7, v0
v_lshl_add_u32 {vst}, {tv}, 4, {vst}       ; p*512 + row*16
s_lshr_b32 {sh2}, {beta}, 2
s_lshl_b32 {sh2}, {sh2}, 15
s_and_b32 {t1}, {beta}, 3
s_lshl_b32 {t1}, {t1}, 7
s_add_u32 {sh2}, {sh2}, {t1}
s_add_u32 {sh2}, {sh2}, {WS_H2F:#x}
s_lshl_b32 {sx1}, {beta}, 3
s_add_u32 {sx1}, {sx1}, {w}
s_lshl_b32 {sx1}, {sx1}, 10
s_add_u32 {sx1}, {sx1}, {WS_X1R:#x}
s_lshl_b32 {t0}, {w}, 11
s_add_u32 {t0}, {t0}, {L_X}
v_add_u32 {vxs}, {t0}, {vxo}
""")
    vxsr=cv(); k(f"v_add_u32 {vxsr}, {t0}, {vtok}")
    vmr=cv(); k(f"v_add_u32 {vmr}, {L_MOD}, {vtok}")
    vny=cv()
    k(f"s_mul_i32 {t0}, {w}, 1040")
    k(f"s_add_u32 {t0}, {t0}, {L_Y}")
    k(f"v_mov_b32 {vny}, {t0}")
    stamp('a',2)
    PL,PD,PX=k.label('POLLY'),k.label('POLLYD'),k.label('POLLYX')
    pf4=yv[0]; cnt=s()
    k(f"""
s_cmp_lg_u32 {w}, 0
s_cbranch_scc1 {PX}
v_lshrrev_b32 {vfl}, 1, {lane}
v_lshlrev_b32 {vfl}, 7, {vfl}
v_and_b32 {tv}, 1, {lane}
v_lshl_add_u32 {vfl}, {tv}, 4, {vfl}
s_mov_b32 {t1}, {WS_FLB:#x}
s_mov_b32 {cnt}, 0
{PL}:
buffer_load_dwordx4 {pf4}, {vfl}, {Rws}, {t1} offen sc1
s_add_u32 {cnt}, {cnt}, 1
s_waitcnt vmcnt(0)
v_min3_u32 {vf}, {pf4[0]}, {pf4[1]}, {pf4[2]}
v_min_u32 {vf}, {vf}, {pf4[3]}
v_cmp_eq_u32 vcc, 0, {vf}
s_cbranch_vccz {PD}
s_cmp_lt_u32 {cnt}, {SPIN:#x}
s_cbranch_scc1 {PL}
{PD}:
{PX}:
s_waitcnt lgkmcnt(0)
s_barrier
""")
    stamp('a',3)
    vm.op(f"buffer_load_dwordx4 {yv[0]}, {vy}, {Rws}, {sy0} offen sc1",'y')
    vm.op(f"buffer_load_dwordx4 {yv[1]}, {vy}, {Rws}, {sy1} offen sc1",'y')
    s.free(sy0,sy1)
    for c in range(WE,WE+WY):
        for x,tg in wgroup(c): vm.op(x,tg)
    vm.wait('y')
    stamp('a',4)
    for jj in range(2):
        for e in range(4): k(f"ds_write_b32 {vlw}, {yv[jj][e]} offset:{1040*e+512*jj}")
    k("s_waitcnt lgkmcnt(0)")
    k("s_barrier")
    Ad=[[cv(2) for u in range(2)] for j in range(2)]
    for j in range(2):
        for u in range(2):
            for b in range(2):
                k(f"ds_read_b32 {Ad[j][u][b]}, {vlr} offset:{4160*j+64*u+128*b}")
    for j in range(2): k(f"ds_read_b32 {ny[j]}, {vny} offset:{4160*j}")
    ga=[cv(4,align=4),cv(4,align=4)]; sb=[cv(4,align=4),cv(4,align=4)]; cb=[cv(4,align=4),cv(4,align=4)]
    for t in range(2): k(f"ds_read_b128 {ga[t]}, {vmr} offset:{1024*t}")
    Dr=[[cv(4,align=4),cv(4,align=4)] for j in range(2)]; Di=[[cv(4,align=4),cv(4,align=4)] for j in range(2)]
    nrd=12
    for j in range(2):
        for u in range(2):
            k(f"s_waitcnt lgkmcnt({nrd-2*(2*j+u+1)})")
            k(f"{MF16} {Dr[j][u]}, {Ad[j][u]}, {BAr}, 0")
            k(f"{MF16} {Di[j][u]}, {Ad[j][u]}, {BAi}, 0")
    for t in range(2): k(f"ds_read_b128 {sb[t]}, {vmr} offset:{2048+1024*t}")
    for t in range(2): k(f"ds_read_b128 {cb[t]}, {vmr} offset:{4096+1024*t}")
    k("s_waitcnt lgkmcnt(4)")
    for j in range(2): k(f"v_and_b32 {ny[j]}, 0xffff0000, {ny[j]}")
    Ur=[cv(4,align=4),cv(4,align=4)]; Ui=[cv(4,align=4),cv(4,align=4)]
    AB=[[cv(4,align=4),cv(4,align=4)] for j in range(2)]
    Yo=[[cv(4,align=4),cv(4,align=4)] for j in range(2)]
    for j in range(2): k(f"v_fmac_f32 {Dr[j][0][0]}, {cny}, {ny[j]}")
    for u in range(2):
        for j in range(2):
            for r in range(4):
                k(f"v_mul_f32 {Ur[j][r]}, {Dr[j][u][r]}, {TC[4*u+r]}")
                k(f"v_mul_f32 {Ui[j][r]}, {Di[j][u][r]}, {TC[4*u+r]}")
            for r in range(4):
                k(f"v_fma_f32 {Ur[j][r]}, -{Di[j][u][r]}, {TS[4*u+r]}, {Ur[j][r]}")
                k(f"v_fmac_f32 {Ui[j][r]}, {Dr[j][u][r]}, {TS[4*u+r]}")
            k(f"v_cvt_pk_bf16_f32 {AB[j][u][0]}, {Ur[j][0]}, {Ur[j][1]}")
            k(f"v_cvt_pk_bf16_f32 {AB[j][u][1]}, {Ur[j][2]}, {Ur[j][3]}")
            k(f"v_cvt_pk_bf16_f32 {AB[j][u][2]}, {Ui[j][0]}, {Ui[j][1]}")
            k(f"v_cvt_pk_bf16_f32 {AB[j][u][3]}, {Ui[j][2]}, {Ui[j][3]}")
            for t in range(2):
                k(f"{MF16x32} {Yo[j][t]}, {AB[j][u]}, {BB[t][u]}, {0 if u==0 else Yo[j][t]}")
    stamp('a',5)
    x1=[cv(8,align=4),cv(8,align=4)]
    def unpack(j):
        for t in range(2):
            k(f"v_lshlrev_b32 {x1[j][4*t+0]}, 16, {xr[j][t][0]}")
            k(f"v_and_b32 {x1[j][4*t+1]}, 0xffff0000, {xr[j][t][0]}")
            k(f"v_lshlrev_b32 {x1[j][4*t+2]}, 16, {xr[j][t][1]}")
            k(f"v_and_b32 {x1[j][4*t+3]}, 0xffff0000, {xr[j][t][1]}")
    for j in range(2): unpack(j)
    k("s_waitcnt lgkmcnt(0)")
    for j in range(2):
        for t in range(2):
            for r in range(4): k(f"v_fmac_f32 {x1[j][4*t+r]}, {ga[t][r]}, {Yo[j][t][r]}")
        for t in range(2):
            k(f"v_cvt_pk_bf16_f32 {xr[j][t][0]}, {x1[j][4*t+0]}, {x1[j][4*t+1]}")
            k(f"v_cvt_pk_bf16_f32 {xr[j][t][1]}, {x1[j][4*t+2]}, {x1[j][4*t+3]}")
        for t in range(2): k(f"ds_write_b64 {vxs}, {xr[j][t]} offset:{1024*j+512*t}")
    for j in range(2): unpack(j)
    k("s_waitcnt lgkmcnt(0)")
    for j in range(2): k(f"ds_read_b128 {yv[j]}, {vxsr} offset:{1024*j}")
    sm=[cv(),cv()]; tt=[cv(),cv()]; ca=[c0,c1]; cb_=[s0,s1]
    def both(fn):
        for j in range(2): fn(j)
    for j in range(2):
        X=x1[j]
        k(f"v_add_f32 {sm[j]}, {X[0]}, {X[1]}")
        k(f"v_add_f32 {tt[j]}, {X[2]}, {X[3]}")
        k(f"v_add_f32 {ca[j]}, {X[4]}, {X[5]}")
        k(f"v_add_f32 {cb_[j]}, {X[6]}, {X[7]}")
    for j in range(2):
        k(f"v_add_f32 {sm[j]}, {sm[j]}, {tt[j]}")
        k(f"v_add_f32 {ca[j]}, {ca[j]}, {cb_[j]}")
    for j in range(2): k(f"v_add_f32 {sm[j]}, {sm[j]}, {ca[j]}")
    def allreduce2():
        for r in (8,4,2,1):
            for j in range(2): k(f"v_add_f32_dpp {sm[j]}, {sm[j]}, {sm[j]} row_ror:{r} row_mask:0xf bank_mask:0xf")
        for sw in ('16','32'):
            for j in range(2): k(f"v_mov_b32 {tt[j]}, {sm[j]}")
            for j in range(2): k(f"v_permlane{sw}_swap_b32 {sm[j]}, {tt[j]}")
            for j in range(2): k(f"v_add_f32 {sm[j]}, {sm[j]}, {tt[j]}")
    allreduce2()
    k("s_waitcnt lgkmcnt(0)")
    for j in range(2):
        pass
    lbq=[]
    lbr=[Dr[0][0],Dr[0][1],Dr[1][0],Dr[1][1]]
    def x1store():
        vm.op(f"buffer_store_dwordx4 {yv[0]}, {vtok}, {Rws}, {sx1} offen {SM}",'sx' if XL else 'st')
        if LOCAL and LB: vm.op(f"buffer_load_dwordx4 {lbr[0]}, {vtok}, {Rws}, {sx1} offen {LBM}",'st')
        k(f"s_add_u32 {sx1}, {sx1}, 4096")
        vm.op(f"buffer_store_dwordx4 {yv[1]}, {vtok}, {Rws}, {sx1} offen {SM}",'sx' if XL else 'st')
        if LOCAL and LB: vm.op(f"buffer_load_dwordx4 {lbr[1]}, {vtok}, {Rws}, {sx1} offen {LBM}",'st')
        s.free(sx1)
    if XL==0: x1store()
    for j in range(2): k(f"v_mul_f32 {sm[j]}, 0xbb000000, {sm[j]}")
    for j in range(2):
        for q in range(8): k(f"v_add_f32 {x1[j][q]}, {x1[j][q]}, {sm[j]}")
    for j in range(2):
        k(f"v_mul_f32 {sm[j]}, {x1[j][0]}, {x1[j][0]}")
        k(f"v_mul_f32 {ca[j]}, {x1[j][1]}, {x1[j][1]}")
    for q in range(2,8,2):
        for j in range(2):
            k(f"v_fmac_f32 {sm[j]}, {x1[j][q]}, {x1[j][q]}")
            k(f"v_fmac_f32 {ca[j]}, {x1[j][q+1]}, {x1[j][q+1]}")
    for j in range(2): k(f"v_add_f32 {sm[j]}, {sm[j]}, {ca[j]}")
    allreduce2()
    for j in range(2):
        k(f"v_mov_b32 {tt[j]}, 0x3727c5ac")
        k(f"v_fmac_f32 {tt[j]}, 0x3b000000, {sm[j]}")
    for j in range(2): k(f"v_rsq_f32 {tt[j]}, {tt[j]}")
    for j in range(2):
        for q in range(8): k(f"v_mul_f32 {x1[j][q]}, {x1[j][q]}, {tt[j]}")
    for j in range(2):
        for t in range(2):
            for r in range(4): k(f"v_fma_f32 {x1[j][4*t+r]}, {x1[j][4*t+r]}, {cb[t][r]}, {sb[t][r]}")
        for t in range(2):
            k(f"v_cvt_pk_bf16_f32 {xr[j][t][0]}, {x1[j][4*t+0]}, {x1[j][4*t+1]}")
            k(f"v_cvt_pk_bf16_f32 {xr[j][t][1]}, {x1[j][4*t+2]}, {x1[j][4*t+3]}")
            k(f"ds_write_b64 {vl2w}, {xr[j][t]} offset:{t*16*272+64*j}")
    k("s_waitcnt lgkmcnt(0)")
    k("s_barrier")
    hv=[x1[0][0:4],x1[1][0:4]]
    for jj in range(2): k(f"ds_read_b128 {hv[jj]}, {vl2r} offset:{jj*16*272}")
    k("s_waitcnt lgkmcnt(1)")
    if LOCAL: STM_=SM
    else: STM_=STM
    vm.op(f"buffer_store_dwordx4 {hv[0]}, {vst}, {Rws}, {sh2} offen {STM_}",'st')
    if LOCAL and LB: vm.op(f"buffer_load_dwordx4 {lbr[2]}, {vst}, {Rws}, {sh2} offen {LBM}",'st')
    k(f"s_add_u32 {sh2}, {sh2}, {32*512}")
    k("s_waitcnt lgkmcnt(0)")
    vm.op(f"buffer_store_dwordx4 {hv[1]}, {vst}, {Rws}, {sh2} offen {STM_}",'st')
    if LOCAL and LB: vm.op(f"buffer_load_dwordx4 {lbr[3]}, {vst}, {Rws}, {sh2} offen {LBM}",'st')
    s.free(sh2)
    if XL==1: x1store()
    if not FF:
        for c in range(WE+WY,4):
            for x,tg in wgroup(c): vm.op(x,tg)
    stamp('a',6)
    sfl=s()
    k(f"s_lshl_b32 {sfl}, {beta}, 7")
    k(f"s_add_u32 {sfl}, {sfl}, {WS_FLG:#x}")
    k(f"v_mov_b32 {one}, 1")
    def publish(lab):
        if PW: vm.wait('st')
        else: vm.drain()
        k("s_barrier")
        k(f"s_cmp_lg_u32 {w}, 0")
        k(f"s_cbranch_scc1 {lab}")
        k("s_mov_b64 exec, 1")
        k(f"buffer_store_dword {one}, {zero}, {Rws}, {sfl} offen {SM}")
        k("s_mov_b64 exec, -1")
        k(f"{lab}:")
        vm.ops.append('flag')
    publish(k.label('PUB'))
    stamp('a',7)
    if XL==2: x1store()
    if FF:
        for c in range(WE+WY,4):
            for x,tg in wgroup(c): vm.op(x,tg)
    for r in keepC: v.free(r)
    v.free(vy,vxo,ny,vi,vg,*yv)
    for j in range(2): v.free(*xr[j])
    acc=[v.at(24+16*q,16) for q in range(7)]
    fr=[[v.at(136+28*b+4*q,4) for q in range(7)] for b in range(2)]
    W2=v.at(192,64)
    v.free(resv)
    tok=a(128,align=4); W1=a(128,align=4)
    Wf=[W1[4*q:4*q+4] for q in range(32)]+[W2[4*q:4*q+4] for q in range(16)]+[tok[4*q:4*q+4] for q in range(8)]
    tb5,nb,sw5=s(),s(),s()
    if MAP==0:
        k(f"""
s_and_b32 {t0}, s2, 7
s_lshr_b32 {t1}, s2, 3
s_lshl_b32 {tb5}, {t0}, 2
s_and_b32 {t0}, {t1}, 3
s_add_u32 {tb5}, {tb5}, {t0}
s_lshr_b32 {nb}, {t1}, 2
""")
    else:
        k(f"""
s_lshl_b32 {tb5}, {tb}, 1
s_and_b32 {t0}, {fb}, 1
s_add_u32 {tb5}, {tb5}, {t0}
s_lshr_b32 {nb}, {fb}, 1
""")
    k(f"""
s_mul_i32 {sw5}, {nb}, {112*2048}
s_mul_i32 {t0}, {w}, {28*2048}
s_add_u32 {sw5}, {sw5}, {t0}
s_add_u32 {sw5}, {sw5}, {WS_WDF:#x}
""")
    w5=[]
    for q in range(56):
        post=f"\ns_add_u32 {sw5}, {sw5}, 4096" if q&3==3 else ""
        w5.append((f"buffer_load_dwordx4 {Wf[q]}, {vtok}, {Rws}, {sw5} offen offset:{(q&3)*1024} sc1"+post, f"V{q}"))
    for x,tg in wgroup(4): vm.op(x,tg)
    for _ in range(N1): x,tg=w5.pop(0); vm.op(x,tg)
    spo=s()
    def poll(lab):
        P,Dn=k.label(lab),k.label(lab+'D')
        k(f"""
s_mov_b32 {cnt}, 0
s_mov_b64 exec, 15
{P}:
buffer_load_dword {vf}, {vfl}, {Rws}, {spo} offen {PLM}
s_add_u32 {cnt}, {cnt}, 1
s_waitcnt vmcnt(0)
v_cmp_eq_u32 vcc, 0, {vf}
s_cbranch_vccz {Dn}
s_cmp_lt_u32 {cnt}, {SPIN:#x}
s_cbranch_scc1 {P}
{Dn}:
s_mov_b64 exec, -1
""")
        vm.ops=[]
    stok,tt4=s(),s()
    k(f"""
v_lshlrev_b32 {vfl}, 7, {lane}
s_lshl_b32 {spo}, {tb}, 4
s_lshl_b32 {t0}, {w}, 2
s_add_u32 {spo}, {spo}, {t0}
s_lshl_b32 {spo}, {spo}, 7
s_add_u32 {spo}, {spo}, {WS_FLG:#x}
s_lshl_b32 {tt4}, {tb}, 2
s_add_u32 {tt4}, {tt4}, {w}
s_lshl_b32 {stok}, {tt4}, 15
s_add_u32 {stok}, {stok}, {WS_H2F:#x}
""")
    c_,r_,G_=v(),v(),v()
    k(f"""
v_and_b32 {c_}, 3, {lane}
v_bfe_u32 {r_}, {lane}, 2, 2
v_lshrrev_b32 {G_}, 4, {lane}
v_lshrrev_b32 {tv}, 1, {c_}
v_mul_u32_u24 {vA[0]}, {MAT}, {tv}
v_lshrrev_b32 {tv}, 1, {G_}
v_lshl_add_u32 {tv}, {tv}, 3, {r_}
v_mul_u32_u24 {tv}, 224, {tv}
v_add_u32 {vA[0]}, {vA[0]}, {tv}
v_and_b32 {tv}, 1, {c_}
v_lshl_add_u32 {vA[0]}, {tv}, 4, {vA[0]}
v_and_b32 {tv}, 1, {G_}
v_lshl_add_u32 {vA[0]}, {tv}, 3, {vA[0]}
""")
    for b in range(1,NB): k(f"v_add_u32 {vA[b]}, {b*CHUNK}, {vA[0]}")
    v.free(c_,r_,G_)
    def reads(c,kap,buf):
        out=[]
        for t7 in range(7):
            for e in range(2):
                out.append(f"ds_read_b64_tr_b16 {fr[buf][t7][2*e:2*e+2]}, {vA[c%NB]} offset:{kap*3584+e*896+t7*32}")
        return out
    sst=s()
    k(f"""
s_mul_i32 {sst}, {tt4}, 112
s_mul_i32 {t0}, {fb}, 7
s_add_u32 {sst}, {sst}, {t0}
s_lshl_b32 {sst}, {sst}, 10
s_add_u32 {sst}, {sst}, {WS_HHF:#x}
""")
    for x in reads(0,0,0): k(x)
    poll('POLLA')
    stamp('a',8); stamp('b',1)
    tl=[]
    for c in range(8):
        for kap in range(4):
            post=f"\ns_add_u32 {stok}, {stok}, 4096" if kap==3 else ""
            tl.append((f"buffer_load_dwordx4 {tok[16*c+4*kap:16*c+4*kap+4]}, {vtok}, {Rws}, {stok} offen offset:{kap*1024} {LDM}"+post, f"T{c}{kap}"))
    for _ in range(TUP): x,tg=tl.pop(0); vm.op(x,tg)
    stamp('b',2)
    pend=[]; step=0
    nsteps=32
    w5late=w5[len(w5)-N2:] if N2 else []
    w5=w5[:len(w5)-N2]
    left=len(w5)
    sched={}
    first=V0; lastst=V1
    for q in range(left):
        st=first+(q*(lastst-first+1))//left
        sched[st]=sched.get(st,0)+1
    for c in range(8):
        for kap in range(4):
            buf=step&1
            last=(c==7 and kap==3)
            nc,nk=(c,kap+1) if kap<3 else (c+1,0)
            rd=[] if last else reads(nc,nk,buf^1)
            if kap==0 and c==1: stamp('b',3)
            if kap==0 and c==3: stamp('b',4)
            if kap==0 and c==5: stamp('b',5)
            if kap==3 and c<7:
                k("s_waitcnt lgkmcnt(0)")
                vm.wait(f"T{c}{kap}", f"W{c+1}")
                k("s_barrier")
                if c+NB<8: pend=pend+wgroup(c+NB)
            else:
                k("s_waitcnt lgkmcnt(8)")
                vm.wait(f"T{c}{kap}")
            extra=[]
            for _ in range(TPS):
                if tl: extra.append(tl.pop(0))
            for _ in range(sched.get(step,0)):
                x,tg=w5.pop(0)
                q=int(tg[1:])
                assert q<48 or step>=8, (q,step)
                extra.append((x,tg))
            ri=0
            for t7 in range(7):
                if t7==3 and not(kap==3 and c<7):
                    k(f"s_waitcnt lgkmcnt({0 if last else 9})")
                cin = 0 if step==0 else acc[t7]
                k(f"{MF} {acc[t7]}, {fr[buf][t7]}, {tok[16*c+4*kap:16*c+4*kap+4]}, {cin}")
                nrd=3 if t7<4 else 2
                for _ in range(nrd):
                    if ri<len(rd): k(rd[ri]); ri+=1
                if t7 in (1,3,5) and pend: x,tg=pend.pop(0); vm.op(x,tg)
                if (t7 in (0,2,4,6) or (t7 in (1,3,5) and not pend)) and extra: x,tg=extra.pop(0); vm.op(x,tg)
            assert ri==len(rd) and not extra
            step+=1
    assert not pend and not w5
    stamp('b',6); stamp('c',1)
    o=[fr[0][0],fr[0][1]]
    for t7 in range(7):
        A=acc[t7]; oo=o[t7&1]
        for r in range(4):
            k(f"v_mul_f32 {A[r]}, {A[r]}, {A[4+r]}")
            k(f"v_mul_f32 {A[8+r]}, {A[8+r]}, {A[12+r]}")
        k(f"v_cvt_pk_bf16_f32 {oo[0]}, {A[0]}, {A[1]}")
        k(f"v_cvt_pk_bf16_f32 {oo[1]}, {A[2]}, {A[3]}")
        k(f"v_cvt_pk_bf16_f32 {oo[2]}, {A[8]}, {A[9]}")
        k(f"v_cvt_pk_bf16_f32 {oo[3]}, {A[10]}, {A[11]}")
        if t7==4: k(f"s_add_u32 {sst}, {sst}, 4096")
        vm.op(f"buffer_store_dwordx4 {oo}, {vtok}, {Rws}, {sst} offen offset:{(t7&3)*1024} {SM}",'st')
        if LOCAL and LB: vm.op(f"buffer_load_dwordx4 {fr[1][t7]}, {vtok}, {Rws}, {sst} offen offset:{(t7&3)*1024} {LBM}",'st')
    stamp('c',2)
    k(f"s_add_u32 {sfl}, {sfl}, {256*128}")
    v.free(*vd); v.free(*vA)
    RED=0; WST=64*272
    vx1,vout,vgb,vrr,vrw=v(),v(),v(),v(),v()
    tau,pos,u1=v(),v(),v()
    sx5,stok5=stok,sst
    stk2=s()
    k(f"""
v_lshrrev_b32 {tau}, 2, v0
s_lshl_b32 {t0}, {tb5}, 6
v_add_u32 {pos}, {t0}, {tau}
v_and_b32 {tv}, 3, v0
v_lshlrev_b32 {vgb}, 5, {tv}
s_lshl_b32 {t0}, {nb}, 7
v_add_u32 {vgb}, {t0}, {vgb}                    ; nb*128 + c*32
v_lshl_add_u32 {vx1}, {pos}, 10, {vgb}
v_bfe_u32 {u1}, {pos}, 8, 2
v_lshlrev_b32 {vout}, 9, {u1}                   ; 512*kap
v_bfe_u32 {u1}, {pos}, 6, 2
v_lshl_add_u32 {vout}, {u1}, 7, {vout}          ; +128 g
v_and_b32 {u1}, 3, {pos}
v_lshl_add_u32 {vout}, {u1}, 5, {vout}          ; +32 e
v_lshrrev_b32 {u1}, 10, {pos}
v_lshl_add_u32 {vout}, {u1}, 4, {vout}          ; +16 t
v_bfe_u32 {u1}, {pos}, 2, 4
v_add_u32 {vout}, {vout}, {u1}                  ; + i
v_lshl_add_u32 {vout}, {vout}, 10, {vgb}        ; s*1024 + nb*128 + c*32
v_lshlrev_b32 {vgb}, 1, {vgb}
v_add_u32 {vgb}, {L_MOD+6144}, {vgb}
v_mul_u32_u24 {vrr}, 272, {tau}
v_lshl_add_u32 {vrr}, {tv}, 6, {vrr}            ; tau*272 + c*64
s_mul_i32 {t0}, {w}, {WST}
v_and_b32 {tv}, 31, {lane}
v_mul_u32_u24 {vrw}, 272, {tv}
v_lshrrev_b32 {tv}, 5, {lane}
v_lshl_add_u32 {vrw}, {tv}, 4, {vrw}
v_add_u32 {vrw}, {t0}, {vrw}
s_lshr_b32 {spo}, {tb5}, 1
s_lshl_b32 {spo}, {spo}, 4
s_lshl_b32 {t0}, {w}, 2
s_add_u32 {spo}, {spo}, {t0}
s_lshl_b32 {spo}, {spo}, 7
s_add_u32 {spo}, {spo}, {WS_FLG+256*128:#x}
""")
    v.free(tau,pos,u1)
    publish(k.label('PUB'))
    stamp('c',3)
    for x,tg in w5late: vm.op(x,tg)
    k(f"""
s_mul_i32 {stok5}, {tb5}, {2*112*1024}
s_mul_i32 {t0}, {w}, {28*1024}
s_add_u32 {stok5}, {stok5}, {t0}
s_add_u32 {stok5}, {stok5}, {WS_HHF:#x}
s_add_u32 {stk2}, {stok5}, {112*1024}
s_mov_b32 {sx5}, {WS_X1R:#x}
""")
    acc5=[[acc[0],acc[1]],[acc[2],acc[3]]]
    pool=[tok[32+4*q:36+4*q] for q in range(24)]
    for t7 in (4,5,6): pool+=[acc[t7][4*q:4*q+4] for q in range(4)]
    for b in range(2): pool+=[fr[b][t7] for t7 in range(7)]
    pool=pool[:2*D5]
    assert len(pool)==2*D5
    x1e=Reg('v',fr[1][5].idx,8)
    poll('POLLB')
    stamp('c',4)
    def tload(j):
        sl=j%D5
        o_=(j&3)*1024
        out=[(f"buffer_load_dwordx4 {pool[2*sl]}, {vtok}, {Rws}, {stok5} offen offset:{o_} {LDM}",f"H{j}"),
             (f"buffer_load_dwordx4 {pool[2*sl+1]}, {vtok}, {Rws}, {stk2} offen offset:{o_} {LDM}"+
              (f"\ns_add_u32 {stok5}, {stok5}, 4096\ns_add_u32 {stk2}, {stk2}, 4096" if j&3==3 else ""),f"H{j}")]
        return out
    for j in range(U5):
        for x,tg in tload(j): vm.op(x,tg)
    stamp('c',5)
    x1l=[(f"buffer_load_dwordx4 {x1e[0:4]}, {vx1}, {Rws}, {sx5} offen {LDM}",'x1'),
         (f"buffer_load_dwordx4 {x1e[4:8]}, {vx1}, {Rws}, {sx5} offen offset:16 {LDM}",'x1')]
    for j in range(28):
        vm.wait(f"H{j}")
        if j==1: stamp('c',6)
        sl=j%D5
        ld=tload(j+U5) if j+U5<28 else (x1l if j+U5==28 else [])
        n=0
        for nu in range(2):
            for t_ in range(2):
                cin=0 if j==0 else acc5[nu][t_]
                k(f"{MF} {acc5[nu][t_]}, {Wf[2*j+nu]}, {pool[2*sl+t_]}, {cin}")
                if n in (0,2) and ld: x,tg=ld.pop(0); vm.op(x,tg)
                n+=1
    stamp('c',7)
    for t_ in range(2):
        for nu in range(2):
            for q in range(4):
                k(f"ds_write_b128 {vrw}, {acc5[nu][t_][4*q:4*q+4]} offset:{t_*32*272+nu*128+q*32}")
    Ro=s(4); srd(k,Ro,pout,2048*1024)
    gb=W2[0:16]
    for q in range(4): k(f"ds_read_b128 {gb[4*q:4*q+4]}, {vgb} offset:{16*q}")
    k("s_waitcnt lgkmcnt(0)")
    k("s_barrier")
    S=[acc[0],acc[1],acc[2],acc[3]]
    for ww in range(4):
        for q in range(4):
            k(f"ds_read_b128 {S[ww][4*q:4*q+4]}, {vrr} offset:{ww*WST+q*16}")
    k("s_waitcnt lgkmcnt(8)")
    for j in range(16): k(f"v_add_f32 {S[0][j]}, {S[0][j]}, {S[1][j]}")
    k("s_waitcnt lgkmcnt(0)")
    for j in range(16): k(f"v_add_f32 {S[2][j]}, {S[2][j]}, {S[3][j]}")
    for j in range(16): k(f"v_add_f32 {S[0][j]}, {S[0][j]}, {S[2][j]}")
    vm.wait('x1')
    xe=S[1]
    for p_ in range(8):
        k(f"v_lshlrev_b32 {xe[2*p_]}, 16, {x1e[p_]}")
        k(f"v_and_b32 {xe[2*p_+1]}, 0xffff0000, {x1e[p_]}")
    for j in range(16): k(f"v_fmac_f32 {xe[j]}, {gb[j]}, {S[0][j]}")
    for p_ in range(8): k(f"v_cvt_pk_bf16_f32 {x1e[p_]}, {xe[2*p_]}, {xe[2*p_+1]}")
    k(f"buffer_store_dwordx4 {x1e[0:4]}, {vout}, {Ro}, 0 offen")
    k(f"buffer_store_dwordx4 {x1e[4:8]}, {vout}, {Ro}, 0 offen offset:16")
    k.stamp_flush(kidx)
    k("s_endpgm")
    for x in spec: k(x)
    k(f"{END}:\ns_endpgm")
    code,desc=k.finish()
    return (k,code,desc)
```

```python
from common import *
import os
MF16x32="v_mfma_f32_16x16x32_bf16"; MF16="v_mfma_f32_16x16x16_bf16"; MF="v_mfma_f32_32x32x16_bf16"
MAT=14464; CHUNK=2*MAT; NB=5
SCR=4*CHUNK
L_Y=SCR; L_H=SCR+8320; L_X=L_H+8704
L_MOD=NB*CHUNK
LDS=L_MOD+8192
SPIN=0x20000
E_=lambda n,d: int(os.environ.get(n,d))
N2=E_('N2',0); WE=E_('WE',2); WUP=E_('WUP',0); PACE=E_('PACE',5); U5=E_('U5',10); TUP=E_('TUP',24); TPS=E_('TPS',1); V0=E_('V0',8); V1=E_('V1',30); PW=E_('PW',1); FF=E_('FF',0); XL=E_('XL',0); MAP=E_('MAP',0); LOCAL=E_('LOCAL',0); LB=E_('LB',1); SM='' if LOCAL else 'sc1'; LDM=os.environ.get('LDM','sc1').replace('_',' '); LBM=os.environ.get('LBM','sc1').replace('_',' '); PLM=os.environ.get('PLM','sc1'); SM=os.environ.get('SM',SM); STM=os.environ.get('STM','sc1').replace('_',' ')
class VM:
    def __init__(s,k): s.k=k; s.ops=[]
    def op(s,text,tag=None):
        s.k(text); s.ops.append(tag); assert len(s.ops)<=63,len(s.ops)
    def wait(s,*tags,force=False):
        idx=[i for i,t in enumerate(s.ops) if t in tags]
        if not idx: return
        n=len(s.ops)-1-max(idx)
        s.k(f"s_waitcnt vmcnt({n})"); s.ops=s.ops[len(s.ops)-n:]
    def drain(s): s.k("s_waitcnt vmcnt(0)"); s.ops=[]

def build_k345(name=NAME, N1=int(os.environ.get('N1','16')), D5=24, kidx=3):
    k=Kernel(name,256,256,lds=LDS)
    v,s,a=k.v,k.s,k.a
    vm=VM(k)
    ST=os.environ.get('ST','a')
    def stamp(set_,i):
        if set_ in ST: k.stamp(i)
    END=k.label('END')
    px=s(2); pgu=s(4); pout=s(2); pws=s(2)
    w,t0,t1,tb,fb,beta,row=s(),s(),s(),s(),s(),s(),s()
    lane,tv,vtok,zero,vfl,one,vf=v(),v(),v(),v(),v(),v(),v()
    vd=[v() for _ in range(7)]; vA=[v() for _ in range(NB)]
    resv=v.at(v.hi,24-v.hi)
    vi,vg=v(),v()
    k(f"""
s_cmp_ge_u32 s2, 256
s_cbranch_scc1 {END}""")
    k.stamp_init()
    k(f"""
s_load_dwordx2 {pws}, s[0:1], {ARG['ws']}
s_load_dwordx2 {px}, s[0:1], {ARG['x']}
s_load_dwordx4 {pgu}, s[0:1], {ARG['wg']}
s_load_dwordx2 {pout}, s[0:1], {ARG['out']}
v_lshrrev_b32 {tv}, 6, v0
v_and_b32 {lane}, 63, v0
v_readfirstlane_b32 {w}, {tv}
v_and_b32 {vi}, 15, v0
v_bfe_u32 {vg}, v0, 4, 2
v_lshlrev_b32 {vtok}, 4, {lane}
s_and_b32 {t0}, s2, 7            ; x
s_lshr_b32 {t1}, s2, 3           ; slot
""")
    if MAP==0:
        k(f"""
s_and_b32 {tb}, {t0}, 1
s_lshl_b32 {tb}, {tb}, 3
s_lshr_b32 {fb}, {t0}, 1
s_lshl_b32 {fb}, {fb}, 2
s_and_b32 {t0}, {t1}, 7
s_add_u32 {tb}, {tb}, {t0}
s_lshr_b32 {t0}, {t1}, 3
s_add_u32 {fb}, {fb}, {t0}
""")
    else:
        k(f"""
s_lshl_b32 {tb}, {t0}, 1
s_and_b32 {t0}, {t1}, 1
s_add_u32 {tb}, {tb}, {t0}
s_lshr_b32 {fb}, {t1}, 1
""")
    k(f"""
s_lshl_b32 {beta}, {tb}, 4
s_add_u32 {beta}, {beta}, {fb}
""")
    row_of_pos(k,row,beta,w,t0,t1)
    k(f"s_lshl_b32 {row}, {row}, 10")
    vy,vxo=v(),v()
    sy0,sy1,sny,smod=s(),s(),s(),s()
    k(f"""
v_and_b32 {tv}, 1, v0
v_lshrrev_b32 {vy}, 1, v0
v_lshlrev_b32 {vy}, 13, {vy}
v_lshl_add_u32 {vy}, {tv}, 4, {vy}       ; k*8192 + half*16
s_lshl_b32 {sy0}, {beta}, 5
s_add_u32 {sy0}, {sy0}, {WS_Y:#x}
s_add_u32 {sy1}, {sy0}, {128*8192:#x}
s_lshl_b32 {sny}, {beta}, 3
s_add_u32 {sny}, {sny}, {w}
s_lshl_b32 {sny}, {sny}, 2
s_add_u32 {sny}, {sny}, {WS_Y+256*8192:#x}
v_lshlrev_b32 {vxo}, 5, {vi}
v_lshl_add_u32 {vxo}, {vg}, 3, {vxo}
s_lshl_b32 {smod}, {w}, 11
s_add_u32 {t1}, {smod}, {L_MOD}
s_add_u32 {smod}, {smod}, {WS_MOD2:#x}
""")
    Rws,Rx,Rw=s(4),s(4),s(4)
    k(f"v_mov_b32 {zero}, 0")
    k(f"s_mov_b32 m0, {t1}")
    mat,dh,sm0,schunk=s(),s(),s(),s()
    k(f"""
s_and_b32 {mat}, {w}, 1
s_lshr_b32 {dh}, {w}, 1
s_mul_i32 {t0}, {dh}, {32*3584}
s_mul_i32 {t1}, {fb}, 224
s_add_u32 {t0}, {t0}, {t1}
s_mul_i32 {sm0}, {mat}, {MAT}
s_mul_i32 {t1}, {dh}, 7168
s_add_u32 {sm0}, {sm0}, {t1}
s_mov_b32 {schunk}, 0
""")
    s.free(dh)
    p,rw=v(),v()
    cdiv=s(); k(f"s_mov_b32 {cdiv}, 4682")
    for n in range(7):
        k(f"v_add_u32 {p}, {64*n}, {lane}")
        k(f"v_mul_u32_u24 {rw}, {cdiv}, {p}")
        k(f"v_lshrrev_b32 {rw}, 16, {rw}")
        k(f"v_mul_u32_u24 {tv}, 14, {rw}")
        k(f"v_sub_u32 {p}, {p}, {tv}")
        k(f"v_mul_u32_u24 {rw}, 3584, {rw}")
        k(f"v_lshl_add_u32 {vd[n]}, {p}, 4, {rw}")
        k(f"v_add_u32 {vd[n]}, {t0}, {vd[n]}")
        if n&3: k(f"v_subrev_u32 {vd[n]}, {(n&3)*1024}, {vd[n]}")
    v.free(p,rw); s.free(cdiv)
    keepC=[]
    def cv(n=1,align=None):
        r=v(n,align); keepC.append(r); return r
    fi,fg,f,arg,c0,s0,c1,s1,mi=cv(),cv(),cv(),cv(),cv(),cv(),cv(),cv(),cv()
    k(f"""
v_cvt_f32_u32 {fi}, {vi}
v_cvt_f32_u32 {fg}, {vg}
v_and_b32 {tv}, 1, {vi}
v_mul_u32_u24 {mi}, 0x8000, {tv}
v_lshl_or_b32 {mi}, {mi}, 16, {mi}
""")
    BAr=cv(2); BAi=cv(2)
    k(f"v_mul_f32 {f}, 0x3d800000, {fi}")
    k(f"v_add_f32 {arg}, {fg}, {fg}")
    k(f"v_mul_f32 {arg}, {arg}, {f}")
    for b in range(2):
        k(f"v_cos_f32 {c0}, {arg}")
        k(f"v_sin_f32 {s0}, {arg}")
        if b==0: k(f"v_add_f32 {arg}, {arg}, {f}")
        k(f"v_cvt_pk_bf16_f32 {BAr[b]}, {c0}, -{s0}")
        k(f"v_cvt_pk_bf16_f32 {BAi[b]}, {s0}, {c0}")
    TC=cv(8,align=4); TS=cv(8,align=4); f13,g4=cv(),cv()
    k(f"v_mul_f32 {g4}, 4.0, {fg}")
    k(f"v_mul_f32 {f}, 0x3b000000, {fi}")
    k(f"v_mul_f32 {f13}, 0x41500000, {f}")
    k(f"v_mul_f32 {arg}, {g4}, {f}")
    for u in range(2):
        for r in range(4):
            k(f"v_cos_f32 {TC[4*u+r]}, {arg}")
            k(f"v_sin_f32 {TS[4*u+r]}, {arg}")
            if not(u==1 and r==3): k(f"v_add_f32 {arg}, {arg}, {f if r<3 else f13}")
    k("s_waitcnt lgkmcnt(0)")
    stamp('a',1)
    srd(k,Rws,pws,0x1400000); srd(k,Rx,px,2048*1024)
    yv=[v(4,align=4),v(4,align=4)]; ny=v(2); xr=[[v(2),v(2)] for j in range(2)]
    vm.op(f"buffer_load_dwordx4 {yv[0]}, {vy}, {Rws}, {sy0} offen",'y')
    vm.op(f"buffer_load_dwordx4 {yv[1]}, {vy}, {Rws}, {sy1} offen",'y')
    vm.op(f"buffer_load_dwordx4 {vtok}, {Rws}, {smod} offen lds",'mod')
    vm.op(f"buffer_load_dwordx4 {vtok}, {Rws}, {smod} offen offset:1024 lds",'mod')
    for j in range(2): vm.op(f"buffer_load_short_d16_hi {ny[j]}, {zero}, {Rws}, {sny} offen offset:{16*j}",'ny')
    for j in range(2):
        for t in range(2): vm.op(f"buffer_load_dwordx2 {xr[j][t]}, {vxo}, {Rx}, {row} offen offset:{512*t+1024*j}",'x')
    s.free(sy0,sy1,sny,smod,row); s.free(px)
    k(f"""
s_cmp_eq_u32 {mat}, 0
s_cselect_b32 {Rw[0]}, {pgu[0]}, {pgu[2]}
s_cselect_b32 {Rw[1]}, {pgu[1]}, {pgu[3]}
s_mov_b32 {Rw[2]}, {512*3584}
s_mov_b32 {Rw[3]}, 0x00020000
""")
    s.free(mat,pgu)
    def wgroup(c):
        out=[]; slot=c%NB
        for n in range(7):
            pre=""
            if n==0: pre=f"s_add_u32 m0, {sm0}, {slot*CHUNK}\ns_nop 0\n"
            if n==4: pre=f"s_add_u32 m0, {sm0}, {slot*CHUNK+4096}\ns_nop 0\n"
            post=f"\ns_add_u32 {schunk}, {schunk}, {64*3584}" if n==6 else ""
            out.append((pre+f"buffer_load_dwordx4 {vd[n]}, {Rw}, {schunk} offen offset:{(n&3)*1024} lds"+post, f"W{c}"))
        return out
    early=[]
    for c in range(WE): early+=wgroup(c)
    for _ in range(WUP): x,tg=early.pop(0); vm.op(x,tg)
    class Pacer:
        def __init__(s): s.n=0; s.on=True; s.busy=False
        def __call__(s,text):
            for l in text.split('\n'):
                l=l.strip()
                if not l: continue
                k0(l)
                if s.on and not s.busy and early:
                    s.n+=1
                    if s.n%PACE==0:
                        s.busy=True; x,tg=early.pop(0); vm.op(x,tg); s.busy=False
        def __getattr__(s,n): return getattr(k0,n)
    k0=k; k=Pacer(); vm.k=k
    stamp('a',2)
    BB=[[cv(4,align=4) for u in range(2)] for t in range(2)]
    cc4=cv(4,align=2); ss4=cv(4,align=2)
    k(f"v_mul_f32 {f}, 0x3d000000, {fi}")
    k(f"v_mul_f32 {arg}, {g4}, {f}")
    for j in range(4):
        k(f"v_cos_f32 {cc4[j]}, {arg}")
        k(f"v_sin_f32 {ss4[j]}, {arg}")
        if j<3: k(f"v_add_f32 {arg}, {arg}, {f}")
    b00=BB[0][0]
    k(f"v_cvt_pk_bf16_f32 {b00[0]}, {cc4[0]}, {cc4[1]}")
    k(f"v_cvt_pk_bf16_f32 {b00[1]}, {cc4[2]}, {cc4[3]}")
    k(f"v_cvt_pk_bf16_f32 {b00[2]}, -{ss4[0]}, -{ss4[1]}")
    k(f"v_cvt_pk_bf16_f32 {b00[3]}, -{ss4[2]}, -{ss4[3]}")
    for j in range(4): k(f"v_xor_b32 {BB[0][1][j]}, {mi}, {b00[j]}")
    for j in range(4): k(f"v_xor_b32 {BB[1][0][j]}, 0x80000000, {b00[j]}")
    for j in range(4): k(f"v_xor_b32 {BB[1][1][j]}, 0x80000000, {BB[0][1][j]}")
    cny=cv()
    k(f"""
v_lshlrev_b32 {tv}, 31, {vi}
v_or_b32 {tv}, 1.0, {tv}
v_cmp_eq_u32 vcc, 0, {vg}
v_cndmask_b32 {cny}, 0, {tv}, vcc
""")
    vlw,vlr,vl2w,vl2r,vst,vxs=cv(),cv(),cv(),cv(),cv(),cv()
    sh2,sx1=s(),s()
    k(f"""
v_and_b32 {tv}, 1, v0
v_mul_u32_u24 {vlw}, 4160, {tv}
v_lshrrev_b32 {tv}, 1, v0
v_lshl_add_u32 {vlw}, {tv}, 2, {vlw}
v_add_u32 {vlw}, {L_Y}, {vlw}              ; half*4160 + k*4
s_mul_i32 {t0}, {w}, 1040
s_add_u32 {t0}, {t0}, {L_Y}
v_lshlrev_b32 {vlr}, 8, {vg}
v_lshl_add_u32 {vlr}, {vi}, 2, {vlr}
v_add_u32 {vlr}, {t0}, {vlr}               ; w*1040 + (i+64g)*4
s_lshl_b32 {t0}, {w}, 4
s_add_u32 {t0}, {t0}, {L_H}
v_mul_u32_u24 {vl2w}, 272, {vi}
v_lshrrev_b32 {tv}, 1, {vg}
v_lshl_add_u32 {vl2w}, {tv}, 7, {vl2w}
v_and_b32 {tv}, 1, {vg}
v_lshl_add_u32 {vl2w}, {tv}, 3, {vl2w}
v_add_u32 {vl2w}, {t0}, {vl2w}             ; i*272 + (g>>1)*128 + w*16 + (g&1)*8   (+ t*16*272 + j*64)
v_lshrrev_b32 {tv}, 4, v0                  ; p>>1
v_mul_u32_u24 {vl2r}, 272, {tv}
v_and_b32 {tv}, 15, v0                     ; (p&1)*8 + row
v_lshl_add_u32 {vl2r}, {tv}, 4, {vl2r}
v_add_u32 {vl2r}, {L_H}, {vl2r}
v_lshrrev_b32 {tv}, 3, v0                  ; p
v_lshlrev_b32 {vst}, 9, {tv}
v_and_b32 {tv}, 7, v0
v_lshl_add_u32 {vst}, {tv}, 4, {vst}       ; p*512 + row*16
s_lshr_b32 {sh2}, {beta}, 2
s_lshl_b32 {sh2}, {sh2}, 15
s_and_b32 {t1}, {beta}, 3
s_lshl_b32 {t1}, {t1}, 7
s_add_u32 {sh2}, {sh2}, {t1}
s_add_u32 {sh2}, {sh2}, {WS_H2F:#x}
s_lshl_b32 {sx1}, {beta}, 3
s_add_u32 {sx1}, {sx1}, {w}
s_lshl_b32 {sx1}, {sx1}, 10
s_add_u32 {sx1}, {sx1}, {WS_X1R:#x}
s_lshl_b32 {t0}, {w}, 11
s_add_u32 {t0}, {t0}, {L_X}
v_add_u32 {vxs}, {t0}, {vxo}
""")
    vxsr=cv(); k(f"v_add_u32 {vxsr}, {t0}, {vtok}")
    vmr=cv(); k(f"v_add_u32 {vmr}, {L_MOD}, {vtok}")
    stamp('a',3)
    k.on=False
    while early: x,tg=early.pop(0); vm.op(x,tg)
    vm.wait('y')
    stamp('a',4)
    for jj in range(2):
        for e in range(4): k(f"ds_write_b32 {vlw}, {yv[jj][e]} offset:{1040*e+512*jj}")
    vm.wait('mod')
    k("s_waitcnt lgkmcnt(0)")
    k("s_barrier")
    Ad=[[[cv() for b in range(2)] for u in range(2)] for j in range(2)]
    Ad=[[cv(2) for u in range(2)] for j in range(2)]
    for j in range(2):
        for u in range(2):
            for b in range(2):
                k(f"ds_read_b32 {Ad[j][u][b]}, {vlr} offset:{4160*j+64*u+128*b}")
    ga=[cv(4,align=4),cv(4,align=4)]; sb=[cv(4,align=4),cv(4,align=4)]; cb=[cv(4,align=4),cv(4,align=4)]
    for t in range(2): k(f"ds_read_b128 {ga[t]}, {vmr} offset:{1024*t}")
    Dr=[[cv(4,align=4),cv(4,align=4)] for j in range(2)]; Di=[[cv(4,align=4),cv(4,align=4)] for j in range(2)]
    nrd=10
    for j in range(2):
        for u in range(2):
            k(f"s_waitcnt lgkmcnt({nrd-2*(2*j+u+1)})")
            k(f"{MF16} {Dr[j][u]}, {Ad[j][u]}, {BAr}, 0")
            k(f"{MF16} {Di[j][u]}, {Ad[j][u]}, {BAi}, 0")
    for t in range(2): k(f"ds_read_b128 {sb[t]}, {vmr} offset:{2048+1024*t}")
    for t in range(2): k(f"ds_read_b128 {cb[t]}, {vmr} offset:{4096+1024*t}")
    vm.wait('ny')
    Ur=[cv(4,align=4),cv(4,align=4)]; Ui=[cv(4,align=4),cv(4,align=4)]
    AB=[[cv(4,align=4),cv(4,align=4)] for j in range(2)]
    Yo=[[cv(4,align=4),cv(4,align=4)] for j in range(2)]
    for j in range(2): k(f"v_fmac_f32 {Dr[j][0][0]}, {cny}, {ny[j]}")
    for u in range(2):
        for j in range(2):
            for r in range(4):
                k(f"v_mul_f32 {Ur[j][r]}, {Dr[j][u][r]}, {TC[4*u+r]}")
                k(f"v_mul_f32 {Ui[j][r]}, {Di[j][u][r]}, {TC[4*u+r]}")
            for r in range(4):
                k(f"v_fma_f32 {Ur[j][r]}, -{Di[j][u][r]}, {TS[4*u+r]}, {Ur[j][r]}")
                k(f"v_fmac_f32 {Ui[j][r]}, {Dr[j][u][r]}, {TS[4*u+r]}")
            k(f"v_cvt_pk_bf16_f32 {AB[j][u][0]}, {Ur[j][0]}, {Ur[j][1]}")
            k(f"v_cvt_pk_bf16_f32 {AB[j][u][1]}, {Ur[j][2]}, {Ur[j][3]}")
            k(f"v_cvt_pk_bf16_f32 {AB[j][u][2]}, {Ui[j][0]}, {Ui[j][1]}")
            k(f"v_cvt_pk_bf16_f32 {AB[j][u][3]}, {Ui[j][2]}, {Ui[j][3]}")
            for t in range(2):
                k(f"{MF16x32} {Yo[j][t]}, {AB[j][u]}, {BB[t][u]}, {0 if u==0 else Yo[j][t]}")
    stamp('a',5)
    vm.wait('x')
    x1=[cv(8,align=4),cv(8,align=4)]
    def unpack(j):
        for t in range(2):
            k(f"v_lshlrev_b32 {x1[j][4*t+0]}, 16, {xr[j][t][0]}")
            k(f"v_and_b32 {x1[j][4*t+1]}, 0xffff0000, {xr[j][t][0]}")
            k(f"v_lshlrev_b32 {x1[j][4*t+2]}, 16, {xr[j][t][1]}")
            k(f"v_and_b32 {x1[j][4*t+3]}, 0xffff0000, {xr[j][t][1]}")
    for j in range(2): unpack(j)
    k("s_waitcnt lgkmcnt(0)")
    for j in range(2):
        for t in range(2):
            for r in range(4): k(f"v_fmac_f32 {x1[j][4*t+r]}, {ga[t][r]}, {Yo[j][t][r]}")
        for t in range(2):
            k(f"v_cvt_pk_bf16_f32 {xr[j][t][0]}, {x1[j][4*t+0]}, {x1[j][4*t+1]}")
            k(f"v_cvt_pk_bf16_f32 {xr[j][t][1]}, {x1[j][4*t+2]}, {x1[j][4*t+3]}")
        for t in range(2): k(f"ds_write_b64 {vxs}, {xr[j][t]} offset:{1024*j+512*t}")
    for j in range(2): unpack(j)
    k("s_waitcnt lgkmcnt(0)")
    for j in range(2): k(f"ds_read_b128 {yv[j]}, {vxsr} offset:{1024*j}")
    sm=[cv(),cv()]; tt=[cv(),cv()]; ca=[c0,c1]; cb_=[s0,s1]
    def both(fn):
        for j in range(2): fn(j)
    for j in range(2):
        X=x1[j]
        k(f"v_add_f32 {sm[j]}, {X[0]}, {X[1]}")
        k(f"v_add_f32 {tt[j]}, {X[2]}, {X[3]}")
        k(f"v_add_f32 {ca[j]}, {X[4]}, {X[5]}")
        k(f"v_add_f32 {cb_[j]}, {X[6]}, {X[7]}")
    for j in range(2):
        k(f"v_add_f32 {sm[j]}, {sm[j]}, {tt[j]}")
        k(f"v_add_f32 {ca[j]}, {ca[j]}, {cb_[j]}")
    for j in range(2): k(f"v_add_f32 {sm[j]}, {sm[j]}, {ca[j]}")
    def allreduce2():
        for r in (8,4,2,1):
            for j in range(2): k(f"v_add_f32_dpp {sm[j]}, {sm[j]}, {sm[j]} row_ror:{r} row_mask:0xf bank_mask:0xf")
        for sw in ('16','32'):
            for j in range(2): k(f"v_mov_b32 {tt[j]}, {sm[j]}")
            for j in range(2): k(f"v_permlane{sw}_swap_b32 {sm[j]}, {tt[j]}")
            for j in range(2): k(f"v_add_f32 {sm[j]}, {sm[j]}, {tt[j]}")
    allreduce2()
    k("s_waitcnt lgkmcnt(0)")
    for j in range(2):
        pass
    lbq=[]
    lbr=[Dr[0][0],Dr[0][1],Dr[1][0],Dr[1][1]]
    def x1store():
        vm.op(f"buffer_store_dwordx4 {yv[0]}, {vtok}, {Rws}, {sx1} offen {SM}",'sx' if XL else 'st')
        if LOCAL and LB: vm.op(f"buffer_load_dwordx4 {lbr[0]}, {vtok}, {Rws}, {sx1} offen {LBM}",'st')
        k(f"s_add_u32 {sx1}, {sx1}, 4096")
        vm.op(f"buffer_store_dwordx4 {yv[1]}, {vtok}, {Rws}, {sx1} offen {SM}",'sx' if XL else 'st')
        if LOCAL and LB: vm.op(f"buffer_load_dwordx4 {lbr[1]}, {vtok}, {Rws}, {sx1} offen {LBM}",'st')
        s.free(sx1)
    if XL==0: x1store()
    for j in range(2): k(f"v_mul_f32 {sm[j]}, 0xbb000000, {sm[j]}")
    for j in range(2):
        for q in range(8): k(f"v_add_f32 {x1[j][q]}, {x1[j][q]}, {sm[j]}")
    for j in range(2):
        k(f"v_mul_f32 {sm[j]}, {x1[j][0]}, {x1[j][0]}")
        k(f"v_mul_f32 {ca[j]}, {x1[j][1]}, {x1[j][1]}")
    for q in range(2,8,2):
        for j in range(2):
            k(f"v_fmac_f32 {sm[j]}, {x1[j][q]}, {x1[j][q]}")
            k(f"v_fmac_f32 {ca[j]}, {x1[j][q+1]}, {x1[j][q+1]}")
    for j in range(2): k(f"v_add_f32 {sm[j]}, {sm[j]}, {ca[j]}")
    allreduce2()
    for j in range(2):
        k(f"v_mov_b32 {tt[j]}, 0x3727c5ac")
        k(f"v_fmac_f32 {tt[j]}, 0x3b000000, {sm[j]}")
    for j in range(2): k(f"v_rsq_f32 {tt[j]}, {tt[j]}")
    for j in range(2):
        for q in range(8): k(f"v_mul_f32 {x1[j][q]}, {x1[j][q]}, {tt[j]}")
    for j in range(2):
        for t in range(2):
            for r in range(4): k(f"v_fma_f32 {x1[j][4*t+r]}, {x1[j][4*t+r]}, {cb[t][r]}, {sb[t][r]}")
        for t in range(2):
            k(f"v_cvt_pk_bf16_f32 {xr[j][t][0]}, {x1[j][4*t+0]}, {x1[j][4*t+1]}")
            k(f"v_cvt_pk_bf16_f32 {xr[j][t][1]}, {x1[j][4*t+2]}, {x1[j][4*t+3]}")
            k(f"ds_write_b64 {vl2w}, {xr[j][t]} offset:{t*16*272+64*j}")
    k("s_waitcnt lgkmcnt(0)")
    k("s_barrier")
    hv=[x1[0][0:4],x1[1][0:4]]
    for jj in range(2): k(f"ds_read_b128 {hv[jj]}, {vl2r} offset:{jj*16*272}")
    k("s_waitcnt lgkmcnt(1)")
    if LOCAL: STM_=SM
    else: STM_=STM
    vm.op(f"buffer_store_dwordx4 {hv[0]}, {vst}, {Rws}, {sh2} offen {STM_}",'st')
    if LOCAL and LB: vm.op(f"buffer_load_dwordx4 {lbr[2]}, {vst}, {Rws}, {sh2} offen {LBM}",'st')
    k(f"s_add_u32 {sh2}, {sh2}, {32*512}")
    k("s_waitcnt lgkmcnt(0)")
    vm.op(f"buffer_store_dwordx4 {hv[1]}, {vst}, {Rws}, {sh2} offen {STM_}",'st')
    if LOCAL and LB: vm.op(f"buffer_load_dwordx4 {lbr[3]}, {vst}, {Rws}, {sh2} offen {LBM}",'st')
    s.free(sh2)
    if XL==1: x1store()
    k=k0; vm.k=k
    if not FF:
        for c in range(WE,4):
            for x,tg in wgroup(c): vm.op(x,tg)
    stamp('a',6)
    sfl=s()
    k(f"s_lshl_b32 {sfl}, {beta}, 7")
    k(f"s_add_u32 {sfl}, {sfl}, {WS_FLG:#x}")
    k(f"v_mov_b32 {one}, 1")
    def publish(lab):
        if PW: vm.wait('st')
        else: vm.drain()
        k("s_barrier")
        k(f"s_cmp_lg_u32 {w}, 0")
        k(f"s_cbranch_scc1 {lab}")
        k("s_mov_b64 exec, 1")
        k(f"buffer_store_dword {one}, {zero}, {Rws}, {sfl} offen {SM}")
        k("s_mov_b64 exec, -1")
        k(f"{lab}:")
        vm.ops.append('flag')
    publish(k.label('PUB'))
    stamp('a',7)
    if XL==2: x1store()
    if FF:
        for c in range(WE,4):
            for x,tg in wgroup(c): vm.op(x,tg)
    for r in keepC: v.free(r)
    v.free(vy,vxo,ny,vi,vg,*yv)
    for j in range(2): v.free(*xr[j])
    acc=[v.at(24+16*q,16) for q in range(7)]
    fr=[[v.at(136+28*b+4*q,4) for q in range(7)] for b in range(2)]
    W2=v.at(192,64)
    v.free(resv)
    tok=a(128,align=4); W1=a(128,align=4)
    Wf=[W1[4*q:4*q+4] for q in range(32)]+[W2[4*q:4*q+4] for q in range(16)]+[tok[4*q:4*q+4] for q in range(8)]
    tb5,nb,sw5=s(),s(),s()
    if MAP==0:
        k(f"""
s_and_b32 {t0}, s2, 7
s_lshr_b32 {t1}, s2, 3
s_lshl_b32 {tb5}, {t0}, 2
s_and_b32 {t0}, {t1}, 3
s_add_u32 {tb5}, {tb5}, {t0}
s_lshr_b32 {nb}, {t1}, 2
""")
    else:
        k(f"""
s_lshl_b32 {tb5}, {tb}, 1
s_and_b32 {t0}, {fb}, 1
s_add_u32 {tb5}, {tb5}, {t0}
s_lshr_b32 {nb}, {fb}, 1
""")
    k(f"""
s_mul_i32 {sw5}, {nb}, {112*2048}
s_mul_i32 {t0}, {w}, {28*2048}
s_add_u32 {sw5}, {sw5}, {t0}
s_add_u32 {sw5}, {sw5}, {WS_WDF:#x}
""")
    w5=[]
    for q in range(56):
        post=f"\ns_add_u32 {sw5}, {sw5}, 4096" if q&3==3 else ""
        w5.append((f"buffer_load_dwordx4 {Wf[q]}, {vtok}, {Rws}, {sw5} offen offset:{(q&3)*1024}"+post, f"V{q}"))
    for x,tg in wgroup(4): vm.op(x,tg)
    for _ in range(N1): x,tg=w5.pop(0); vm.op(x,tg)
    cnt=s(); spo=s()
    def poll(lab):
        P,Dn=k.label(lab),k.label(lab+'D')
        k(f"""
s_mov_b32 {cnt}, 0
s_mov_b64 exec, 15
{P}:
buffer_load_dword {vf}, {vfl}, {Rws}, {spo} offen {PLM}
s_add_u32 {cnt}, {cnt}, 1
s_waitcnt vmcnt(0)
v_cmp_eq_u32 vcc, 0, {vf}
s_cbranch_vccz {Dn}
s_cmp_lt_u32 {cnt}, {SPIN:#x}
s_cbranch_scc1 {P}
{Dn}:
s_mov_b64 exec, -1
""")
        vm.ops=[]
    stok,tt4=s(),s()
    k(f"""
v_lshlrev_b32 {vfl}, 7, {lane}
s_lshl_b32 {spo}, {tb}, 4
s_lshl_b32 {t0}, {w}, 2
s_add_u32 {spo}, {spo}, {t0}
s_lshl_b32 {spo}, {spo}, 7
s_add_u32 {spo}, {spo}, {WS_FLG:#x}
s_lshl_b32 {tt4}, {tb}, 2
s_add_u32 {tt4}, {tt4}, {w}
s_lshl_b32 {stok}, {tt4}, 15
s_add_u32 {stok}, {stok}, {WS_H2F:#x}
""")
    c_,r_,G_=v(),v(),v()
    k(f"""
v_and_b32 {c_}, 3, {lane}
v_bfe_u32 {r_}, {lane}, 2, 2
v_lshrrev_b32 {G_}, 4, {lane}
v_lshrrev_b32 {tv}, 1, {c_}
v_mul_u32_u24 {vA[0]}, {MAT}, {tv}
v_lshrrev_b32 {tv}, 1, {G_}
v_lshl_add_u32 {tv}, {tv}, 3, {r_}
v_mul_u32_u24 {tv}, 224, {tv}
v_add_u32 {vA[0]}, {vA[0]}, {tv}
v_and_b32 {tv}, 1, {c_}
v_lshl_add_u32 {vA[0]}, {tv}, 4, {vA[0]}
v_and_b32 {tv}, 1, {G_}
v_lshl_add_u32 {vA[0]}, {tv}, 3, {vA[0]}
""")
    for b in range(1,NB): k(f"v_add_u32 {vA[b]}, {b*CHUNK}, {vA[0]}")
    v.free(c_,r_,G_)
    def reads(c,kap,buf):
        out=[]
        for t7 in range(7):
            for e in range(2):
                out.append(f"ds_read_b64_tr_b16 {fr[buf][t7][2*e:2*e+2]}, {vA[c%NB]} offset:{kap*3584+e*896+t7*32}")
        return out
    sst=s()
    k(f"""
s_mul_i32 {sst}, {tt4}, 112
s_mul_i32 {t0}, {fb}, 7
s_add_u32 {sst}, {sst}, {t0}
s_lshl_b32 {sst}, {sst}, 10
s_add_u32 {sst}, {sst}, {WS_HHF:#x}
""")
    for x in reads(0,0,0): k(x)
    poll('POLLA')
    stamp('a',8); stamp('b',1)
    tl=[]
    for c in range(8):
        for kap in range(4):
            post=f"\ns_add_u32 {stok}, {stok}, 4096" if kap==3 else ""
            tl.append((f"buffer_load_dwordx4 {tok[16*c+4*kap:16*c+4*kap+4]}, {vtok}, {Rws}, {stok} offen offset:{kap*1024} {LDM}"+post, f"T{c}{kap}"))
    for _ in range(TUP): x,tg=tl.pop(0); vm.op(x,tg)
    stamp('b',2)
    pend=[]; step=0
    nsteps=32
    w5late=w5[len(w5)-N2:] if N2 else []
    w5=w5[:len(w5)-N2]
    left=len(w5)
    sched={}
    first=V0; lastst=V1
    for q in range(left):
        st=first+(q*(lastst-first+1))//left
        sched[st]=sched.get(st,0)+1
    for c in range(8):
        for kap in range(4):
            buf=step&1
            last=(c==7 and kap==3)
            nc,nk=(c,kap+1) if kap<3 else (c+1,0)
            rd=[] if last else reads(nc,nk,buf^1)
            if kap==0 and c==1: stamp('b',3)
            if kap==0 and c==3: stamp('b',4)
            if kap==0 and c==5: stamp('b',5)
            if kap==3 and c<7:
                k("s_waitcnt lgkmcnt(0)")
                vm.wait(f"T{c}{kap}", f"W{c+1}")
                k("s_barrier")
                if c+NB<8: pend=pend+wgroup(c+NB)
            else:
                k("s_waitcnt lgkmcnt(8)")
                vm.wait(f"T{c}{kap}")
            extra=[]
            for _ in range(TPS):
                if tl: extra.append(tl.pop(0))
            for _ in range(sched.get(step,0)):
                x,tg=w5.pop(0)
                q=int(tg[1:])
                assert q<48 or step>=8, (q,step)
                extra.append((x,tg))
            ri=0
            for t7 in range(7):
                if t7==3 and not(kap==3 and c<7):
                    k(f"s_waitcnt lgkmcnt({0 if last else 9})")
                cin = 0 if step==0 else acc[t7]
                k(f"{MF} {acc[t7]}, {fr[buf][t7]}, {tok[16*c+4*kap:16*c+4*kap+4]}, {cin}")
                nrd=3 if t7<4 else 2
                for _ in range(nrd):
                    if ri<len(rd): k(rd[ri]); ri+=1
                if t7 in (1,3,5) and pend: x,tg=pend.pop(0); vm.op(x,tg)
                if (t7 in (0,2,4,6) or (t7 in (1,3,5) and not pend)) and extra: x,tg=extra.pop(0); vm.op(x,tg)
            assert ri==len(rd) and not extra
            step+=1
    assert not pend and not w5
    stamp('b',6); stamp('c',1)
    o=[fr[0][0],fr[0][1]]
    for t7 in range(7):
        A=acc[t7]; oo=o[t7&1]
        for r in range(4):
            k(f"v_mul_f32 {A[r]}, {A[r]}, {A[4+r]}")
            k(f"v_mul_f32 {A[8+r]}, {A[8+r]}, {A[12+r]}")
        k(f"v_cvt_pk_bf16_f32 {oo[0]}, {A[0]}, {A[1]}")
        k(f"v_cvt_pk_bf16_f32 {oo[1]}, {A[2]}, {A[3]}")
        k(f"v_cvt_pk_bf16_f32 {oo[2]}, {A[8]}, {A[9]}")
        k(f"v_cvt_pk_bf16_f32 {oo[3]}, {A[10]}, {A[11]}")
        if t7==4: k(f"s_add_u32 {sst}, {sst}, 4096")
        vm.op(f"buffer_store_dwordx4 {oo}, {vtok}, {Rws}, {sst} offen offset:{(t7&3)*1024} {SM}",'st')
        if LOCAL and LB: vm.op(f"buffer_load_dwordx4 {fr[1][t7]}, {vtok}, {Rws}, {sst} offen offset:{(t7&3)*1024} {LBM}",'st')
    stamp('c',2)
    k(f"s_add_u32 {sfl}, {sfl}, {256*128}")
    v.free(*vd); v.free(*vA)
    RED=0; WST=64*272
    vx1,vout,vgb,vrr,vrw=v(),v(),v(),v(),v()
    tau,pos,u1=v(),v(),v()
    sx5,stok5=stok,sst
    stk2=s()
    k(f"""
v_lshrrev_b32 {tau}, 2, v0
s_lshl_b32 {t0}, {tb5}, 6
v_add_u32 {pos}, {t0}, {tau}
v_and_b32 {tv}, 3, v0
v_lshlrev_b32 {vgb}, 5, {tv}
s_lshl_b32 {t0}, {nb}, 7
v_add_u32 {vgb}, {t0}, {vgb}                    ; nb*128 + c*32
v_lshl_add_u32 {vx1}, {pos}, 10, {vgb}
v_bfe_u32 {u1}, {pos}, 8, 2
v_lshlrev_b32 {vout}, 9, {u1}                   ; 512*kap
v_bfe_u32 {u1}, {pos}, 6, 2
v_lshl_add_u32 {vout}, {u1}, 7, {vout}          ; +128 g
v_and_b32 {u1}, 3, {pos}
v_lshl_add_u32 {vout}, {u1}, 5, {vout}          ; +32 e
v_lshrrev_b32 {u1}, 10, {pos}
v_lshl_add_u32 {vout}, {u1}, 4, {vout}          ; +16 t
v_bfe_u32 {u1}, {pos}, 2, 4
v_add_u32 {vout}, {vout}, {u1}                  ; + i
v_lshl_add_u32 {vout}, {vout}, 10, {vgb}        ; s*1024 + nb*128 + c*32
v_lshlrev_b32 {vgb}, 1, {vgb}
v_add_u32 {vgb}, {L_MOD+6144}, {vgb}
v_mul_u32_u24 {vrr}, 272, {tau}
v_lshl_add_u32 {vrr}, {tv}, 6, {vrr}            ; tau*272 + c*64
s_mul_i32 {t0}, {w}, {WST}
v_and_b32 {tv}, 31, {lane}
v_mul_u32_u24 {vrw}, 272, {tv}
v_lshrrev_b32 {tv}, 5, {lane}
v_lshl_add_u32 {vrw}, {tv}, 4, {vrw}
v_add_u32 {vrw}, {t0}, {vrw}
s_lshr_b32 {spo}, {tb5}, 1
s_lshl_b32 {spo}, {spo}, 4
s_lshl_b32 {t0}, {w}, 2
s_add_u32 {spo}, {spo}, {t0}
s_lshl_b32 {spo}, {spo}, 7
s_add_u32 {spo}, {spo}, {WS_FLG+256*128:#x}
""")
    v.free(tau,pos,u1)
    publish(k.label('PUB'))
    stamp('c',3)
    for x,tg in w5late: vm.op(x,tg)
    k(f"""
s_mul_i32 {stok5}, {tb5}, {2*112*1024}
s_mul_i32 {t0}, {w}, {28*1024}
s_add_u32 {stok5}, {stok5}, {t0}
s_add_u32 {stok5}, {stok5}, {WS_HHF:#x}
s_add_u32 {stk2}, {stok5}, {112*1024}
s_mov_b32 {sx5}, {WS_X1R:#x}
""")
    acc5=[[acc[0],acc[1]],[acc[2],acc[3]]]
    pool=[tok[32+4*q:36+4*q] for q in range(24)]
    for t7 in (4,5,6): pool+=[acc[t7][4*q:4*q+4] for q in range(4)]
    for b in range(2): pool+=[fr[b][t7] for t7 in range(7)]
    pool=pool[:2*D5]
    assert len(pool)==2*D5
    x1e=Reg('v',fr[1][5].idx,8)
    poll('POLLB')
    stamp('c',4)
    def tload(j):
        sl=j%D5
        o_=(j&3)*1024
        out=[(f"buffer_load_dwordx4 {pool[2*sl]}, {vtok}, {Rws}, {stok5} offen offset:{o_} {LDM}",f"H{j}"),
             (f"buffer_load_dwordx4 {pool[2*sl+1]}, {vtok}, {Rws}, {stk2} offen offset:{o_} {LDM}"+
              (f"\ns_add_u32 {stok5}, {stok5}, 4096\ns_add_u32 {stk2}, {stk2}, 4096" if j&3==3 else ""),f"H{j}")]
        return out
    for j in range(U5):
        for x,tg in tload(j): vm.op(x,tg)
    stamp('c',5)
    x1l=[(f"buffer_load_dwordx4 {x1e[0:4]}, {vx1}, {Rws}, {sx5} offen {LDM}",'x1'),
         (f"buffer_load_dwordx4 {x1e[4:8]}, {vx1}, {Rws}, {sx5} offen offset:16 {LDM}",'x1')]
    for j in range(28):
        vm.wait(f"H{j}")
        if j==1: stamp('c',6)
        sl=j%D5
        ld=tload(j+U5) if j+U5<28 else (x1l if j+U5==28 else [])
        n=0
        for nu in range(2):
            for t_ in range(2):
                cin=0 if j==0 else acc5[nu][t_]
                k(f"{MF} {acc5[nu][t_]}, {Wf[2*j+nu]}, {pool[2*sl+t_]}, {cin}")
                if n in (0,2) and ld: x,tg=ld.pop(0); vm.op(x,tg)
                n+=1
    stamp('c',7)
    for t_ in range(2):
        for nu in range(2):
            for q in range(4):
                k(f"ds_write_b128 {vrw}, {acc5[nu][t_][4*q:4*q+4]} offset:{t_*32*272+nu*128+q*32}")
    Ro=s(4); srd(k,Ro,pout,2048*1024)
    gb=W2[0:16]
    for q in range(4): k(f"ds_read_b128 {gb[4*q:4*q+4]}, {vgb} offset:{16*q}")
    k("s_waitcnt lgkmcnt(0)")
    k("s_barrier")
    S=[acc[0],acc[1],acc[2],acc[3]]
    for ww in range(4):
        for q in range(4):
            k(f"ds_read_b128 {S[ww][4*q:4*q+4]}, {vrr} offset:{ww*WST+q*16}")
    k("s_waitcnt lgkmcnt(8)")
    for j in range(16): k(f"v_add_f32 {S[0][j]}, {S[0][j]}, {S[1][j]}")
    k("s_waitcnt lgkmcnt(0)")
    for j in range(16): k(f"v_add_f32 {S[2][j]}, {S[2][j]}, {S[3][j]}")
    for j in range(16): k(f"v_add_f32 {S[0][j]}, {S[0][j]}, {S[2][j]}")
    vm.wait('x1')
    xe=S[1]
    for p_ in range(8):
        k(f"v_lshlrev_b32 {xe[2*p_]}, 16, {x1e[p_]}")
        k(f"v_and_b32 {xe[2*p_+1]}, 0xffff0000, {x1e[p_]}")
    for j in range(16): k(f"v_fmac_f32 {xe[j]}, {gb[j]}, {S[0][j]}")
    for p_ in range(8): k(f"v_cvt_pk_bf16_f32 {x1e[p_]}, {xe[2*p_]}, {xe[2*p_+1]}")
    k(f"buffer_store_dwordx4 {x1e[0:4]}, {vout}, {Ro}, 0 offen")
    k(f"buffer_store_dwordx4 {x1e[4:8]}, {vout}, {Ro}, 0 offen offset:16")
    k.stamp_flush(kidx)
    k(f"{END}:\ns_endpgm")
    code,desc=k.finish()
    return (k,code,desc)
```

```python
from common import *
import os
KDBG=int(os.environ.get('KDBG','0'))
SWT=os.environ.get('SWT','').replace('_',' ')
SX1=os.environ.get('SX1','').replace('_',' ')
MERGE=int(os.environ.get('MERGE','1'))
def build_kA(name='ka_kernel', kidx=0):
    L_GV=0; L_MOD=2048; L_TR=2048+4096
    k=Kernel(name,256,512,lds=L_TR+8*260*4)
    v,s=k.v,k.s
    END=k.label('END')
    A=s.at(4,16); B=s.at(20,8)
    px,pwr,pwi,pc=A[0:2],A[2:4],A[4:6],A[14:16]
    pwm,pdbg,pws=B[0:2],B[4:6],B[6:8]
    beta,t0,t1,w,row=s(),s(),s(),s(),s()
    lane,vi,vg,tv=v(),v(),v(),v()
    k(f"""
s_cmp_ge_u32 s2, 256
s_cbranch_scc1 {END}""")
    k.stamp_init()
    k(f"""
s_load_dwordx16 {A}, s[0:1], 0
s_load_dwordx8 {B}, s[0:1], 64
v_lshrrev_b32 {tv}, 6, v0
v_and_b32 {lane}, 63, v0
v_readfirstlane_b32 {w}, {tv}
v_and_b32 {vi}, 15, v0
v_bfe_u32 {vg}, v0, 4, 2
""")
    CPF=int(os.environ.get('CPF','1'))
    if CPF:
        pcs=s(2); va64=v(2); vdum=v(); vof=v()
        PCL=k.label('PC'); NOA=k.label('NOA'); NOB=k.label('NOB')
        k(f"s_getpc_b64 {pcs}")
        k(f"{PCL}:")
        def cpf(target,size,piece,skip):
            k(f"""
v_lshlrev_b32 {vof}, 6, {lane}
v_add_u32 {vof}, {piece}, {vof}
v_min_u32 {vof}, {size}, {vof}
s_add_u32 {t0}, {pcs[0]}, {target}-{PCL}
s_addc_u32 {t1}, {pcs[1]}, 0
v_mov_b32 {va64[1]}, {t1}
v_add_co_u32 {va64[0]}, vcc, {t0}, {vof}
v_addc_co_u32 {va64[1]}, vcc, 0, {va64[1]}, vcc
global_load_dword {vdum}, {va64}, off
{skip}:""")
        if CPF&2:
            k(f"s_cmp_ge_u32 {w}, 2")
            k(f"s_cbranch_scc1 {NOA}")
            k(f"s_lshl_b32 {row}, {w}, 12")
            cpf(PCL,f"{name}_CEND-{PCL}-4",row,NOA)
        if CPF&1:
            k(f"s_sub_u32 {row}, s2, 64")
            k(f"s_cmp_ge_u32 {row}, 128")
            k(f"s_cbranch_scc1 {NOB}")
            k(f"s_cmp_lg_u32 {w}, {int(os.environ.get('CPW','7'))}")
            k(f"s_cbranch_scc1 {NOB}")
            k(f"s_bfe_u32 {row}, s2, 0x30003")
            k(f"s_lshl_b32 {row}, {row}, 12")
            cpf(NAME,f"{NAME}_CEND-{NAME}-4",row,NOB)
        s.free(pcs); v.free(va64,vof)
    beta_of_wg(k,beta,t0)
    row_of_pos(k,row,beta,w,t0,t1)
    k(f"s_lshl_b32 {row}, {row}, 10")
    wo,co,mbo,jst=s(),s(),s(),s()
    lb,r0=s(),s()
    k(f"""
s_and_b32 {lb}, s2, 15
s_lshr_b32 {r0}, s2, 4
s_lshl_b32 {r0}, {r0}, 7
s_lshl_b32 {mbo}, s2, 8
s_sub_u32 {t0}, s2, 192
s_and_b32 {t1}, {t0}, 31
s_add_u32 {t1}, {t1}, 16
s_lshr_b32 {jst}, {t0}, 5
s_lshl_b32 {jst}, {jst}, 8
s_lshl_b32 {t0}, {t0}, 8
s_add_u32 {t0}, {t0}, 0x4000
s_cmp_lt_u32 s2, 64
s_cselect_b32 {lb}, {lb}, {t1}
s_cselect_b32 {r0}, {r0}, {jst}
s_cselect_b32 {mbo}, {mbo}, {t0}
s_lshl_b32 {t0}, {w}, 3
s_add_u32 {r0}, {r0}, {t0}
s_lshl_b32 {co}, {r0}, 1
s_mul_i32 {wo}, {r0}, 6144
s_lshl_b32 {t0}, {lb}, 7
s_add_u32 {wo}, {wo}, {t0}
""")
    s.free(lb,r0,jst)
    vgv,vc2,vxo,vl16=v(),v(),v(),v()
    k(f"""
v_lshrrev_b32 {tv}, 3, {lane}               ; rr
v_lshlrev_b32 {vc2}, 1, {tv}
v_mul_u32_u24 {vgv}, 0x1800, {tv}
v_and_b32 {tv}, 7, {lane}
v_lshl_add_u32 {vgv}, {tv}, 4, {vgv}       ; rr*6144 + q*16
v_lshlrev_b32 {vxo}, 8, {vg}
v_lshl_add_u32 {vxo}, {vi}, 1, {vxo}     ; 256 g + 2 i
v_lshlrev_b32 {vl16}, 4, {lane}
""")
    bt,ks0=s(),s()
    k(f"""
s_sub_u32 {t0}, s2, 64
s_and_b32 {bt}, {t0}, 7
s_lshl_b32 {bt}, {bt}, 4
s_lshr_b32 {t0}, {t0}, 3
s_add_u32 {bt}, {bt}, {t0}
s_lshl_b32 {bt}, {bt}, 1
s_lshr_b32 {t0}, {w}, 2
s_add_u32 {bt}, {bt}, {t0}
s_and_b32 {bt}, {bt}, 255
s_lshr_b32 {t0}, {bt}, 6
s_lshl_b32 {ks0}, {t0}, 4
s_and_b32 {t0}, {bt}, 7
s_lshl_b32 {t0}, {t0}, 1
s_add_u32 {ks0}, {ks0}, {t0}
s_bfe_u32 {t0}, {bt}, 0x10005
s_lshl_b32 {t0}, {t0}, 10
s_add_u32 {ks0}, {ks0}, {t0}
s_bfe_u32 {t0}, {bt}, 0x20003
s_lshl_b32 {t0}, {t0}, 8
s_add_u32 {ks0}, {ks0}, {t0}
s_mul_i32 {ks0}, {ks0}, 514
""")
    vta,vts,vts2,u_,u2,vtp,vx=v(),v(),v(),v(),v(),v(),v()
    k(f"""
v_and_b32 {vtp}, 255, v0                    ; t'
v_and_b32 {u_}, 1, {vtp}                    ; half
v_mul_u32_u24 {vta}, 514, {u_}
v_lshrrev_b32 {u2}, 1, {vtp}                ; p
v_lshl_add_u32 {vta}, {u2}, 2, {vta}       ; half*514 + 4p
v_lshlrev_b32 {vts}, 14, {u2}              ; 2p*8192
v_lshl_add_u32 {vts}, {u_}, 4, {vts}
s_lshl_b32 {t0}, {bt}, 5
v_add_u32 {vts}, {t0}, {vts}
v_add_u32 {vts2}, 8192, {vts}
v_and_b32 {vx}, 3, {vtp}
v_mul_u32_u24 {vx}, 32896, {vx}
v_bfe_u32 {u_}, {vtp}, 2, 1
v_mul_u32_u24 {u_}, 514, {u_}
v_add3_u32 {vx}, {vx}, {u_}, {ks0}
v_add_u32 {vx}, 512, {vx}
""")
    so=s(4,align=1)
    for n in range(4): k(f"s_add_u32 {so[n]}, {ks0}, {n*32896}")
    s.free(ks0)
    Rx,Rmb,Rx1,Ra,Rb,Rdbg,Rwt=s(4),s(4),s(4),s(4),s(4),s(4),s(4)
    vzero=v(); k(f"v_mov_b32 {vzero}, 0")
    k("s_waitcnt lgkmcnt(0)")
    k.stamp(1)
    x=v(8,align=4); wmr=v(16,align=4); cv=v(4); zf=v(4,align=4)
    ra=v(4,align=4); rb=v(4,align=4); va_,vb_=v(),v()
    LNC=k.label('LNC'); LTR=k.label('LTR'); LX=k.label('LX'); NOZ=k.label('NOZ'); L1=k.label('L1'); NOZ2=k.label('NOZ2')
    srd(k,Rx,px,2048*1024); srd(k,Rmb,pws,32768,WS_MBOX); srd(k,Rdbg,pdbg,256)
    srd(k,Rx1,pws,COLB,WS_X1); srd(k,Rwt,pws,COLB,WS_WT)
    k(f"s_cmp_lt_u32 s2, 64")
    k(f"s_cbranch_scc0 {L1}")
    srd(k,Ra,pwm,512*6144); srd(k,Rb,pc,1024)
    k(f"s_add_u32 {t0}, {wo}, {64*6144}")
    k(f"buffer_load_short_d16_hi {cv[0]}, {vc2}, {Rb}, {co} offen")
    k(f"buffer_load_short_d16_hi {cv[1]}, {vc2}, {Rb}, {co} offen offset:128")
    k(f"buffer_load_dwordx4 {wmr[0:4]}, {vgv}, {Ra}, {wo} offen")
    k(f"buffer_load_dwordx4 {wmr[4:8]}, {vgv}, {Ra}, {t0} offen")
    for j in range(8): k(f"buffer_load_short_d16_hi {x[j]}, {vxo}, {Rx}, {row} offen offset:{32*j}")
    k(f"{L1}:")
    k(f"""
s_cmp_lg_u32 s2, 64
s_cbranch_scc1 {NOZ}
v_mov_b32 {zf[0]}, 0
v_mov_b32 {zf[1]}, 0
v_mov_b32 {zf[2]}, 0
v_mov_b32 {zf[3]}, 0
v_lshlrev_b32 {tv}, 4, v0
s_movk_i32 {t0}, 0x2000
buffer_store_dwordx4 {zf}, {tv}, {Rmb}, 0 offen sc1
buffer_store_dwordx4 {zf}, {tv}, {Rmb}, {t0} offen sc1
s_waitcnt vmcnt(0)
s_barrier
s_cmp_lg_u32 {w}, 0
s_cbranch_scc1 {NOZ}
v_mov_b32 {zf[1]}, 1
s_mov_b64 exec, 1
buffer_store_dword {zf[1]}, {vzero}, {Rdbg}, 0 offen sc1
s_mov_b64 exec, -1
{NOZ}:
""")
    if MERGE:
        Rz=Ra
        k(f"s_cmp_lg_u32 s2, 65")
        k(f"s_cbranch_scc1 {NOZ2}")
        srd(k,Rz,pws,0x11000,WS_FLG)
        k(f"""
v_mov_b32 {zf[0]}, 0
v_mov_b32 {zf[1]}, 0
v_mov_b32 {zf[2]}, 0
v_mov_b32 {zf[3]}, 0
v_lshlrev_b32 {tv}, 7, v0
buffer_store_dword {zf[0]}, {tv}, {Rz}, 0 offen
v_lshlrev_b32 {tv}, 3, v0
v_add_u32 {tv}, 0x10000, {tv}
buffer_store_dwordx2 {zf[0:2]}, {tv}, {Rz}, 0 offen
{NOZ2}:
""")
    k.stamp(2)
    fi,fg,f,arg,c0,c1=v(),v(),v(),v(),v(),v()
    k(f"v_cvt_f32_u32 {fi}, {vi}")
    k(f"v_cvt_f32_u32 {fg}, {vg}")
    BC=v(4,align=4); BS=v(4,align=4); BC1=v(4,align=4); BS1=v(4,align=4)
    k(f"v_mul_f32 {f}, 0x3d000000, {fi}")
    k(f"v_mul_f32 {arg}, 0x41000000, {fg}")
    k(f"v_mul_f32 {arg}, {arg}, {f}")
    s0,s1=v(),v()
    for p in range(4):
        k(f"v_cos_f32 {c0}, {arg}")
        k(f"v_sin_f32_e64 {s0}, -{arg}")
        k(f"v_add_f32 {arg}, {arg}, {f}")
        k(f"v_cos_f32 {c1}, {arg}")
        k(f"v_sin_f32_e64 {s1}, -{arg}")
        k(f"v_add_f32 {arg}, {arg}, {f}")
        k(f"v_cvt_pk_bf16_f32 {BC[p]}, {c0}, {c1}")
        k(f"v_cvt_pk_bf16_f32 {BS[p]}, {s0}, {s1}")
    for p in range(4):
        k(f"v_xor_b32 {BC1[p]}, 0x80000000, {BC[p]}")
        k(f"v_xor_b32 {BS1[p]}, 0x80000000, {BS[p]}")
    TC=v(8,align=4); TS=v(8,align=4); n0=v()
    k(f"v_mul_f32 {n0}, 4.0, {fg}")
    for u in range(2):
        if u==0: k(f"v_mul_f32 {f}, 0x3b000000, {fi}")
        else: k(f"v_add_f32 {f}, 0x3d000000, {f}")
        k(f"v_mul_f32 {arg}, {n0}, {f}")
        for r in range(4):
            k(f"v_cos_f32 {TC[4*u+r]}, {arg}")
            k(f"v_sin_f32 {TS[4*u+r]}, {arg}")
            if r<3: k(f"v_add_f32 {arg}, {arg}, {f}")
    A2=v(4,align=4); A3=v(4,align=4); sh0,sh1=v(),v()
    k(f"""
v_lshrrev_b32 {tv}, 1, {vi}
v_cvt_f32_u32 {f}, {tv}
v_mul_f32 {f}, 0x3d800000, {f}          ; k2/16
v_and_b32 {tv}, 1, {vi}
v_cvt_f32_u32 {sh0}, {tv}
v_mul_f32 {sh0}, 0x3e800000, {sh0}      ; 0.25 c
v_add_f32 {sh1}, 0xbe800000, {sh0}      ; 0.25 (c-1)
v_mul_f32 {arg}, {n0}, {f}
""")
    aa=v(4,align=2)
    for r in range(4):
        k(f"v_mov_b32 {aa[r]}, {arg}")
        if r<3: k(f"v_add_f32 {arg}, {arg}, {f}")
    for half,sh in ((0,sh0),(1,sh1)):
        for p in range(2):
            k(f"v_add_f32 {c0}, {aa[2*p]}, {sh}")
            k(f"v_add_f32 {c1}, {aa[2*p+1]}, {sh}")
            k(f"v_cos_f32 {c0}, {c0}")
            k(f"v_cos_f32 {c1}, {c1}")
            k(f"v_cvt_pk_bf16_f32 {A2[2*half+p]}, {c0}, {c1}")
    k(f"""
v_cmp_eq_u32 vcc, 0, {vi}
v_mov_b32 {tv}, 0xbf803f80
v_cndmask_b32 {A3[0]}, 0, {tv}, vcc
v_cndmask_b32 {A3[1]}, 0, {tv}, vcc
v_mov_b32 {A3[2]}, 0
v_mov_b32 {A3[3]}, 0
""")
    vlw,vlr,vst=v(),v(),v()
    k(f"""
s_mul_i32 {t0}, {w}, 1040
s_add_u32 {t0}, {t0}, {L_TR}
v_lshlrev_b32 {vlw}, 8, {vg}
v_lshl_add_u32 {vlw}, {vi}, 2, {vlw}
v_add_u32 {vlw}, {t0}, {vlw}            ; L_TR + w*1040 + (i+64g)*4
v_and_b32 {tv}, 1, v0
v_mul_u32_u24 {vlr}, 4160, {tv}
v_lshrrev_b32 {c0}, 1, v0               ; k
v_lshl_add_u32 {vlr}, {c0}, 2, {vlr}
v_add_u32 {vlr}, {L_TR}, {vlr}
v_lshlrev_b32 {vst}, 13, {c0}
v_lshl_add_u32 {vst}, {tv}, 4, {vst}
s_lshl_b32 {t0}, {beta}, 5
v_add_u32 {vst}, {t0}, {vst}
""")
    k.stamp(3)
    k(f"""
s_cmp_lt_u32 s2, 64
s_cbranch_scc1 {LX}
s_cmp_lt_u32 s2, 192
s_cbranch_scc1 {LTR}
""")
    for j in range(8): k(f"buffer_load_short_d16_hi {x[j]}, {vxo}, {Rx}, {row} offen offset:{32*j}")
    k(f"s_branch {LX}")
    k(f"{LTR}:")
    srd(k,Ra,pwr,2048*514); srd(k,Rb,pwi,2048*514)
    for j in range(8): k(f"buffer_load_short_d16_hi {x[j]}, {vxo}, {Rx}, {row} offen offset:{32*j}")
    for n in range(4):
        k(f"buffer_load_dword {ra[n]}, {vta}, {Ra}, {so[n]} offen")
        k(f"buffer_load_dword {rb[n]}, {vta}, {Rb}, {so[n]} offen")
    k(f"buffer_load_ushort {va_}, {vx}, {Ra}, 0 offen")
    k(f"buffer_load_short_d16_hi {vb_}, {vx}, {Rb}, 0 offen")
    k(f"{LX}:")
    s.free(A[0:8],B[2:6],so)
    Rnc,Rnc2=Ra,Rb
    sv=s(2); rdy=v()
    GNC=k.label('GNC'); GTR=k.label('GTR'); GX=k.label('GX'); GW=k.label('GW'); RDY=k.label('RDY'); RDY1=k.label('RDY1'); GW2=k.label('GW2')
    vl=v(); msk=s(2); te=v(); sc=v(4); acc=v(8,align=4); rd=v(8,align=4)
    def gemv(nj, base, crit):
        k(f"s_waitcnt vmcnt({base+nj})")
        if KDBG: k.stamp(5)
        for j in range(nj): silu_bf16(k,sc[j],cv[j],te)
        for j in range(nj):
            k(f"s_waitcnt vmcnt({base+nj-1-j})")
            if KDBG and j==0: k.stamp(6)
            if KDBG and j==nj-1: k.stamp(7)
            if crit and j==nj-1: k(f"buffer_load_dword {rdy}, {vzero}, {Rdbg}, 0 offen sc1")
            for p in range(4):
                src=wmr[4*j+p]
                k(f"v_lshlrev_b32 {u_}, 16, {src}")
                k(f"v_and_b32 {u2}, 0xffff0000, {src}")
                if j==0:
                    k(f"v_mul_f32 {acc[2*p]}, {sc[j]}, {u_}")
                    k(f"v_mul_f32 {acc[2*p+1]}, {sc[j]}, {u2}")
                else:
                    k(f"v_fmac_f32 {acc[2*p]}, {sc[j]}, {u_}")
                    k(f"v_fmac_f32 {acc[2*p+1]}, {sc[j]}, {u2}")
        gemv_reduce(k,acc,msk)
        k(f"ds_write_b32 {vl}, {acc[0]} offset:{L_GV}")
        k("s_waitcnt lgkmcnt(0)")
        k("s_barrier")
    gemv_lds_addr(k,vl,u_,lane,w,t0,msk)
    k(f"s_cmp_lt_u32 s2, 64")
    k(f"s_cbranch_scc0 {GNC}")
    gemv(2,8,True)
    k(f"s_branch {GW}")
    k(f"{GNC}:")
    k(f"s_cmp_lt_u32 s2, 192")
    k(f"s_cbranch_scc1 {GTR}")
    k(f"s_branch {GW2}")
    k(f"{GW}:")
    k(f"""
s_cmp_lg_u32 {w}, 0
s_cbranch_scc1 {GW2}
v_lshlrev_b32 {vl}, 2, {lane}
""")
    for n in range(8): k(f"ds_read_b32 {rd[n]}, {vl} offset:{L_GV+256*n}")
    k(f"""
s_waitcnt vmcnt(0)
{RDY}:
v_readfirstlane_b32 {t0}, {rdy}
s_cmp_lg_u32 {t0}, 0
s_cbranch_scc1 {RDY1}
buffer_load_dword {rdy}, {vzero}, {Rdbg}, 0 offen sc1
s_add_u32 {co}, {co}, 0x1000
s_waitcnt vmcnt(0)
s_cmp_lt_u32 {co}, 0x40000000
s_cbranch_scc1 {RDY}
{RDY1}:
s_waitcnt lgkmcnt(0)
""")
    for st in (1,2,4):
        for r in range(0,8,2*st): k(f"v_add_f32 {rd[r]}, {rd[r]}, {rd[r+st]}")
    k(f"""
v_or_b32 {rd[0]}, 1, {rd[0]}
buffer_store_dword {rd[0]}, {vl}, {Rmb}, {mbo} offen sc1
s_branch {GX}
{GW2}:
s_waitcnt vmcnt(0)
s_branch {GX}
{GTR}:
""")
    lo=v(4,align=4); hi=v(4,align=4); sl,sh_=wo,co
    k(f"s_mov_b32 {sl}, 0x05040100")
    k(f"s_mov_b32 {sh_}, 0x07060302")
    k("s_waitcnt vmcnt(2)")
    for n in range(4):
        k(f"v_perm_b32 {lo[n]}, {rb[n]}, {ra[n]}, {sl}")
        k(f"v_perm_b32 {hi[n]}, {rb[n]}, {ra[n]}, {sh_}")
    k(f"buffer_store_dwordx4 {lo}, {vts}, {Rwt}, 0 offen {SWT}")
    k(f"buffer_store_dwordx4 {hi}, {vts2}, {Rwt}, 0 offen {SWT}")
    k(f"""
s_waitcnt vmcnt(2)
v_or_b32 {va_}, {va_}, {vb_}
s_lshl_b32 {t0}, {bt}, 5
s_add_u32 {t0}, {t0}, {256*8192}
v_lshlrev_b32 {vx}, 2, {vtp}
v_cmp_gt_u32 vcc, 8, {vtp}
s_and_saveexec_b64 {sv}, vcc
buffer_store_dword {va_}, {vx}, {Rwt}, {t0} offen
s_mov_b64 exec, {sv}
{GX}:
""")
    k.stamp(4)
    sm,tt=v(),v()
    k(f"v_add_f32 {sm}, {x[0]}, {x[1]}")
    k(f"v_add_f32 {tt}, {x[2]}, {x[3]}")
    k(f"v_add_f32 {c0}, {x[4]}, {x[5]}")
    k(f"v_add_f32 {c1}, {x[6]}, {x[7]}")
    k(f"v_add_f32 {sm}, {sm}, {tt}")
    k(f"v_add_f32 {c0}, {c0}, {c1}")
    k(f"v_add_f32 {sm}, {sm}, {c0}")
    wave_allreduce_add(k,sm,tt)
    k(f"v_mul_f32 {sm}, 0xbb000000, {sm}")
    for j in range(8): k(f"v_add_f32 {x[j]}, {x[j]}, {sm}")
    k(f"v_mul_f32 {sm}, {x[0]}, {x[0]}")
    k(f"v_mul_f32 {c0}, {x[1]}, {x[1]}")
    for j in range(2,8,2):
        k(f"v_fmac_f32 {sm}, {x[j]}, {x[j]}")
        k(f"v_fmac_f32 {c0}, {x[j+1]}, {x[j+1]}")
    k(f"v_add_f32 {sm}, {sm}, {c0}")
    wave_allreduce_add(k,sm,tt)
    k(f"v_mov_b32 {tt}, 0x3727c5ac")
    k(f"v_fmac_f32 {tt}, 0x3b000000, {sm}")
    k(f"v_rsq_f32 {tt}, {tt}")
    for j in range(8): k(f"v_mul_f32 {x[j]}, {x[j]}, {tt}")
    if not KDBG: k.stamp(5)
    NC=int(os.environ.get('NC','1'))
    if NC:
        NONC=k.label('NONC')
        k(f"s_cmp_lt_u32 s2, 192")
        k(f"s_cbranch_scc1 {NONC}")
        srd(k,Rnc,pwm,512*6144); srd(k,Rnc2,pc,1024)
        for j in range(4): k(f"buffer_load_short_d16_hi {cv[j]}, {vc2}, {Rnc2}, {co} offen offset:{128*j}")
        for j in range(4):
            k(f"buffer_load_dwordx4 {wmr[4*j:4*j+4]}, {vgv}, {Rnc}, {wo} offen")
            if j<3: k(f"s_add_u32 {wo}, {wo}, {64*6144}")
        k(f"{NONC}:")
    PFM=int(os.environ.get('PFM','0'))
    if PFM:
        NOPF=k.label('NOPF'); Rp=s(4); pf=v(4,align=4); vpf,vpm=v(),v(); sp0,sp1=s(),s()
        k(f"""
s_cmp_lt_u32 s2, 64
s_cbranch_scc1 {NOPF}
s_sub_u32 {sp0}, s2, 64
v_lshlrev_b32 {vpf}, 4, v0
v_lshrrev_b32 {vpm}, 8, v0
v_mul_u32_u24 {vpm}, 0x1800, {vpm}
v_and_b32 {u_}, 255, v0
v_lshl_add_u32 {vpm}, {u_}, 4, {vpm}
s_mul_i32 {sp1}, {sp0}, {2*6144}
s_add_u32 {sp1}, {sp1}, 2048
v_add_u32 {vpm}, {sp1}, {vpm}
s_lshl_b32 {sp0}, {sp0}, 13
""")
        n=0
        if PFM&1:
            srd(k,Rp,B[0:2],512*6144)
            k(f"buffer_load_dwordx4 {pf}, {vpm}, {Rp}, 0 offen"); n+=1
            k(f"v_add_u32 {vpm}, {192*2*6144}, {vpm}")
            k(f"buffer_load_dwordx4 {pf}, {vpm}, {Rp}, 0 offen"); n+=1
        vpf2=v(); k(f"v_add_u32 {vpf2}, {192*8192}, {vpf}")
        k(f"v_add_u32 {vpf}, {sp0}, {vpf}")
        k(f"v_add_u32 {vpf2}, {sp0}, {vpf2}")
        for bit,ptr in ((2,A[12:14]),(4,A[8:10]),(8,A[10:12])):
            if PFM&bit:
                srd(k,Rp,ptr,1792*1024)
                k(f"buffer_load_dwordx4 {pf}, {vpf}, {Rp}, 0 offen"); n+=1
                k(f"buffer_load_dwordx4 {pf}, {vpf2}, {Rp}, 0 offen"); n+=1
        k(f"{NOPF}:")
    ma=v(8,align=4); mb=v(8,align=4)
    POLL=k.label('POLL'); PDONE=k.label('PDONE'); R2=k.label('R2'); R3=k.label('R3')
    P=[v(2),v(2),v(2),v(2)]; vmb,vlm=v(),v(); so4=s(4,align=1)
    k(f"""
s_lshl_b32 {t0}, {w}, 9
v_lshl_add_u32 {vmb}, {lane}, 3, {t0}      ; w*512 + lane*8
s_lshr_b32 {t0}, {w}, 2
s_lshl_b32 {t0}, {t0}, 11                   ; chunk*2048
s_and_b32 {t1}, {w}, 3
s_lshl_b32 {t1}, {t1}, 8                    ; 16 g * 16
s_add_u32 {t0}, {t0}, {t1}
s_add_u32 {t0}, {t0}, {L_MOD}
v_and_b32 {u_}, 7, {lane}
v_lshlrev_b32 {vlm}, 5, {u_}                ; i*16 , i = 2*(l&7)
v_bfe_u32 {u_}, {lane}, 3, 2
v_lshl_add_u32 {vlm}, {u_}, 2, {vlm}        ; (j&3)*4
v_lshrrev_b32 {u_}, 5, {lane}
v_lshl_add_u32 {vlm}, {u_}, 10, {vlm}       ; (j>>2)*1024
v_add_u32 {vlm}, {t0}, {vlm}
s_mov_b32 {t1}, 0
s_cmp_lg_u32 {w}, 0
s_cbranch_scc1 {R3}
{R2}:
buffer_load_dword {u_}, {vzero}, {Rdbg}, 0 offen sc1
s_waitcnt vmcnt(0)
v_readfirstlane_b32 {t0}, {u_}
s_cmp_lg_u32 {t0}, 0
s_cbranch_scc1 {R3}
s_add_u32 {t1}, {t1}, 1
s_cmp_lt_u32 {t1}, 0x40000
s_cbranch_scc1 {R2}
{R3}:
s_barrier
s_movk_i32 {so4[1]}, 0x1000
s_movk_i32 {so4[2]}, 0x2000
s_movk_i32 {so4[3]}, 0x3000
{POLL}:
buffer_load_dwordx2 {P[0]}, {vmb}, {Rmb}, 0 offen sc1
buffer_load_dwordx2 {P[1]}, {vmb}, {Rmb}, {so4[1]} offen sc1
buffer_load_dwordx2 {P[2]}, {vmb}, {Rmb}, {so4[2]} offen sc1
buffer_load_dwordx2 {P[3]}, {vmb}, {Rmb}, {so4[3]} offen sc1
s_add_u32 {t1}, {t1}, 1
s_waitcnt vmcnt(0)
v_min3_u32 {u_}, {P[0][0]}, {P[0][1]}, {P[1][0]}
v_min3_u32 {u2}, {P[1][1]}, {P[2][0]}, {P[2][1]}
v_min3_u32 {u_}, {u_}, {P[3][0]}, {P[3][1]}
v_min_u32 {u_}, {u_}, {u2}
v_cmp_eq_u32 vcc, 0, {u_}
s_cbranch_vccz {PDONE}
s_cmp_lt_u32 {t1}, 0x40000
s_cbranch_scc1 {POLL}
{PDONE}:
""")
    if not KDBG: k.stamp(6)
    k(f"""
v_add_f32 {P[0][0]}, {P[0][0]}, {P[1][0]}
v_add_f32 {P[0][1]}, {P[0][1]}, {P[1][1]}
v_add_f32 {P[2][0]}, {P[2][0]}, {P[3][0]}
v_add_f32 {P[2][1]}, {P[2][1]}, {P[3][1]}
v_add_f32 {P[0][0]}, {P[0][0]}, {P[2][0]}
v_add_f32 {P[0][1]}, {P[0][1]}, {P[2][1]}
s_cmp_ge_u32 {w}, 4
s_cselect_b32 {t0}, 1.0, 0
v_cvt_pk_bf16_f32 {u_}, {P[0][0]}, {P[0][1]}
v_lshlrev_b32 {P[0][0]}, 16, {u_}
v_and_b32 {P[0][1]}, 0xffff0000, {u_}
v_add_f32 {P[0][0]}, {t0}, {P[0][0]}
v_add_f32 {P[0][1]}, {t0}, {P[0][1]}
v_cvt_pk_bf16_f32 {u_}, {P[0][0]}, {P[0][1]}
v_lshlrev_b32 {P[0][0]}, 16, {u_}
v_and_b32 {P[0][1]}, 0xffff0000, {u_}
ds_write_b32 {vlm}, {P[0][0]}
ds_write_b32 {vlm}, {P[0][1]} offset:16
s_waitcnt lgkmcnt(0)
s_barrier
""")
    if not KDBG: k.stamp(7)
    k(f"ds_read_b128 {mb[0:4]}, {vl16} offset:{L_MOD}")
    k(f"ds_read_b128 {ma[0:4]}, {vl16} offset:{L_MOD+2048}")
    k(f"ds_read_b128 {mb[4:8]}, {vl16} offset:{L_MOD+1024}")
    k(f"ds_read_b128 {ma[4:8]}, {vl16} offset:{L_MOD+3072}")
    k("s_waitcnt lgkmcnt(2)")
    for j in range(4): k(f"v_fma_f32 {x[j]}, {x[j]}, {ma[j]}, {mb[j]}")
    k("s_waitcnt lgkmcnt(0)")
    for j in range(4,8): k(f"v_fma_f32 {x[j]}, {x[j]}, {ma[j]}, {mb[j]}")
    A1=v(4,align=4)
    for p in range(4): k(f"v_cvt_pk_bf16_f32 {A1[p]}, {x[2*p]}, {x[2*p+1]}")
    Tr=[v(4,align=4),v(4,align=4)]; Ti=[v(4,align=4),v(4,align=4)]
    k(f"v_mfma_f32_16x16x32_bf16 {Tr[0]}, {A1}, {BC}, 0")
    k(f"v_mfma_f32_16x16x32_bf16 {Ti[0]}, {A1}, {BS}, 0")
    k(f"v_mfma_f32_16x16x32_bf16 {Tr[1]}, {A1}, {BC1}, 0")
    k(f"v_mfma_f32_16x16x32_bf16 {Ti[1]}, {A1}, {BS1}, 0")
    B2=[v(4,align=4),v(4,align=4)]
    Ur=v(4,align=4); Ui=v(4,align=4)
    D=[v(4,align=4),v(4,align=4)]; DN=v(4,align=4)
    for u in range(2):
        for r in range(4):
            k(f"v_mul_f32 {Ur[r]}, {Tr[u][r]}, {TC[4*u+r]}")
            k(f"v_mul_f32 {Ui[r]}, {Ti[u][r]}, {TC[4*u+r]}")
        for r in range(4):
            k(f"v_fmac_f32 {Ur[r]}, {Ti[u][r]}, {TS[4*u+r]}")
            k(f"v_fma_f32 {Ui[r]}, -{Tr[u][r]}, {TS[4*u+r]}, {Ui[r]}")
        k(f"v_cvt_pk_bf16_f32 {B2[u][0]}, {Ur[0]}, {Ur[1]}")
        k(f"v_cvt_pk_bf16_f32 {B2[u][1]}, {Ur[2]}, {Ur[3]}")
        k(f"v_cvt_pk_bf16_f32 {B2[u][2]}, {Ui[0]}, {Ui[1]}")
        k(f"v_cvt_pk_bf16_f32 {B2[u][3]}, {Ui[2]}, {Ui[3]}")
        k(f"v_mfma_f32_16x16x32_bf16 {D[u]}, {A2}, {B2[u]}, 0")
        if u==0: k(f"v_mfma_f32_16x16x32_bf16 {DN}, {A3}, {B2[0]}, 0")
    o=v(4,align=4)
    if MERGE:
        k(f"v_cmp_eq_u32 vcc, 0, {lane}")
        k(f"v_cndmask_b32 {D[0][1]}, {D[0][1]}, {DN[0]}, vcc")
    for u in range(2):
        for b in range(2):
            k(f"v_cvt_pk_bf16_f32 {o[2*u+b]}, {D[u][2*b]}, {D[u][2*b+1]}")
    for u in range(2):
        for b in range(2):
            k(f"ds_write_b32 {vlw}, {o[2*u+b]} offset:{64*u+128*b}")
    if not MERGE:
        k(f"""
v_cvt_pk_bf16_f32 {tt}, {DN[0]}, 0
s_lshl_b32 {t0}, {beta}, 3
s_add_u32 {t0}, {t0}, {w}
s_lshl_b32 {t0}, {t0}, 2
s_add_u32 {t0}, {t0}, {256*8192}
v_mov_b32 {c0}, {t0}
v_cmp_eq_u32 vcc, 0, {lane}
s_and_saveexec_b64 {sv}, vcc
buffer_store_dword {tt}, {c0}, {Rx1}, 0 offen
s_mov_b64 exec, {sv}""")
    k("s_waitcnt lgkmcnt(0)")
    k("s_barrier")
    for e in range(4): k(f"ds_read_b32 {o[e]}, {vlr} offset:{1040*e}")
    k("s_waitcnt lgkmcnt(0)")
    k(f"buffer_store_dwordx4 {o}, {vst}, {Rx1}, 0 offen {SX1}")
    if NC:
        NC2=k.label('NC2')
        k(f"s_cmp_lt_u32 s2, 192")
        k(f"s_cbranch_scc1 {NC2}")
        gemv(4,8,False)
        k(f"s_cmp_lg_u32 {w}, 0")
        k(f"s_cbranch_scc1 {NC2}")
        k(f"v_lshlrev_b32 {vl}, 2, {lane}")
        for n in range(8): k(f"ds_read_b32 {rd[n]}, {vl} offset:{L_GV+256*n}")
        k("s_waitcnt lgkmcnt(0)")
        for st in (1,2,4):
            for r in range(0,8,2*st): k(f"v_add_f32 {rd[r]}, {rd[r]}, {rd[r+st]}")
        k(f"buffer_store_dword {rd[0]}, {vl}, {Rmb}, {mbo} offen")
        k(f"{NC2}:")
    k.stamp_flush(kidx)
    k(f"{END}:\ns_endpgm")
    code,desc=k.finish()
    return (k,code,desc)
```

```python
import sys,os
from common import *
from kA import build_kA
out=sys.argv[1]
if int(os.environ.get('MERGE','1')):
    from k2345 import build_k2345
    build_file([build_kA(),build_k2345(NAME,kidx=1)],out)
else:
    from k2 import build_k2
    from k345 import build_k345
    build_file([build_kA(),build_k2(),build_k345(NAME,kidx=2)],out)
```

```python
import re, sys

class Reg:
    __slots__=('kind','idx','n')
    def __init__(self, kind, idx, n=1):
        self.kind=kind; self.idx=idx; self.n=n
    def __str__(self):
        if self.n==1: return f"{self.kind}{self.idx}"
        return f"{self.kind}[{self.idx}:{self.idx+self.n-1}]"
    __repr__=__str__
    def __format__(self, spec): return str(self)
    def __getitem__(self, i):
        if isinstance(i, slice):
            a=i.start or 0; b=self.n if i.stop is None else i.stop
            assert 0<=a<b<=self.n, (a,b,self.n)
            return Reg(self.kind, self.idx+a, b-a)
        assert 0<=i<self.n, (i,self.n)
        return Reg(self.kind, self.idx+i, 1)
    def sub(self, a, n): return self[a:a+n]
    def __len__(self): return self.n

class Alloc:
    def __init__(self, kind, start, limit):
        self.kind=kind; self.limit=limit; self.used=[False]*limit
        for i in range(start): self.used[i]=True
        self.hi=start
    def __call__(self, n=1, align=None):
        if align is None:
            align = 1 if n==1 else (2 if self.kind in 'va' else (2 if n==2 else 4))
        i=0
        while i+n<=self.limit:
            if i%align==0 and not any(self.used[i:i+n]):
                for j in range(i,i+n): self.used[j]=True
                self.hi=max(self.hi,i+n)
                return Reg(self.kind,i,n)
            i+=1
        raise RuntimeError(f"out of {self.kind} regs (want {n})")
    def at(self, i, n=1):
        assert not any(self.used[i:i+n]), (self.kind,i,n)
        for j in range(i,i+n): self.used[j]=True
        self.hi=max(self.hi,i+n)
        return Reg(self.kind,i,n)
    def free(self, *regs):
        for r in regs:
            for j in range(r.idx,r.idx+r.n):
                assert self.used[j], (r,)
                self.used[j]=False

REG_RE=re.compile(r'^(-|\|)?(?:abs\()?([vas])(?:(\d+)|\[(\d+):(\d+)\])\)?\|?$')
def parse_reg(tok):
    t=tok.strip()
    m=re.match(r'^-?\|?(?:abs\()?(?:neg\()?([vas])(?:(\d+)|\[(\d+):(\d+)\])\)?\|?$',t)
    if m:
        k=m.group(1)
        if m.group(2) is not None: return [(k,int(m.group(2)))]
        return [(k,i) for i in range(int(m.group(3)),int(m.group(4))+1)]
    if t in('vcc','-vcc'): return [('s','vcc_lo'),('s','vcc_hi')]
    if t=='vcc_lo': return [('s','vcc_lo')]
    if t=='vcc_hi': return [('s','vcc_hi')]
    if t=='exec': return [('s','exec_lo'),('s','exec_hi')]
    if t=='exec_lo': return [('s','exec_lo')]
    if t=='exec_hi': return [('s','exec_hi')]
    if t=='m0': return [('s','m0')]
    return []

TRANS=('v_exp_f32','v_log_f32','v_rcp_f32','v_rsq_f32','v_sqrt_f32','v_sin_f32','v_cos_f32','v_rcp_iflag_f32',
       'v_exp_f16','v_log_f16','v_rcp_f16','v_rsq_f16','v_sqrt_f16','v_sin_f16','v_cos_f16')
VCC=[('s','vcc_lo'),('s','vcc_hi')]
EXEC=[('s','exec_lo'),('s','exec_hi')]

class Ins:
    def __init__(self, text):
        self.text=text
        t=text.split(';')[0].split('//')[0].strip()
        self.label=None; self.op=None
        self.vr=set(); self.vw=set(); self.sr=set(); self.sw=set()
        self.cls=None; self.nop=0
        if not t:
            self.cls='empty'; return
        if t.endswith(':'):
            self.cls='label'; self.label=t[:-1]; return
        if t.startswith('.'):
            self.cls='directive'; return
        parts=t.split(None,1)
        op=parts[0]; self.op=op
        rest=parts[1] if len(parts)>1 else ''
        ops=[];depth=0;cur=''
        for ch in rest:
            if ch in '[(': depth+=1
            if ch in '])': depth-=1
            if ch==',' and depth==0: ops.append(cur.strip()); cur=''
            else: cur+=ch
        if cur.strip(): ops.append(cur.strip())
        mods=''
        if ops:
            last=ops[-1].split(None,1)
            if len(last)>1:
                ops[-1]=last[0]; mods=last[1]
        self.ops=ops; self.mods=mods
        R=lambda i: parse_reg(ops[i]) if i<len(ops) else []
        def rd(regs):
            for r in regs: (self.vr if r[0] in 'va' else self.sr).add(r)
        def wr(regs):
            for r in regs: (self.vw if r[0] in 'va' else self.sw).add(r)
        base=op
        for suf in ('_e32','_e64','_dpp','_sdwa'):
            if base.endswith(suf): base=base[:-len(suf)]
        self.base=base
        self.dpp = op.endswith('_dpp') or any(k in mods for k in ('row_shr','row_shl','row_ror','quad_perm','row_mirror','row_half_mirror','row_bcast','row_newbcast','wave_sh','wave_ro'))
        self.sdwa = op.endswith('_sdwa') or 'dst_sel' in mods
        if op.startswith('v_mfma') or op.startswith('v_smfmac'):
            self.cls='mfma'
            wr(R(0)); self.D=set(R(0)); self.A=set(R(1)); self.B=set(R(2)); self.C=set(R(3))
            rd(R(1)); rd(R(2)); rd(R(3))
            self.Dfirst=R(0)[0]; self.Cfirst=R(3)[0] if R(3) else None
            if '32x32' in op: self.passes=8
            elif '16x16' in op: self.passes=4
            elif '4x4' in op: self.passes=2
            else: raise ValueError(op)
            if op.endswith('_f32') and re.search(r'x\d+_f32$',op) and not 'bf16' in op and not 'f16' in op:
                raise ValueError('SGEMM mfma not modelled '+op)
        elif op.startswith('v_'):
            self.cls='valu'
            self.trans = base in TRANS
            if base.startswith('v_cmpx'):
                wr(EXEC); wr(R(0));
                for i in range(1,len(ops)): rd(R(i))
            elif base.startswith('v_cmp'):
                wr(R(0))
                for i in range(1,len(ops)): rd(R(i))
            elif base in('v_readfirstlane_b32','v_readlane_b32'):
                wr(R(0))
                for i in range(1,len(ops)): rd(R(i))
            elif base in('v_add_co_u32','v_sub_co_u32','v_subrev_co_u32','v_addc_co_u32','v_subb_co_u32','v_div_scale_f32','v_mad_u64_u32'):
                wr(R(0)); wr(R(1))
                for i in range(2,len(ops)): rd(R(i))
            elif base in('v_permlane32_swap_b32','v_permlane16_swap_b32','v_swap_b32'):
                wr(R(0)); wr(R(1)); rd(R(0)); rd(R(1))
            elif base=='v_nop':
                pass
            else:
                wr(R(0))
                for i in range(1,len(ops)): rd(R(i))
                if base in('v_fmac_f32','v_fmac_f16','v_pk_fmac_f16','v_dot2c_f32_bf16','v_dot2c_f32_f16','v_writelane_b32','v_fmamk_f32x') or self.dpp or self.sdwa or 'op_sel' in mods and base.startswith('v_cvt'):
                    rd(R(0))
                if base=='v_cndmask_b32' and len(ops)==3: rd(VCC)
                if base=='v_bitop3_b32': pass
            self.opselshift = self.sdwa or ('op_sel' in mods and not base.startswith('v_pk_'))
        elif op.startswith('ds_'):
            self.cls='ds'
            if op.startswith('ds_read') or op.startswith('ds_bpermute') or op.startswith('ds_permute') or op.startswith('ds_swizzle'):
                wr(R(0))
                for i in range(1,len(ops)): rd(R(i))
                self.dsread=True
            elif op.startswith('ds_write'):
                for i in range(len(ops)): rd(R(i))
                self.dsread=False
            elif op.startswith('ds_add') or op.startswith('ds_min') or op.startswith('ds_max'):
                if '_rtn' in op:
                    wr(R(0))
                    for i in range(1,len(ops)): rd(R(i))
                    self.dsread=True
                else:
                    for i in range(len(ops)): rd(R(i))
                    self.dsread=False
            else: raise ValueError('ds op '+op)
            if 'addtid' in op: rd([('s','m0')])
        elif op.startswith('buffer_') or op.startswith('global_'):
            self.cls='vmem'
            self.lds = ('lds' in mods.split()) or ('_lds_' in op)
            self.store=False; self.wide=False
            if op.startswith('buffer_wbl2') or op.startswith('buffer_inv'):
                pass
            elif self.lds:
                for i in range(len(ops)): rd(R(i))
                rd([('s','m0')])
            elif '_load' in op:
                wr(R(0))
                if 'd16' in op: rd(R(0))
                for i in range(1,len(ops)): rd(R(i))
            elif '_store' in op:
                self.store=True
                for i in range(len(ops)): rd(R(i))
                self.wide = op.endswith('x3') or op.endswith('x4')
                if op.startswith('buffer'): self.sdata=set(R(0))
                else: self.sdata=set(R(1))
            elif '_atomic' in op:
                self.store=True
                for i in range(len(ops)): rd(R(i))
                if 'sc0' in mods.split(): wr(R(0))
            else: raise ValueError(op)
        elif op.startswith('s_'):
            if op in('s_nop',):
                self.cls='nop'; self.nop=int(ops[0],0)+1
            elif op=='s_waitcnt':
                self.cls='wait'
                s=rest
                m=re.search(r'vmcnt\((\d+)\)',s); self.vm=int(m.group(1)) if m else None
                m=re.search(r'lgkmcnt\((\d+)\)',s); self.lgkm=int(m.group(1)) if m else None
            elif op=='s_barrier': self.cls='barrier'
            elif op=='s_endpgm': self.cls='end'
            elif op=='s_branch': self.cls='branch'; self.target=ops[0]
            elif op.startswith('s_cbranch'):
                self.cls='cbranch'; self.target=ops[0]
                if 'vcc' in op: rd(VCC)
                if 'exec' in op: rd(EXEC)
            elif op.startswith('s_load') or op.startswith('s_buffer_load') or op in('s_memtime','s_memrealtime'):
                self.cls='smem'; wr(R(0))
                for i in range(1,len(ops)): rd(R(i))
            else:
                self.cls='salu'
                if op.startswith('s_cmp') or op in('s_setprio','s_sleep','s_bitcmp0_b32','s_bitcmp1_b32'):
                    for i in range(len(ops)): rd(R(i))
                elif op=='s_getreg_b32':
                    wr(R(0))
                else:
                    wr(R(0))
                    for i in range(1,len(ops)): rd(R(i))
                    if 'saveexec' in op: wr(EXEC); rd(EXEC)
                    if op in('s_addk_i32','s_mulk_i32'): rd(R(0))
        else:
            raise ValueError('unknown instruction: '+text)

    def is_real(self): return self.cls not in ('empty','label','directive')
    def states(self): return self.nop if self.cls=='nop' else 1


def hazard_need(p, c):
    need=0
    pc, cc = p.cls, c.cls
    if pc=='valu':
        ov = p.vw & c.vr
        if cc=='mfma' and ov: need=max(need,2)
        if cc=='valu':
            if ov and c.dpp: need=max(need,2)
            if ov and c.base.startswith('v_permlane'): need=max(need,2)
            if p.vw & c.vw and c.base.startswith('v_permlane'): need=max(need,2)
            if ov and c.base in('v_readlane_b32','v_readfirstlane_b32'): need=max(need,1)
            if p.trans and ov: need=max(need,1)
            if p.opselshift and (ov or p.vw & c.vw): need=max(need,1)
        if cc in('vmem','ds') and p.trans and ov: need=max(need,1)
        so = p.sw & c.sr
        if so:
            if cc=='vmem': need=max(need,5)
            if cc=='valu':
                need=max(need,2)
                if c.base in('v_readlane_b32','v_writelane_b32'): need=max(need,4)
                if c.base=='v_div_fmas_f32': need=max(need,4)
            if cc in('salu','cbranch','smem'): need=max(need,1)
        if p.sw & set(VCC) and cc=='cbranch' and 'vcc' in c.op: need=max(need,5) if False else max(need,1)
        if p.sw & set(EXEC):
            if cc=='mfma': need=max(need,4)
            if cc=='valu' and c.dpp: need=max(need,5)
            if cc=='valu' and (c.base.startswith('v_permlane') or c.base in('v_readlane_b32','v_readfirstlane_b32','v_writelane_b32')): need=max(need,4)
    if pc=='salu':
        if ('s','m0') in p.sw and ('s','m0') in c.sr and cc in('vmem','ds'): need=max(need,1)
    if pc=='vmem' and p.store and getattr(p,'wide',False):
        if p.sdata & c.vw:
            need=max(need, 2 if cc=='valu' else 1)
    if pc=='mfma':
        P=p.passes
        if cc=='mfma':
            if p.D & c.C:
                exact = (p.D==c.C) and p.passes==c.passes
                if not exact: need=max(need,P+2)
                elif P==2: need=max(need,2)
            if p.D & (c.A|c.B): need=max(need,P+4 if P>2 else 5)
            if (p.D & c.D) and not (p.D & c.C):
                if p.passes!=c.passes or p.D!=c.D: need=max(need,P+2)
        elif cc in('valu','vmem','ds'):
            if p.D & (c.vr|c.vw): need=max(need,P+4 if P>2 else 5)
            if cc=='valu' and (p.C & c.vw): need=max(need,P-1)
            if cc in('vmem','ds') and (p.C & c.vw): need=max(need,P-1)
    return need

MAXD=21
def insert_nops(lines):
    ins=[Ins(l) for l in lines]
    labels={x.label:i for i,x in enumerate(ins) if x.cls=='label'}
    preds_branch={}
    for i,x in enumerate(ins):
        if x.cls in('branch','cbranch'):
            preds_branch.setdefault(labels[x.target],[]).append(i)
    extra=[0]*len(ins)
    sys.setrecursionlimit(100000)
    def need_for(ci):
        c=ins[ci]; best=0
        seen={}
        stack=[(ci,0)]
        while stack:
            i,d=stack.pop()
            if d>=MAXD: continue
            if seen.get(i,99)<=d: continue
            seen[i]=d
            ps=[]
            if i>0:
                q=ins[i-1]
                if q.cls not in('branch','end'): ps.append(i-1)
            if ins[i].cls=='label': ps+=preds_branch.get(i,[])
            for j in ps:
                p=ins[j]
                if p.is_real():
                    n=hazard_need(p,c)
                    if n>d: best=max(best,n-d)
                    stack.append((j,d+p.states()+extra[j]))
                else:
                    stack.append((j,d))
        return best
    out=[]; total=0
    for i,x in enumerate(ins):
        if x.is_real() and x.cls in('valu','mfma','vmem','ds','salu','cbranch','smem'):
            n=need_for(i)
            if n>0:
                extra[i]=n; total+=n
    for i,x in enumerate(ins):
        n=extra[i]
        while n>0:
            k=min(n,16); out.append(f"    s_nop {k-1}"); n-=k
        out.append(x.text)
    return out,total

def check_waits(lines, name='', maxback=1, verbose=True):
    ins=[Ins(l) for l in lines]
    labels={x.label:i for i,x in enumerate(ins) if x.cls=='label'}
    problems=[]
    seen_states=set()
    stack=[(0,(),(),())]
    steps=0
    while stack:
        pc,vm,lg,bc=stack.pop()
        vm=list(vm); lg=list(lg); bc=dict(bc)
        while pc<len(ins):
            x=ins[pc]; steps+=1
            if steps>5_000_000: raise RuntimeError('check_waits: too many paths')
            if x.cls=='label':
                key=(pc,tuple(vm),tuple(lg),tuple(sorted(bc.items())))
                if key in seen_states: break
                seen_states.add(key)
            if x.is_real():
                touched=(x.vr|x.vw|x.sr|x.sw)
                for d in vm:
                    if d & touched:
                        if x.cls=='vmem' and not (d & (x.vr|x.sr)) and not 'd16' in x.op:
                            pass
                        else:
                            problems.append((pc,x.text.strip(),'vmcnt outstanding '+str(sorted(d&touched)[:4])))
                for kind,d in lg:
                    if d & touched:
                        if x.cls=='ds' and kind=='ds' and not (d & (x.vr|x.sr)): pass
                        else: problems.append((pc,x.text.strip(),'lgkmcnt outstanding '+str(sorted(d&touched,key=str)[:4])))
                if x.cls=='vmem':
                    if not (x.op.startswith('buffer_wbl2') and False):
                        vm.append(frozenset(x.vw))
                    if len(vm)>63: problems.append((pc,x.text.strip(),'vmcnt overflow >63'))
                elif x.cls=='ds':
                    lg.append(('ds',frozenset(x.vw)))
                elif x.cls=='smem':
                    lg.append(('s',frozenset(x.sw)))
                elif x.cls=='wait':
                    if x.vm is not None:
                        while len(vm)>x.vm: vm.pop(0)
                    if x.lgkm is not None:
                        if x.lgkm==0: lg=[]
                        elif any(k=='s' for k,_ in lg):
                            pass
                        else:
                            while len(lg)>x.lgkm: lg.pop(0)
                elif x.cls=='barrier':
                    if any(k=='ds' for k,_ in lg) and 'nowarn' not in x.text:
                        problems.append((pc,x.text.strip(),'barrier with outstanding DS ops'))
                elif x.cls=='end': break
                elif x.cls=='branch':
                    t=labels[x.target]
                    if t<=pc:
                        bc[pc]=bc.get(pc,0)+1
                        if bc[pc]>maxback: break
                    pc=t; continue
                elif x.cls=='cbranch':
                    t=labels[x.target]
                    if t<=pc:
                        n=bc.get(pc,0)
                        if n<maxback:
                            b2=dict(bc); b2[pc]=n+1
                            stack.append((t,tuple(vm),tuple(lg),tuple(sorted(b2.items()))))
                    else:
                        stack.append((t,tuple(vm),tuple(lg),tuple(sorted(bc.items()))))
            pc+=1
    uniq=[];s=set()
    for p in problems:
        if p[:2] not in s: s.add(p[:2]); uniq.append(p)
    if verbose:
        for p in uniq[:40]: print(f"[waitcheck {name}] line {p[0]}: {p[1]}  -> {p[2]}")
    return uniq

import os
DIAG=int(os.environ.get('DIAG','0'))
WS_DIAG=0x2000000
class Kernel:
    def __init__(self, name, grid, block, lds=0):
        self.name=name; self.grid=grid; self.block=block; self.lds=lds
        self.lines=[]
        self.v=Alloc('v',1,256); self.a=Alloc('a',0,256); self.s=Alloc('s',3,100)
        self._lab=0
        if DIAG:
            self.s.at(74,26)
            self.nst=0
    def reset_regs(self, keep=()):
        for al,start in ((self.v,1),(self.a,0),(self.s,3)):
            for i in range(start,al.limit): al.used[i]=False
        if DIAG:
            for i in range(74,100): self.s.used[i]=True
        for r in keep:
            al={'v':self.v,'a':self.a,'s':self.s}[r.kind]
            for i in range(r.idx,r.idx+r.n): al.used[i]=True
    def stamp(self, i):
        if not DIAG: return
        self(f"{'s_memtime' if DIAG==2 else 's_memrealtime'} s[{80+2*i}:{81+2*i}]")
        self.nst=max(self.nst,i+1)
    def stamp_init(self):
        if not DIAG: return
        self.stamp(0)
        t=self.v()
        self(f"v_lshrrev_b32 {t}, 6, v0")
        self(f"v_readfirstlane_b32 s74, {t}")
        self.v.free(t)
    def stamp_flush(self, kidx, drain=True, mid=None):
        if not DIAG:
            if mid: mid()
            return
        if drain:
            self.stamp(8)
            self("s_waitcnt vmcnt(0)")
        self.stamp(9)
        if mid: mid()
        self("s_load_dwordx2 s[76:77], s[0:1], 88")
        self("s_waitcnt lgkmcnt(0)")
        self(f"s_add_u32 s76, s76, {WS_DIAG+kidx*512*8*64:#x}")
        self("s_addc_u32 s77, s77, 0")
        self(f"s_mov_b32 s78, {512*8*64:#x}")
        self("s_mov_b32 s79, 0x00020000")
        self("s_lshl_b32 s75, s2, 3")
        self("s_add_u32 s75, s75, s74")
        self("s_lshl_b32 s75, s75, 6")
        self("s_mov_b64 exec, 1")
        for i in range(10): self(f"v_mov_b32 v{4+i}, s{80+2*i}")
        self("s_getreg_b32 s74, hwreg(HW_REG_XCC_ID)")
        self("v_mov_b32 v14, s74")
        self("s_getreg_b32 s74, hwreg(HW_REG_HW_ID)")
        self("v_mov_b32 v15, s74")
        self("v_mov_b32 v0, s75")
        self("buffer_store_dwordx4 v[4:7], v0, s[76:79], 0 offen")
        self("buffer_store_dwordx4 v[8:11], v0, s[76:79], 0 offen offset:16")
        self("buffer_store_dwordx4 v[12:15], v0, s[76:79], 0 offen offset:32")
    def __call__(self, text):
        for l in text.split('\n'):
            l=l.strip()
            if not l: continue
            if l.endswith(':'): self.lines.append(l)
            else:
                self.lines.append('    '+l)
                h=getattr(self,'hook',None)
                if h:
                    self.hook=None; h(); self.hook=h
    def label(self, base='L'):
        self._lab+=1
        return f"{self.name}_{base}{self._lab}"
    def comment(self, t): self.lines.append('    ; '+t)
    def finish(self, vgpr=None, agpr=None, check=True):
        lines,total=insert_nops(self.lines)
        if check and not DIAG:
            pr=check_waits(lines,self.name)
            if pr: print(f"!! {self.name}: {len(pr)} wait problems")
        nv=vgpr or max(self.v.hi,16 if DIAG else 0); na=agpr if agpr is not None else self.a.hi
        acc=max(4,(nv+3)//4*4)
        tot=acc+na if na else nv
        self.nv,self.na=nv,na
        ns=max(self.s.hi,16)
        n_ins=sum(1 for l in lines if Ins(l).is_real())
        print(f"[{self.name}] instrs={n_ins} nops_states={total} vgpr={nv} agpr={na} sgpr={ns}")
        code=f".globl {self.name}\n.p2align 8\n.type {self.name},@function\n{self.name}:\n"+'\n'.join(lines)+f"\n{self.name}_CEND:\n"
        desc=f""".p2align 6
.amdhsa_kernel {self.name}
  .amdhsa_next_free_vgpr {tot}
  .amdhsa_next_free_sgpr {ns}
  .amdhsa_accum_offset {acc}
  .amdhsa_group_segment_fixed_size 0
  .amdhsa_kernarg_size 96
  .amdhsa_user_sgpr_count 2
  .amdhsa_user_sgpr_kernarg_segment_ptr 1
  .amdhsa_system_sgpr_workgroup_id_x 1
.end_amdhsa_kernel
"""
        return code,desc

HEADER=""";  Kernarg layout (96 bytes, ptrs only, base s[0:1]):
"""
def build_file(kernels, path):
    s=HEADER
    for k,_,_ in kernels:
        s+=f"; @launch kernel={k.name} grid=({k.grid},1,1) block=({k.block},1,1) lds={k.lds}\n"
    s+='.amdgcn_target "amdgcn-amd-amdhsa--gfx950"\n.text\n'
    done=set()
    for k,code,_ in kernels:
        if k.name in done: continue
        done.add(k.name); s+=code
    s+='.section .rodata,"a"\n'
    done=set()
    for k,_,desc in kernels:
        if k.name in done: continue
        done.add(k.name); s+=desc
    open(path,'w').write(s)
    return s
```

```python
from common import *
from k2 import interleave
import os
MFB="v_mfma_f32_16x16x32_bf16"
MF16x32="v_mfma_f32_16x16x32_bf16"; MF16="v_mfma_f32_16x16x16_bf16"; MF="v_mfma_f32_32x32x16_bf16"
MAT=14464; CHUNK=2*MAT; NB=5
SCR=4*CHUNK
L_Y=SCR; L_H=SCR+8320; L_X=L_H+8704
L_MOD=NB*CHUNK
LDS=L_MOD+8192
SPIN=0x20000
L_RL=SCR+16896
WS_FLB=WS_FLG+0x10000
E_=lambda n,d: int(os.environ.get(n,d))
N2=E_('N2',0); WE=E_('WE',4); WUP=E_('WUP',0); PACE=E_('PACE',5); U5=E_('U5',10); TUP=E_('TUP',24); TPS=E_('TPS',1); V0=E_('V0',8); V1=E_('V1',30); PW=E_('PW',1); WY=E_('WY',0); CB1=E_('CB1',1); PFB=E_('PFB',1); FF=E_('FF',0); XL=E_('XL',0); MAP=E_('MAP',0); LOCAL=E_('LOCAL',0); LB=E_('LB',1); SM='' if LOCAL else 'sc1'; LDM=os.environ.get('LDM','sc1').replace('_',' '); LBM=os.environ.get('LBM','sc1').replace('_',' '); PLM=os.environ.get('PLM','sc1'); SM=os.environ.get('SM',SM); STM=os.environ.get('STM','sc1').replace('_',' ')
G16=E_('G16',1); GP=(2,6,10); GE=(0,4,8,12); RPG=E_('RPG',1); RING=E_('RING',1); RLAG=E_('RLAG',0); W0=E_('W0',4); GP2=(7,9,11); GE2=(8,10,12,13); NV=E_('NV',32); BGE=E_('BGE',1); BGN=E_('BGN',8); WN0=E_('WN0',1); SPOS=E_('SPOS',1); PBL=E_('PBL',0); SRL=E_('SRL',0)
class VM:
    def __init__(s,k): s.k=k; s.ops=[]
    def op(s,text,tag=None):
        h=getattr(s.k,'hook',None); s.k.hook=None
        s.k(text); s.ops.append(tag); assert len(s.ops)<=63,len(s.ops)
        s.k.hook=h
    def wait(s,*tags,force=False,lgkm=None):
        idx=[i for i,t in enumerate(s.ops) if t in tags]
        lg="" if lgkm is None else f" lgkmcnt({lgkm})"
        if not idx:
            if lg: s.k("s_waitcnt"+lg)
            return
        n=len(s.ops)-1-max(idx)
        s.k(f"s_waitcnt vmcnt({n})"+lg); s.ops=s.ops[len(s.ops)-n:]
    def drain(s): s.k("s_waitcnt vmcnt(0)"); s.ops=[]

def build_k2345(name=NAME, N1=int(os.environ.get('N1','0')), D5=24, kidx=1):
    k=Kernel(name,256,256,lds=LDS)
    v,s,a=k.v,k.s,k.a
    vm=VM(k)
    ST=os.environ.get('ST','a')
    def stamp(set_,i):
        if set_ in ST: k.stamp(i)
    END=k.label('END')
    px=s(2); pgu=s(4); pout=s(2); pws=s(2); pwd=s(2)
    w,t0,t1,tb,fb,beta,row=s(),s(),s(),s(),s(),s(),s()
    lane,tv,vtok,zero,vfl,one,vf=v(),v(),v(),v(),v(),v(),v()
    vd=[v() for _ in range(7)]; vA=[v() for _ in range(NB)]
    resv=v.at(v.hi,24-v.hi)
    vi,vg=v(),v()
    k(f"""
s_cmp_ge_u32 s2, 256
s_cbranch_scc1 {END}""")
    k.stamp_init()
    k(f"""
s_load_dwordx2 {pws}, s[0:1], {ARG['ws']}
s_load_dwordx2 {px}, s[0:1], {ARG['x']}
s_load_dwordx4 {pgu}, s[0:1], {ARG['wg']}
s_load_dwordx2 {pwd}, s[0:1], {ARG['wd']}
s_load_dwordx2 {pout}, s[0:1], {ARG['out']}
v_lshrrev_b32 {tv}, 6, v0
v_and_b32 {lane}, 63, v0
v_readfirstlane_b32 {w}, {tv}
v_and_b32 {vi}, 15, v0
v_bfe_u32 {vg}, v0, 4, 2
v_lshlrev_b32 {vtok}, 4, {lane}
s_and_b32 {t0}, s2, 7            ; x
s_lshr_b32 {t1}, s2, 3           ; slot
""")
    if MAP==0:
        k(f"""
s_and_b32 {tb}, {t0}, 1
s_lshl_b32 {tb}, {tb}, 3
s_lshr_b32 {fb}, {t0}, 1
s_lshl_b32 {fb}, {fb}, 2
s_and_b32 {t0}, {t1}, 7
s_add_u32 {tb}, {tb}, {t0}
s_lshr_b32 {t0}, {t1}, 3
s_add_u32 {fb}, {fb}, {t0}
""")
    else:
        k(f"""
s_lshl_b32 {tb}, {t0}, 1
s_and_b32 {t0}, {t1}, 1
s_add_u32 {tb}, {tb}, {t0}
s_lshr_b32 {fb}, {t1}, 1
""")
    k(f"""
s_lshl_b32 {beta}, {tb}, 4
s_add_u32 {beta}, {beta}, {fb}
""")
    row_of_pos(k,row,beta,w,t0,t1)
    k(f"s_lshl_b32 {row}, {row}, 10")
    k(f"v_mov_b32 {zero}, 0")
    keepB=[]
    def bv(n=1,align=None):
        r=v(n,align); keepB.append(r); return r
    xr=[[v(2),v(2)] for j in range(2)]; vxo=v()
    sxb,swt,swn,syb=s(),s(),s(),s()
    vo2,vlwB,vxrB=bv(),bv(),bv()
    k(f"""
s_lshl_b32 {sxb}, s2, 13
s_lshl_b32 {t0}, {w}, 11
s_add_u32 {swt}, {sxb}, {t0}
s_add_u32 {swt}, {swt}, {WS_WT:#x}
s_add_u32 {swn}, {t0}, {WS_WT+256*8192:#x}
s_lshl_b32 {t0}, {w}, 10
s_add_u32 {syb}, {sxb}, {t0}
s_add_u32 {syb}, {syb}, {WS_Y:#x}
s_add_u32 {sxb}, {sxb}, {WS_X1:#x}
v_add_u32 {vo2}, 4096, {vtok}
s_add_u32 {t0}, {t0}, {SCR}
v_add_u32 {vlwB}, {t0}, {vtok}
v_add_u32 {vxrB}, {SCR}, {vtok}
v_lshlrev_b32 {vxo}, 5, {vi}
v_lshl_add_u32 {vxo}, {vg}, 3, {vxo}
""")
    vdd,vdd2,vpp,vpf=bv(),bv(),bv(),bv(); sw_,sd_,spf=s(),s(),s()
    k(f"""
v_lshrrev_b32 {vpp}, 3, {lane}               ; row
v_bfe_u32 {tv}, {lane}, 4, 1
v_lshlrev_b32 {tv}, 2, {tv}
v_and_b32 {vdd}, 7, {lane}
v_xor_b32 {vdd}, {vdd}, {tv}
v_lshlrev_b32 {vdd}, 4, {vdd}
v_lshl_add_u32 {vdd}, {vpp}, 10, {vdd}
s_sub_u32 {t0}, s2, 32
s_cselect_b32 {t0}, 0, {t0}
s_and_b32 {t1}, {t0}, 1
s_lshl_b32 {t1}, {t1}, 2
s_add_u32 {t1}, {t1}, {w}
s_lshr_b32 {t0}, {t0}, 1                     ; F
s_lshl_b32 {sw_}, {t0}, 14
s_lshl_b32 {sd_}, {t1}, 7
s_add_u32 {sw_}, {sw_}, {sd_}                ; F*16384 + nb*128
s_mul_i32 {sd_}, {t1}, {112*2048}
s_lshl_b32 {t0}, {t0}, 11
s_add_u32 {sd_}, {sd_}, {t0}
s_add_u32 {sd_}, {sd_}, {WS_WDF:#x}          ; nb*229376 + F*2048
v_add_u32 {vdd2}, {8192-1024}, {vdd}
v_lshlrev_b32 {vpp}, 5, v0
s_mul_i32 {t0}, s2, 7168
s_and_b32 {t1}, {w}, 1
s_lshl_b32 {t1}, {t1}, 12
s_add_u32 {t0}, {t0}, {t1}
v_add_u32 {vpf}, {t0}, {vtok}
s_lshl_b32 {t1}, {w}, 11
s_add_u32 {t1}, {t1}, {L_RL}
s_mov_b32 m0, {t1}
""")
    fi,fg4,k1f,f,f13,arg,c0,s0,c1,s1,mi=[bv() for _ in range(11)]
    k(f"""
v_cvt_f32_u32 {fi}, {vi}
v_cvt_f32_u32 {fg4}, {vg}
v_mul_f32 {fg4}, 4.0, {fg4}              ; 4g
s_lshl_b32 {t0}, {w}, 4
v_add_u32 {tv}, {t0}, {vi}
v_cvt_f32_u32 {k1f}, {tv}                ; 16w+i
v_and_b32 {tv}, 1, {vi}
v_mul_u32_u24 {mi}, 0x8000, {tv}
v_lshl_or_b32 {mi}, {mi}, 16, {mi}        ; (i&1) ? 0x80008000 : 0
""")
    BR=[bv(4,align=4) for _ in range(4)]; BI=[bv(4,align=4) for _ in range(4)]
    k(f"v_mul_f32 {f}, 0x3c800000, {k1f}")
    k(f"v_mul_f32 {f13}, 0x41500000, {f}")
    k(f"v_mul_f32 {arg}, {fg4}, {f}")
    for kap in range(2):
        for e in range(4):
            cc,ss=(c0,s0) if e&1==0 else (c1,s1)
            k(f"v_cos_f32 {cc}, {arg}")
            k(f"v_sin_f32 {ss}, {arg}")
            if not(kap==1 and e==3): k(f"v_add_f32 {arg}, {arg}, {f if e<3 else f13}")
            k(f"v_cvt_pk_bf16_f32 {BR[kap][e]}, {cc}, {ss}")
            k(f"v_cvt_pk_bf16_f32 {BI[kap][e]}, -{ss}, {cc}")
    for kap in range(2,4):
        for e in range(4):
            k(f"v_xor_b32 {BR[kap][e]}, {mi}, {BR[kap-2][e]}")
            k(f"v_xor_b32 {BI[kap][e]}, {mi}, {BI[kap-2][e]}")
    T1C=bv(8,align=4); T1S=bv(8,align=4)
    def t1const():
        k(f"v_mul_f32 {f}, 0x3a000000, {k1f}")
        k(f"v_mul_f32 {f13}, 0x41500000, {f}")
        k(f"v_mul_f32 {arg}, {fg4}, {f}")
        for t in range(2):
            for r in range(4):
                k(f"v_cos_f32 {T1C[4*t+r]}, {arg}")
                k(f"v_sin_f32 {T1S[4*t+r]}, {arg}")
                if not(t==1 and r==3): k(f"v_add_f32 {arg}, {arg}, {f if r<3 else f13}")
    if CB1>=1: t1const()
    k("s_waitcnt lgkmcnt(0)")
    stamp('p',1)
    Rws,Rx,Rw,Rd=s(4),s(4),s(4),s(4)
    srd(k,Rws,pws,0x1400000)
    XA=a(32,align=4); X=[[XA[16*t+4*kap:16*t+4*kap+4] for kap in range(4)] for t in range(2)]
    PP=a(16,align=4); PFD=a(4,align=4)
    W=[bv(4,align=4),bv(4,align=4)]; Wn=[bv(4,align=4),bv(4,align=4)]
    if WN0:
        NOWN=k.label('NOWN')
        k(f"s_cmp_lg_u32 s2, 0")
        k(f"s_cbranch_scc1 {NOWN}")
        for t2 in range(2): k(f"buffer_load_dwordx4 {Wn[t2]}, {vtok}, {Rws}, {swn} offen offset:{t2*1024}")
        k(f"{NOWN}:")
    for t2 in range(2): vm.op(f"buffer_load_dwordx4 {W[t2]}, {vtok}, {Rws}, {swt} offen offset:{t2*1024}",'W')
    if not WN0:
        for t2 in range(2): vm.op(f"buffer_load_dwordx4 {Wn[t2]}, {vtok}, {Rws}, {swn} offen offset:{t2*1024}",'W')
    nW=len(vm.ops)
    for t in range(2):
        for kap in range(4):
            vm.op(f"buffer_load_dwordx4 {X[t][kap]}, {vtok if t==0 else vo2}, {Rws}, {sxb} offen offset:{kap*1024}",f"X{t}{kap}")
    srd(k,Rd,pwd,1792*1024); srd(k,Rx,px,2048*1024)
    spp=[s(),s()]
    for q in range(2): k(f"s_mov_b32 {spp[q]}, {WS_MBOX+0x4000+q*8192:#x}")
    side=[]
    side.append((f"buffer_load_dwordx4 {vdd}, {Rd}, {sw_} offen lds",'rl'))
    side.append((f"buffer_load_dwordx4 {vdd2}, {Rd}, {sw_} offen offset:1024 lds",'rl'))
    pfpre=f"""s_and_b32 {spf}, {w}, 2
s_cmp_eq_u32 {spf}, 0
s_cselect_b32 {Rd[0]}, {pgu[0]}, {pgu[2]}
s_cselect_b32 {Rd[1]}, {pgu[1]}, {pgu[3]}
"""
    s_pp=[];s_x=[];s_pf=[]
    if PFB:
        for n in range(4): s_pf.append(((pfpre if n==0 else "")+f"buffer_load_dwordx4 {PFD}, {vpf}, {Rd}, 0 offen offset:{n*1024}",'pf'))
    for q in range(2):
        s_pp.append((f"buffer_load_dwordx4 {PP[8*q:8*q+4]}, {vpp}, {Rws}, {spp[q]} offen",'pp'))
        s_pp.append((f"buffer_load_dwordx4 {PP[8*q+4:8*q+8]}, {vpp}, {Rws}, {spp[q]} offen offset:16",'pp'))
    for j in range(2):
        for t in range(2): s_x.append((f"buffer_load_dwordx2 {xr[j][t]}, {vxo}, {Rx}, {row} offen offset:{512*t+1024*j}",'x'))
    side+=s_pf+s_pp+s_x
    def side_emit(n):
        for _ in range(n):
            if side: x,tg=side.pop(0); vm.op(x,tg)
    if SPOS==0: side_emit(99)
    elif SRL==0: side_emit(2)
    stamp('p',2)
    if CB1<1: t1const()
    CS=[[bv(6,align=2) for b in range(2)] for a_ in range(2)]
    cc4=bv(4,align=4); ss4=bv(4,align=4)
    k(f"v_mul_f32 {f}, 0x3d000000, {fi}")
    k(f"v_mul_f32 {arg}, {fg4}, {f}")
    for j in range(4):
        k(f"v_cos_f32 {cc4[j]}, {arg}")
        k(f"v_sin_f32 {ss4[j]}, {arg}")
        if j<3: k(f"v_add_f32 {arg}, {arg}, {f}")
    c00=CS[0][0]
    k(f"v_cvt_pk_bf16_f32 {c00[0]}, -{ss4[0]}, -{ss4[1]}")
    k(f"v_cvt_pk_bf16_f32 {c00[1]}, -{ss4[2]}, -{ss4[3]}")
    k(f"v_cvt_pk_bf16_f32 {c00[2]}, {cc4[0]}, {cc4[1]}")
    k(f"v_cvt_pk_bf16_f32 {c00[3]}, {cc4[2]}, {cc4[3]}")
    k(f"v_cvt_pk_bf16_f32 {c00[4]}, {ss4[0]}, {ss4[1]}")
    k(f"v_cvt_pk_bf16_f32 {c00[5]}, {ss4[2]}, {ss4[3]}")
    for j in range(6): k(f"v_xor_b32 {CS[0][1][j]}, {mi}, {c00[j]}")
    for j in range(6): k(f"v_xor_b32 {CS[1][0][j]}, 0x80000000, {c00[j]}")
    for j in range(6): k(f"v_xor_b32 {CS[1][1][j]}, 0x80000000, {CS[0][1][j]}")
    T2C=bv(8,align=4); T2S=bv(8,align=4); scl=s(); kb=bv()
    k(f"""
s_cmp_eq_u32 s2, 0
s_mov_b32 {scl}, 0x36000000
s_cselect_b32 {scl}, 0x34800000, {scl}
s_lshl_b32 {t0}, {w}, 4
v_cvt_f32_u32 {kb}, {t0}
v_add_f32 {kb}, {kb}, {fg4}              ; 16w+4g
""")
    for t in range(2):
        if t==0: k(f"v_mul_f32 {f}, 0x3a000000, {fi}")
        else: k(f"v_add_f32 {f}, 0x3c000000, {f}")
        k(f"v_mul_f32 {arg}, {kb}, {f}")
        for r in range(4):
            k(f"v_cos_f32 {T2C[4*t+r]}, {arg}")
            k(f"v_sin_f32 {T2S[4*t+r]}, {arg}")
            if r<3: k(f"v_add_f32 {arg}, {arg}, {f}")
    for j in range(8):
        k(f"v_mul_f32 {T2C[j]}, {scl}, {T2C[j]}")
        k(f"v_mul_f32 {T2S[j]}, {scl}, {T2S[j]}")
    s.free(scl)
    Ar=[bv(4,align=4),bv(4,align=4)]; Ai=[bv(4,align=4),bv(4,align=4)]
    Ur=bv(4,align=4); Ui=bv(4,align=4)
    B2=[bv(4,align=4),bv(4,align=4)]
    Fr=[bv(4,align=4),bv(4,align=4)]; Fi=[bv(4,align=4),bv(4,align=4)]
    A3=[bv(4,align=4),bv(4,align=4)]
    PQ=[[bv(4,align=4) for c in range(4)] for t in range(2)]
    vq,vrev=bv(),bv()
    PQ0,PQ1,FS,FJ=k.label('PQ'),k.label('PQR'),k.label('FS'),k.label('FJ')
    def rev_exchange(src,dst):
        out=[]
        for arr in range(2):
            for t2 in range(2):
                for r in (0,2):
                    out.append(f"ds_write2st64_b32 {vq}, {src[arr][t2][r]}, {src[arr][t2][r+1]} offset0:{33*arr+16*t2+r} offset1:{33*arr+16*t2+r+1}")
        L=k.label('RX')
        out.append(f"s_cmp_lg_u32 {w}, 0\ns_cbranch_scc1 {L}\ns_mov_b64 exec, 1")
        for arr in range(2): out.append(f"ds_write_b32 {vq}, {src[arr][0][0]} offset:{8448*arr+8192}")
        out.append(f"s_mov_b64 exec, -1\n{L}:\ns_waitcnt lgkmcnt(0)\ns_barrier")
        for arr in range(2):
            for t2 in range(2):
                for r in (0,2):
                    out.append(f"ds_read2st64_b32 {dst[arr][t2][r:r+2]}, {vrev} offset0:{33*arr+19-16*t2-r} offset1:{33*arr+18-16*t2-r}")
        out.append("s_waitcnt lgkmcnt(0)\ns_barrier")
        return out
    nafter=len(vm.ops)-nW
    spec=[]
    spec.append(f"{PQ0}:")
    spec.append(f"""
s_lshl_b32 {t0}, {w}, 4
v_add_u32 {tv}, {t0}, {vi}
v_lshl_add_u32 {tv}, {vg}, 8, {tv}          ; k1 + 256 g
v_lshlrev_b32 {tv}, 2, {tv}
v_add_u32 {vq}, {SCR}, {tv}
v_sub_u32 {vrev}, {SCR+8192-256*19}, {tv}
s_waitcnt vmcnt({nafter})""")
    spec+=rev_exchange([W,Wn],[Ar,Ai])
    for t2 in range(2):
        for r in range(4):
            Pr,Pi,Qr,Qi=[PQ[t2][c][r] for c in range(4)]
            a0,an,b0,bn=W[t2][r],Wn[t2][r],Ar[t2][r],Ai[t2][r]
            spec.append(f"""
v_lshlrev_b32 {c0}, 16, {a0}
v_lshlrev_b32 {s0}, 16, {b0}
v_and_b32 {c1}, 0xffff0000, {a0}
v_and_b32 {s1}, 0xffff0000, {b0}
v_add_f32 {Pr}, {c0}, {s0}
v_sub_f32 {Pi}, {c1}, {s1}
v_lshlrev_b32 {c0}, 16, {an}
v_lshlrev_b32 {s0}, 16, {bn}
v_and_b32 {c1}, 0xffff0000, {an}
v_and_b32 {s1}, 0xffff0000, {bn}
v_add_f32 {c0}, {c0}, {s0}
v_sub_f32 {c1}, {c1}, {s1}
v_sub_f32 {Qr}, {Pr}, {c0}
v_sub_f32 {Qi}, {Pi}, {c1}
v_add_f32 {Pr}, {Pr}, {c0}
v_add_f32 {Pi}, {Pi}, {c1}""")
    spec.append(f"s_branch {PQ1}")
    k(f"s_cmp_eq_u32 s2, 0")
    k(f"s_cbranch_scc1 {PQ0}")
    k(f"{PQ1}:")
    def cmul_tw(dst_r,dst_i,xr_,xi_,tc,ts):
        out=[]
        for r in range(4):
            out.append(f"v_mul_f32 {dst_r[r]}, {xr_[r]}, {tc[r]}")
            out.append(f"v_mul_f32 {dst_i[r]}, {xi_[r]}, {tc[r]}")
        for r in range(4):
            out.append(f"v_fmac_f32 {dst_r[r]}, {xi_[r]}, {ts[r]}")
            out.append(f"v_fma_f32 {dst_i[r]}, -{xr_[r]}, {ts[r]}, {dst_i[r]}")
        return out
    def pack_split(dst,ur,ui):
        return [f"v_cvt_pk_bf16_f32 {dst[0]}, {ur[0]}, {ur[1]}",f"v_cvt_pk_bf16_f32 {dst[1]}, {ur[2]}, {ur[3]}",
                f"v_cvt_pk_bf16_f32 {dst[2]}, {ui[0]}, {ui[1]}",f"v_cvt_pk_bf16_f32 {dst[3]}, {ui[2]}, {ui[3]}"]
    stamp('p',3)
    MF_=MFB
    for kap in range(4):
        vm.wait(f"X0{kap}")
        if kap==0: stamp('p',4)
        k(f"{MF_} {Ar[0]}, {X[0][kap]}, {BR[kap]}, {0 if kap==0 else Ar[0]}")
        k(f"{MF_} {Ai[0]}, {X[0][kap]}, {BI[kap]}, {0 if kap==0 else Ai[0]}")
    vm.wait("X13")
    mf=[]
    for kap in range(4):
        mf.append(f"{MF_} {Ar[1]}, {X[1][kap]}, {BR[kap]}, {0 if kap==0 else Ar[1]}")
        mf.append(f"{MF_} {Ai[1]}, {X[1][kap]}, {BI[kap]}, {0 if kap==0 else Ai[1]}")
    def with_side(va,every):
        out=[]
        for i,x in enumerate(va):
            out.append(x)
            if (i+1)%every==0: out.append(None)
        return out
    def inter2(mf,va,ratio):
        vi_=0
        def one():
            nonlocal vi_
            x=va[vi_]; vi_+=1
            if x is None: side_emit(1); return 0
            k(x); return 1
        for m in mf:
            k(m); n=0
            while n<ratio and vi_<len(va): n+=one()
        while vi_<len(va): one()
    SEV=E_('SEV',3)
    va=with_side(cmul_tw(Ur,Ui,Ar[0],Ai[0],T1C[0:4],T1S[0:4])+pack_split(B2[0],Ur,Ui),SEV)
    k(mf[0]); k(mf[1]); k(mf[2])
    inter2(mf[3:],va,3)
    mf=[]
    for t2 in range(2):
        mf.append(f"{MF_} {Fr[t2]}, {CS[t2][0][2:6]}, {B2[0]}, 0")
        mf.append(f"{MF_} {Fi[t2]}, {CS[t2][0][0:4]}, {B2[0]}, 0")
    va=with_side(cmul_tw(Ur,Ui,Ar[1],Ai[1],T1C[4:8],T1S[4:8])+pack_split(B2[1],Ur,Ui),SEV)
    for m in mf[:2]: k(m)
    inter2(mf[2:],va,4)
    for t2 in range(2):
        k(f"{MF_} {Fr[t2]}, {CS[t2][1][2:6]}, {B2[1]}, {Fr[t2]}")
        k(f"{MF_} {Fi[t2]}, {CS[t2][1][0:4]}, {B2[1]}, {Fi[t2]}")
    side_emit(99)
    s.free(row,px,pwd,sxb,swt,swn,sw_,spf,Rd,Rx,*spp)
    stamp('p',5)
    k(f"s_cmp_eq_u32 s2, 0")
    k(f"s_cbranch_scc1 {FS}")
    Wr=[cc4,T1C[0:4]]; Wi=[ss4,T1S[0:4]]
    for t2 in range(2):
        for r in range(4):
            k(f"v_lshlrev_b32 {Wr[t2][r]}, 16, {W[t2][r]}")
            k(f"v_and_b32 {Wi[t2][r]}, 0xffff0000, {W[t2][r]}")
    def filt(t2):
        out=[]
        for r in range(4):
            out.append(f"v_mul_f32 {Ur[r]}, {Fr[t2][r]}, {Wr[t2][r]}")
            out.append(f"v_mul_f32_e64 {Ui[r]}, -{Fr[t2][r]}, {Wi[t2][r]}")
        for r in range(4):
            out.append(f"v_fma_f32 {Ur[r]}, -{Fi[t2][r]}, {Wi[t2][r]}, {Ur[r]}")
            out.append(f"v_fma_f32 {Ui[r]}, -{Fi[t2][r]}, {Wr[t2][r]}, {Ui[r]}")
        return out+pack_split(A3[t2],Ur,Ui)
    for x in filt(0): k(x)
    Vr=Ar; Vi=Ai
    mf3=[]
    for t in range(2):
        mf3.append(f"{MF_} {Vr[t]}, {A3[0]}, {CS[t][0][2:6]}, 0")
        mf3.append(f"{MF_} {Vi[t]}, {A3[0]}, {CS[t][0][0:4]}, 0")
    interleave(k,mf3,filt(1),ratio=4)
    k(f"{FJ}:")
    spec.append(f"{FS}:")
    Zr=[T1C[0:4],T1C[4:8]]; Zi=[T1S[0:4],T1S[4:8]]
    spec+=rev_exchange([Fr,Fi],[Zr,Zi])
    for t2 in range(2):
        Pr,Pi,Qr,Qi=PQ[t2]
        for r in range(4):
            spec.append(f"v_mul_f32 {Ur[r]}, {Fr[t2][r]}, {Pr[r]}")
            spec.append(f"v_mul_f32_e64 {Ui[r]}, -{Fr[t2][r]}, {Pi[r]}")
        for r in range(4):
            spec.append(f"v_fma_f32 {Ur[r]}, -{Fi[t2][r]}, {Pi[r]}, {Ur[r]}")
            spec.append(f"v_fma_f32 {Ui[r]}, -{Fi[t2][r]}, {Pr[r]}, {Ui[r]}")
        for r in range(4):
            spec.append(f"v_fmac_f32 {Ur[r]}, {Zr[t2][r]}, {Qr[r]}")
            spec.append(f"v_fma_f32 {Ui[r]}, -{Zr[t2][r]}, {Qi[r]}, {Ui[r]}")
        for r in range(4):
            spec.append(f"v_fmac_f32 {Ur[r]}, {Zi[t2][r]}, {Qi[r]}")
            spec.append(f"v_fmac_f32 {Ui[r]}, {Zi[t2][r]}, {Qr[r]}")
        spec+=pack_split(A3[t2],Ur,Ui)
    spec+=mf3
    spec.append(f"s_branch {FJ}")
    for t in range(2):
        k(f"{MF_} {Vr[t]}, {A3[1]}, {CS[t][1][2:6]}, {Vr[t]}")
        k(f"{MF_} {Vi[t]}, {A3[1]}, {CS[t][1][0:4]}, {Vi[t]}")
    G=[B2[0],B2[1]]
    for t in range(2):
        for x in cmul_tw(Ur,Ui,Vr[t],Vi[t],T2C[4*t:4*t+4],T2S[4*t:4*t+4]): k(x)
        for r in range(4): k(f"v_cvt_pk_bf16_f32 {G[t][r]}, {Ur[r]}, {Ui[r]}")
        k(f"ds_write_b128 {vlwB}, {G[t]} offset:{t*4096}")
    k("s_waitcnt lgkmcnt(0)")
    k("s_barrier")
    for t in range(2):
        for kap in range(4):
            k(f"ds_read_b128 {X[t][kap]}, {vxrB} offset:{(t*4+kap)*1024}")
    Yr=Fr; Yi=Fi
    for t in range(2):
        for kap in range(4):
            k(f"s_waitcnt lgkmcnt({7-(t*4+kap)})")
            k(f"{MF_} {Yr[t]}, {BR[kap]}, {X[t][kap]}, {0 if kap==0 else Yr[t]}")
            k(f"{MF_} {Yi[t]}, {BI[kap]}, {X[t][kap]}, {0 if kap==0 else Yi[t]}")
    for t in range(2):
        for r in range(4): k(f"v_cvt_pk_bf16_f32 {G[t][r]}, {Yr[t][r]}, -{Yi[t][r]}")
        vm.op(f"buffer_store_dwordx4 {G[t]}, {vtok if t==0 else vo2}, {Rws}, {syb} offen sc1",'st')
    s.free(syb)
    stamp('p',6)
    NORL=k.label('NORL')
    vR=[Ur[0],Ur[1]]; c_,r_,G_,u1=Ui[0],Ui[1],Ui[2],Ui[3]
    k(f"""
v_and_b32 {c_}, 3, {lane}
v_bfe_u32 {r_}, {lane}, 2, 2
v_lshrrev_b32 {G_}, 4, {lane}
v_lshrrev_b32 {tv}, 1, {G_}
v_lshl_add_u32 {tv}, {tv}, 3, {r_}              ; 8h'+r'
v_lshlrev_b32 {vR[0]}, 7, {tv}
v_and_b32 {tv}, 1, {G_}
v_lshlrev_b32 {tv}, 1, {tv}
v_lshrrev_b32 {u1}, 1, {c_}
v_add_u32 {tv}, {tv}, {u1}                       ; 2(G&1) + (c>>1)
v_lshrrev_b32 {u1}, 1, {r_}
v_lshlrev_b32 {u1}, 2, {u1}
v_xor_b32 {tv}, {tv}, {u1}
v_lshl_add_u32 {vR[0]}, {tv}, 4, {vR[0]}
v_and_b32 {tv}, 1, {c_}
v_lshl_add_u32 {vR[0]}, {tv}, 3, {vR[0]}
s_lshl_b32 {t0}, {w}, 11
s_add_u32 {t0}, {t0}, {L_RL}
v_add_u32 {vR[0]}, {t0}, {vR[0]}
v_xor_b32 {vR[1]}, 64, {vR[0]}
s_cmp_lt_u32 s2, 32
s_cbranch_scc1 {NORL}
""")
    idx=max(i for i,t in enumerate(vm.ops) if t=='rl')
    k(f"s_waitcnt vmcnt({len(vm.ops)-1-idx})")
    frl=[Ar[0],Ar[1]]
    for nu in range(2):
        for e2 in range(2):
            k(f"ds_read_b64_tr_b16 {frl[nu][2*e2:2*e2+2]}, {vR[nu]} offset:{e2*512}")
    k("s_waitcnt lgkmcnt(0)")
    k(f"buffer_store_dwordx4 {frl[0]}, {vtok}, {Rws}, {sd_} offen sc1")
    k(f"buffer_store_dwordx4 {frl[1]}, {vtok}, {Rws}, {sd_} offen offset:1024 sc1")
    k(f"{NORL}:")
    s.free(sd_)
    def publishB():
        sfb=s()
        k(f"""
s_lshr_b32 {sfb}, s2, 3
s_lshl_b32 {sfb}, {sfb}, 7
s_and_b32 {t0}, s2, 7
s_lshl_b32 {t0}, {t0}, 2
s_add_u32 {sfb}, {sfb}, {t0}
s_add_u32 {sfb}, {sfb}, {WS_FLB:#x}
v_mov_b32 {one}, 1
""")
        vm.drain()
        PB=k.label('PUBB')
        k(f"""
s_barrier
s_cmp_lg_u32 {w}, 0
s_cbranch_scc1 {PB}
s_mov_b64 exec, 1
buffer_store_dword {one}, {zero}, {Rws}, {sfb} offen sc1
s_mov_b64 exec, -1
{PB}:""")
        vm.ops.append('flag')
        s.free(sfb)
        stamp('p',7)
    if not PBL: publishB()
    for r in keepB: v.free(r)
    vy=v()
    sy0,sy1=s(),s()
    k(f"""
v_and_b32 {tv}, 1, v0
v_lshrrev_b32 {vy}, 1, v0
v_lshlrev_b32 {vy}, 13, {vy}
v_lshl_add_u32 {vy}, {tv}, 4, {vy}       ; k*8192 + half*16
s_lshl_b32 {sy0}, {beta}, 5
s_add_u32 {sy0}, {sy0}, {WS_Y:#x}
s_add_u32 {sy1}, {sy0}, {128*8192:#x}
""")
    Rw=s(4)
    mat,dh,sm0,schunk=s(),s(),s(),s()
    k(f"""
s_and_b32 {mat}, {w}, 1
s_lshr_b32 {dh}, {w}, 1
s_mul_i32 {t0}, {dh}, {32*3584}
s_mul_i32 {t1}, {fb}, 224
s_add_u32 {t0}, {t0}, {t1}
s_mul_i32 {sm0}, {mat}, {MAT}
s_mul_i32 {t1}, {dh}, 7168
s_add_u32 {sm0}, {sm0}, {t1}
s_mov_b32 {schunk}, 0
""")
    s.free(dh)
    p,rw=v(),v()
    cdiv=s(); k(f"s_mov_b32 {cdiv}, 4682")
    for n in range(7):
        k(f"v_add_u32 {p}, {64*n}, {lane}")
        k(f"v_mul_u32_u24 {rw}, {cdiv}, {p}")
        k(f"v_lshrrev_b32 {rw}, 16, {rw}")
        k(f"v_mul_u32_u24 {tv}, 14, {rw}")
        k(f"v_sub_u32 {p}, {p}, {tv}")
        k(f"v_mul_u32_u24 {rw}, 3584, {rw}")
        k(f"v_lshl_add_u32 {vd[n]}, {p}, 4, {rw}")
        k(f"v_add_u32 {vd[n]}, {t0}, {vd[n]}")
        if n&3: k(f"v_subrev_u32 {vd[n]}, {(n&3)*1024}, {vd[n]}")
    v.free(p,rw); s.free(cdiv)
    k(f"""
s_cmp_eq_u32 {mat}, 0
s_cselect_b32 {Rw[0]}, {pgu[0]}, {pgu[2]}
s_cselect_b32 {Rw[1]}, {pgu[1]}, {pgu[3]}
s_mov_b32 {Rw[2]}, {512*3584}
s_mov_b32 {Rw[3]}, 0x00020000
""")
    s.free(mat,pgu)
    def wgroup(c):
        out=[]; slot=c%NB
        for n in range(7):
            pre=""
            if n==0: pre=f"s_add_u32 m0, {sm0}, {slot*CHUNK}\ns_nop 0\n"
            if n==4: pre=f"s_add_u32 m0, {sm0}, {slot*CHUNK+4096}\ns_nop 0\n"
            post=f"\ns_add_u32 {schunk}, {schunk}, {64*3584}" if n==6 else ""
            out.append((pre+f"buffer_load_dwordx4 {vd[n]}, {Rw}, {schunk} offen offset:{(n&3)*1024} lds"+post, f"W{c}"))
        return out
    def window_dma():
        for c in range(WE):
            for x,tg in wgroup(c): vm.op(x,tg)
        stamp('a',1)
    if not PBL: window_dma()
    Pm=[v(8,align=4),v(8,align=4)]; vo_,vo2_=v(),v(); sone=s()
    k(f"""
v_bfe_u32 {tv}, v0, 5, 1
v_lshlrev_b32 {vo_}, 10, {tv}                ; T*1024
v_bfe_u32 {tv}, v0, 1, 4
v_lshl_add_u32 {vo_}, {tv}, 4, {vo_}          ; + i*16
v_and_b32 {tv}, 1, v0
v_lshl_add_u32 {vo_}, {tv}, 9, {vo_}          ; + 2(u&1)*256
v_add_u32 {vo2_}, 256, {vo_}
v_lshlrev_b32 {tv}, 5, {lane}
s_cmp_eq_u32 {w}, 3
s_cselect_b64 vcc, -1, 0
v_cndmask_b32 {vo_}, {vo_}, {tv}, vcc
v_add_u32 {tv}, 16, {tv}
v_cndmask_b32 {vo2_}, {vo2_}, {tv}, vcc
s_lshl_b32 {t0}, {w}, 11
s_add_u32 {t0}, {t0}, {L_MOD}
v_add_u32 {vo_}, {t0}, {vo_}
v_add_u32 {vo2_}, {t0}, {vo2_}
s_cmp_eq_u32 {w}, 2
s_cselect_b32 {sone}, 1.0, 0
""")
    vm.wait('pp')
    for q in range(2):
        for j in range(8): k(f"v_accvgpr_read_b32 {Pm[q][j]}, {PP[8*q+j]}")
    for j in range(8): k(f"v_add_f32 {Pm[0][j]}, {Pm[0][j]}, {Pm[1][j]}")
    for rnd in range(2):
        for p in range(4):
            k(f"v_cvt_pk_bf16_f32 {Pm[1][p]}, {Pm[0][2*p]}, {Pm[0][2*p+1]}")
        for p in range(4):
            k(f"v_lshlrev_b32 {Pm[0][2*p]}, 16, {Pm[1][p]}")
            k(f"v_and_b32 {Pm[0][2*p+1]}, 0xffff0000, {Pm[1][p]}")
        if rnd==0:
            for j in range(8): k(f"v_add_f32 {Pm[0][j]}, {sone}, {Pm[0][j]}")
    k(f"ds_write_b128 {vo_}, {Pm[0][0:4]}")
    k(f"ds_write_b128 {vo2_}, {Pm[0][4:8]}")
    v.free(Pm[0],Pm[1],vo_,vo2_); s.free(sone)
    a.free(XA,PP,PFD)
    keepC=[]
    def cv(n=1,align=None):
        r=v(n,align); keepC.append(r); return r
    fi,fg,f,arg,c0,s0,c1,s1,mi=cv(),cv(),cv(),cv(),cv(),cv(),cv(),cv(),cv()
    k(f"""
v_cvt_f32_u32 {fi}, {vi}
v_cvt_f32_u32 {fg}, {vg}
v_and_b32 {tv}, 1, {vi}
v_mul_u32_u24 {mi}, 0x8000, {tv}
v_lshl_or_b32 {mi}, {mi}, 16, {mi}
""")
    BAr=cv(2); BAi=cv(2)
    k(f"v_mul_f32 {f}, 0x3d800000, {fi}")
    k(f"v_add_f32 {arg}, {fg}, {fg}")
    k(f"v_mul_f32 {arg}, {arg}, {f}")
    for b in range(2):
        k(f"v_cos_f32 {c0}, {arg}")
        k(f"v_sin_f32 {s0}, {arg}")
        if b==0: k(f"v_add_f32 {arg}, {arg}, {f}")
        k(f"v_cvt_pk_bf16_f32 {BAr[b]}, {c0}, -{s0}")
        k(f"v_cvt_pk_bf16_f32 {BAi[b]}, {s0}, {c0}")
    TC=cv(8,align=4); TS=cv(8,align=4); f13,g4=cv(),cv()
    k(f"v_mul_f32 {g4}, 4.0, {fg}")
    k(f"v_mul_f32 {f}, 0x3b000000, {fi}")
    k(f"v_mul_f32 {f13}, 0x41500000, {f}")
    k(f"v_mul_f32 {arg}, {g4}, {f}")
    for u in range(2):
        for r in range(4):
            k(f"v_cos_f32 {TC[4*u+r]}, {arg}")
            k(f"v_sin_f32 {TS[4*u+r]}, {arg}")
            if not(u==1 and r==3): k(f"v_add_f32 {arg}, {arg}, {f if r<3 else f13}")
    yv=[v(4,align=4),v(4,align=4)]; ny=v(2)
    BB=[[cv(4,align=4) for u in range(2)] for t in range(2)]
    cc4=cv(4,align=2); ss4=cv(4,align=2)
    k(f"v_mul_f32 {f}, 0x3d000000, {fi}")
    k(f"v_mul_f32 {arg}, {g4}, {f}")
    for j in range(4):
        k(f"v_cos_f32 {cc4[j]}, {arg}")
        k(f"v_sin_f32 {ss4[j]}, {arg}")
        if j<3: k(f"v_add_f32 {arg}, {arg}, {f}")
    b00=BB[0][0]
    k(f"v_cvt_pk_bf16_f32 {b00[0]}, {cc4[0]}, {cc4[1]}")
    k(f"v_cvt_pk_bf16_f32 {b00[1]}, {cc4[2]}, {cc4[3]}")
    k(f"v_cvt_pk_bf16_f32 {b00[2]}, -{ss4[0]}, -{ss4[1]}")
    k(f"v_cvt_pk_bf16_f32 {b00[3]}, -{ss4[2]}, -{ss4[3]}")
    for j in range(4): k(f"v_xor_b32 {BB[0][1][j]}, {mi}, {b00[j]}")
    for j in range(4): k(f"v_xor_b32 {BB[1][0][j]}, 0x80000000, {b00[j]}")
    for j in range(4): k(f"v_xor_b32 {BB[1][1][j]}, 0x80000000, {BB[0][1][j]}")
    cny=cv()
    k(f"""
v_lshlrev_b32 {tv}, 31, {vi}
v_or_b32 {tv}, 1.0, {tv}
v_cmp_eq_u32 vcc, 0, {vg}
v_cndmask_b32 {cny}, 0, {tv}, vcc
""")
    vlw,vlr,vl2w,vl2r,vst,vxs=cv(),cv(),cv(),cv(),cv(),cv()
    sh2,sx1=s(),s()
    k(f"""
v_and_b32 {tv}, 1, v0
v_mul_u32_u24 {vlw}, 4160, {tv}
v_lshrrev_b32 {tv}, 1, v0
v_lshl_add_u32 {vlw}, {tv}, 2, {vlw}
v_add_u32 {vlw}, {L_Y}, {vlw}              ; half*4160 + k*4
s_mul_i32 {t0}, {w}, 1040
s_add_u32 {t0}, {t0}, {L_Y}
v_lshlrev_b32 {vlr}, 8, {vg}
v_lshl_add_u32 {vlr}, {vi}, 2, {vlr}
v_add_u32 {vlr}, {t0}, {vlr}               ; w*1040 + (i+64g)*4
s_lshl_b32 {t0}, {w}, 4
s_add_u32 {t0}, {t0}, {L_H}
""")
    if not G16:
        k(f"""
v_mul_u32_u24 {vl2w}, 272, {vi}
v_lshrrev_b32 {tv}, 1, {vg}
v_lshl_add_u32 {vl2w}, {tv}, 7, {vl2w}
v_and_b32 {tv}, 1, {vg}
v_lshl_add_u32 {vl2w}, {tv}, 3, {vl2w}
v_add_u32 {vl2w}, {t0}, {vl2w}             ; i*272 + (g>>1)*128 + w*16 + (g&1)*8   (+ t*16*272 + j*64)
v_lshrrev_b32 {tv}, 4, v0                  ; p>>1
v_mul_u32_u24 {vl2r}, 272, {tv}
v_and_b32 {tv}, 15, v0                     ; (p&1)*8 + row
v_lshl_add_u32 {vl2r}, {tv}, 4, {vl2r}
v_add_u32 {vl2r}, {L_H}, {vl2r}
v_lshrrev_b32 {tv}, 3, v0                  ; p
v_lshlrev_b32 {vst}, 9, {tv}
v_and_b32 {tv}, 7, v0
v_lshl_add_u32 {vst}, {tv}, 4, {vst}       ; p*512 + row*16
s_lshr_b32 {sh2}, {beta}, 2
s_lshl_b32 {sh2}, {sh2}, 15
s_and_b32 {t1}, {beta}, 3
s_lshl_b32 {t1}, {t1}, 7
s_add_u32 {sh2}, {sh2}, {t1}
s_add_u32 {sh2}, {sh2}, {WS_H2F:#x}
""")
    else:
        k(f"""
v_lshrrev_b32 {tv}, 1, {vi}
v_mul_u32_u24 {vl2w}, 528, {tv}
v_lshl_add_u32 {vl2w}, {vg}, 7, {vl2w}
v_and_b32 {tv}, 1, {vi}
v_lshl_add_u32 {vl2w}, {tv}, 3, {vl2w}
v_add_u32 {vl2w}, {t0}, {vl2w}             ; (i>>1)*528 + g*128 + w*16 + (i&1)*8   (+ t*8*528 + j*64)
v_lshrrev_b32 {tv}, 5, v0
v_mul_u32_u24 {vl2r}, 528, {tv}
v_lshlrev_b32 {vst}, 10, {tv}
v_and_b32 {tv}, 31, v0
v_lshl_add_u32 {vl2r}, {tv}, 4, {vl2r}
v_add_u32 {vl2r}, {L_H}, {vl2r}
v_bfe_u32 {tv}, v0, 3, 2
v_lshl_add_u32 {vst}, {tv}, 8, {vst}
v_and_b32 {tv}, 7, v0
v_lshl_add_u32 {vst}, {tv}, 4, {vst}
s_lshr_b32 {sh2}, {beta}, 1
s_lshl_b32 {sh2}, {sh2}, 14
s_and_b32 {t1}, {beta}, 1
s_lshl_b32 {t1}, {t1}, 7
s_add_u32 {sh2}, {sh2}, {t1}
s_add_u32 {sh2}, {sh2}, {WS_H2F:#x}
""")
    k(f"""
s_lshl_b32 {sx1}, {beta}, 3
s_add_u32 {sx1}, {sx1}, {w}
s_lshl_b32 {sx1}, {sx1}, 10
s_add_u32 {sx1}, {sx1}, {WS_X1R:#x}
s_lshl_b32 {t0}, {w}, 11
s_add_u32 {t0}, {t0}, {L_X}
v_add_u32 {vxs}, {t0}, {vxo}
""")
    vxsr=cv(); k(f"v_add_u32 {vxsr}, {t0}, {vtok}")
    vmr=cv(); k(f"v_add_u32 {vmr}, {L_MOD}, {vtok}")
    vny=cv()
    k(f"s_mul_i32 {t0}, {w}, 1040")
    k(f"s_add_u32 {t0}, {t0}, {L_Y}")
    k(f"v_mov_b32 {vny}, {t0}")
    tb5,nb,sw5=s(),s(),s()
    W1=a.at(128,128); W2=Reg('v',192,64); tok=Reg('a',0,128)
    Wf=[W1[4*q:4*q+4] for q in range(32)]+[W2[4*q:4*q+4] for q in range(16)]+[tok[4*q:4*q+4] for q in range(8)]
    w5=[]
    def k5_setup():
        if MAP==0:
            k(f"""
s_and_b32 {t0}, s2, 7
s_lshr_b32 {t1}, s2, 3
s_lshl_b32 {tb5}, {t0}, 2
s_and_b32 {t0}, {t1}, 3
s_add_u32 {tb5}, {tb5}, {t0}
s_lshr_b32 {nb}, {t1}, 2
""")
        else:
            k(f"""
s_lshl_b32 {tb5}, {tb}, 1
s_and_b32 {t0}, {fb}, 1
s_add_u32 {tb5}, {tb5}, {t0}
s_lshr_b32 {nb}, {fb}, 1
""")
        k(f"""
s_mul_i32 {sw5}, {nb}, {112*2048}
s_mul_i32 {t0}, {w}, {28*2048}
s_add_u32 {sw5}, {sw5}, {t0}
s_add_u32 {sw5}, {sw5}, {WS_WDF:#x}
""")
        for q in range(56):
            post=f"\ns_add_u32 {sw5}, {sw5}, 4096" if q&3==3 else ""
            w5.append((f"buffer_load_dwordx4 {Wf[q]}, {vtok}, {Rws}, {sw5} offen offset:{(q&3)*1024} sc1"+post, f"V{q}"))
    if NV: k5_setup()
    stamp('a',2)
    if PBL:
        publishB()
        window_dma()
    PL,PD,PX=k.label('POLLY'),k.label('POLLYD'),k.label('POLLYX')
    pf4=yv[0]; cnt=s()
    k(f"""
s_cmp_lg_u32 {w}, 0
s_cbranch_scc1 {PX}
v_lshrrev_b32 {vfl}, 1, {lane}
v_lshlrev_b32 {vfl}, 7, {vfl}
v_and_b32 {tv}, 1, {lane}
v_lshl_add_u32 {vfl}, {tv}, 4, {vfl}
s_mov_b32 {t1}, {WS_FLB:#x}
s_mov_b32 {cnt}, 0
{PL}:
buffer_load_dwordx4 {pf4}, {vfl}, {Rws}, {t1} offen sc1
s_add_u32 {cnt}, {cnt}, 1
s_waitcnt vmcnt(0)
v_min3_u32 {vf}, {pf4[0]}, {pf4[1]}, {pf4[2]}
v_min_u32 {vf}, {vf}, {pf4[3]}
v_cmp_eq_u32 vcc, 0, {vf}
s_cbranch_vccz {PD}
s_cmp_lt_u32 {cnt}, {SPIN:#x}
s_cbranch_scc1 {PL}
{PD}:
{PX}:
s_waitcnt lgkmcnt(0)
s_barrier
""")
    stamp('a',3)
    vm.op(f"buffer_load_dwordx4 {yv[0]}, {vy}, {Rws}, {sy0} offen sc1",'y')
    vm.op(f"buffer_load_dwordx4 {yv[1]}, {vy}, {Rws}, {sy1} offen sc1",'y')
    s.free(sy0,sy1)
    for c in range(WE,WE+WY):
        for x,tg in wgroup(c): vm.op(x,tg)
    bgq=[w5.pop(0) for _ in range(NV)]
    bgc=[0]
    def bghook():
        bgc[0]+=1
        if bgq and bgc[0]%BGN==0:
            x,tg=bgq.pop(0); vm.op(x,tg)
    def bgflush():
        k.hook=None
        while bgq: x,tg=bgq.pop(0); vm.op(x,tg)
    vm.wait('y')
    stamp('a',4)
    if NV: k.hook=bghook
    for jj in range(2):
        for e in range(4): k(f"ds_write_b32 {vlw}, {yv[jj][e]} offset:{1040*e+512*jj}")
    k("s_waitcnt lgkmcnt(0)")
    k("s_barrier")
    Ad=[[cv(2) for u in range(2)] for j in range(2)]
    for j in range(2):
        for u in range(2):
            for b in range(2):
                k(f"ds_read_b32 {Ad[j][u][b]}, {vlr} offset:{4160*j+64*u+128*b}")
    for j in range(2): k(f"ds_read_b32 {ny[j]}, {vny} offset:{4160*j}")
    ga=[cv(4,align=4),cv(4,align=4)]; sb=[cv(4,align=4),cv(4,align=4)]; cb=[cv(4,align=4),cv(4,align=4)]
    for t in range(2): k(f"ds_read_b128 {ga[t]}, {vmr} offset:{1024*t}")
    Dr=[[cv(4,align=4),cv(4,align=4)] for j in range(2)]; Di=[[cv(4,align=4),cv(4,align=4)] for j in range(2)]
    nrd=12
    for j in range(2):
        for u in range(2):
            k(f"s_waitcnt lgkmcnt({nrd-2*(2*j+u+1)})")
            k(f"{MF16} {Dr[j][u]}, {Ad[j][u]}, {BAr}, 0")
            k(f"{MF16} {Di[j][u]}, {Ad[j][u]}, {BAi}, 0")
    for t in range(2): k(f"ds_read_b128 {sb[t]}, {vmr} offset:{2048+1024*t}")
    for t in range(2): k(f"ds_read_b128 {cb[t]}, {vmr} offset:{4096+1024*t}")
    k("s_waitcnt lgkmcnt(4)")
    for j in range(2): k(f"v_and_b32 {ny[j]}, 0xffff0000, {ny[j]}")
    Ur=[cv(4,align=4),cv(4,align=4)]; Ui=[cv(4,align=4),cv(4,align=4)]
    AB=[[cv(4,align=4),cv(4,align=4)] for j in range(2)]
    Yo=[[cv(4,align=4),cv(4,align=4)] for j in range(2)]
    for j in range(2): k(f"v_fmac_f32 {Dr[j][0][0]}, {cny}, {ny[j]}")
    for u in range(2):
        for j in range(2):
            for r in range(4):
                k(f"v_mul_f32 {Ur[j][r]}, {Dr[j][u][r]}, {TC[4*u+r]}")
                k(f"v_mul_f32 {Ui[j][r]}, {Di[j][u][r]}, {TC[4*u+r]}")
            for r in range(4):
                k(f"v_fma_f32 {Ur[j][r]}, -{Di[j][u][r]}, {TS[4*u+r]}, {Ur[j][r]}")
                k(f"v_fmac_f32 {Ui[j][r]}, {Dr[j][u][r]}, {TS[4*u+r]}")
            k(f"v_cvt_pk_bf16_f32 {AB[j][u][0]}, {Ur[j][0]}, {Ur[j][1]}")
            k(f"v_cvt_pk_bf16_f32 {AB[j][u][1]}, {Ur[j][2]}, {Ur[j][3]}")
            k(f"v_cvt_pk_bf16_f32 {AB[j][u][2]}, {Ui[j][0]}, {Ui[j][1]}")
            k(f"v_cvt_pk_bf16_f32 {AB[j][u][3]}, {Ui[j][2]}, {Ui[j][3]}")
            for t in range(2):
                k(f"{MF16x32} {Yo[j][t]}, {AB[j][u]}, {BB[t][u]}, {0 if u==0 else Yo[j][t]}")
    stamp('a',5)
    x1=[cv(8,align=4),cv(8,align=4)]
    def unpack(j):
        for t in range(2):
            k(f"v_lshlrev_b32 {x1[j][4*t+0]}, 16, {xr[j][t][0]}")
            k(f"v_and_b32 {x1[j][4*t+1]}, 0xffff0000, {xr[j][t][0]}")
            k(f"v_lshlrev_b32 {x1[j][4*t+2]}, 16, {xr[j][t][1]}")
            k(f"v_and_b32 {x1[j][4*t+3]}, 0xffff0000, {xr[j][t][1]}")
    for j in range(2): unpack(j)
    k("s_waitcnt lgkmcnt(0)")
    for j in range(2):
        for t in range(2):
            for r in range(4): k(f"v_fmac_f32 {x1[j][4*t+r]}, {ga[t][r]}, {Yo[j][t][r]}")
        for t in range(2):
            k(f"v_cvt_pk_bf16_f32 {xr[j][t][0]}, {x1[j][4*t+0]}, {x1[j][4*t+1]}")
            k(f"v_cvt_pk_bf16_f32 {xr[j][t][1]}, {x1[j][4*t+2]}, {x1[j][4*t+3]}")
        for t in range(2): k(f"ds_write_b64 {vxs}, {xr[j][t]} offset:{1024*j+512*t}")
    for j in range(2): unpack(j)
    k("s_waitcnt lgkmcnt(0)")
    for j in range(2): k(f"ds_read_b128 {yv[j]}, {vxsr} offset:{1024*j}")
    sm=[cv(),cv()]; tt=[cv(),cv()]; ca=[c0,c1]; cb_=[s0,s1]
    def both(fn):
        for j in range(2): fn(j)
    for j in range(2):
        X=x1[j]
        k(f"v_add_f32 {sm[j]}, {X[0]}, {X[1]}")
        k(f"v_add_f32 {tt[j]}, {X[2]}, {X[3]}")
        k(f"v_add_f32 {ca[j]}, {X[4]}, {X[5]}")
        k(f"v_add_f32 {cb_[j]}, {X[6]}, {X[7]}")
    for j in range(2):
        k(f"v_add_f32 {sm[j]}, {sm[j]}, {tt[j]}")
        k(f"v_add_f32 {ca[j]}, {ca[j]}, {cb_[j]}")
    for j in range(2): k(f"v_add_f32 {sm[j]}, {sm[j]}, {ca[j]}")
    def allreduce2():
        for r in (8,4,2,1):
            for j in range(2): k(f"v_add_f32_dpp {sm[j]}, {sm[j]}, {sm[j]} row_ror:{r} row_mask:0xf bank_mask:0xf")
        for sw in ('16','32'):
            for j in range(2): k(f"v_mov_b32 {tt[j]}, {sm[j]}")
            for j in range(2): k(f"v_permlane{sw}_swap_b32 {sm[j]}, {tt[j]}")
            for j in range(2): k(f"v_add_f32 {sm[j]}, {sm[j]}, {tt[j]}")
    allreduce2()
    k("s_waitcnt lgkmcnt(0)")
    for j in range(2):
        pass
    lbq=[]
    lbr=[Dr[0][0],Dr[0][1],Dr[1][0],Dr[1][1]]
    def x1store():
        vm.op(f"buffer_store_dwordx4 {yv[0]}, {vtok}, {Rws}, {sx1} offen {SM}",'sx' if XL else 'st')
        if LOCAL and LB: vm.op(f"buffer_load_dwordx4 {lbr[0]}, {vtok}, {Rws}, {sx1} offen {LBM}",'st')
        k(f"s_add_u32 {sx1}, {sx1}, 4096")
        vm.op(f"buffer_store_dwordx4 {yv[1]}, {vtok}, {Rws}, {sx1} offen {SM}",'sx' if XL else 'st')
        if LOCAL and LB: vm.op(f"buffer_load_dwordx4 {lbr[1]}, {vtok}, {Rws}, {sx1} offen {LBM}",'st')
        s.free(sx1)
    if BGE==0: bgflush()
    if XL==0: x1store()
    for j in range(2): k(f"v_mul_f32 {sm[j]}, 0xbb000000, {sm[j]}")
    for j in range(2):
        for q in range(8): k(f"v_add_f32 {x1[j][q]}, {x1[j][q]}, {sm[j]}")
    for j in range(2):
        k(f"v_mul_f32 {sm[j]}, {x1[j][0]}, {x1[j][0]}")
        k(f"v_mul_f32 {ca[j]}, {x1[j][1]}, {x1[j][1]}")
    for q in range(2,8,2):
        for j in range(2):
            k(f"v_fmac_f32 {sm[j]}, {x1[j][q]}, {x1[j][q]}")
            k(f"v_fmac_f32 {ca[j]}, {x1[j][q+1]}, {x1[j][q+1]}")
    for j in range(2): k(f"v_add_f32 {sm[j]}, {sm[j]}, {ca[j]}")
    allreduce2()
    for j in range(2):
        k(f"v_mov_b32 {tt[j]}, 0x3727c5ac")
        k(f"v_fmac_f32 {tt[j]}, 0x3b000000, {sm[j]}")
    for j in range(2): k(f"v_rsq_f32 {tt[j]}, {tt[j]}")
    for j in range(2):
        for q in range(8): k(f"v_mul_f32 {x1[j][q]}, {x1[j][q]}, {tt[j]}")
    for j in range(2):
        for t in range(2):
            for r in range(4): k(f"v_fma_f32 {x1[j][4*t+r]}, {x1[j][4*t+r]}, {cb[t][r]}, {sb[t][r]}")
        for t in range(2):
            k(f"v_cvt_pk_bf16_f32 {xr[j][t][0]}, {x1[j][4*t+0]}, {x1[j][4*t+1]}")
            k(f"v_cvt_pk_bf16_f32 {xr[j][t][1]}, {x1[j][4*t+2]}, {x1[j][4*t+3]}")
            k(f"ds_write_b64 {vl2w}, {xr[j][t]} offset:{(t*8*528 if G16 else t*16*272)+64*j}")
    k("s_waitcnt lgkmcnt(0)")
    k("s_barrier")
    bgflush()
    hv=[x1[0][0:4],x1[1][0:4]]
    for jj in range(2): k(f"ds_read_b128 {hv[jj]}, {vl2r} offset:{jj*8*528 if G16 else jj*16*272}")
    k("s_waitcnt lgkmcnt(1)")
    if LOCAL: STM_=SM
    else: STM_=STM
    vm.op(f"buffer_store_dwordx4 {hv[0]}, {vst}, {Rws}, {sh2} offen {STM_}",'st')
    if LOCAL and LB: vm.op(f"buffer_load_dwordx4 {lbr[2]}, {vst}, {Rws}, {sh2} offen {LBM}",'st')
    k(f"s_add_u32 {sh2}, {sh2}, {8*1024 if G16 else 32*512}")
    k("s_waitcnt lgkmcnt(0)")
    vm.op(f"buffer_store_dwordx4 {hv[1]}, {vst}, {Rws}, {sh2} offen {STM_}",'st')
    if LOCAL and LB: vm.op(f"buffer_load_dwordx4 {lbr[3]}, {vst}, {Rws}, {sh2} offen {LBM}",'st')
    s.free(sh2)
    if XL==1: x1store()
    if not FF:
        for c in range(WE+WY,4):
            for x,tg in wgroup(c): vm.op(x,tg)
    stamp('a',6)
    sfl=s()
    k(f"s_lshl_b32 {sfl}, {beta}, 7")
    k(f"s_add_u32 {sfl}, {sfl}, {WS_FLG:#x}")
    k(f"v_mov_b32 {one}, 1")
    def publish(lab):
        if PW: vm.wait('st')
        else: vm.drain()
        k("s_barrier")
        k(f"s_cmp_lg_u32 {w}, 0")
        k(f"s_cbranch_scc1 {lab}")
        k("s_mov_b64 exec, 1")
        k(f"buffer_store_dword {one}, {zero}, {Rws}, {sfl} offen {SM}")
        k("s_mov_b64 exec, -1")
        k(f"{lab}:")
        vm.ops.append('flag')
    publish(k.label('PUB'))
    stamp('a',7)
    if XL==2: x1store()
    if FF:
        for c in range(WE+WY,4):
            for x,tg in wgroup(c): vm.op(x,tg)
    for r in keepC: v.free(r)
    v.free(vy,vxo,ny,vi,vg,*yv)
    for j in range(2): v.free(*xr[j])
    acc=[v.at(24+16*q,16) for q in range(7)]
    fr=[[v.at(136+28*b+4*q,4) for q in range(7)] for b in range(2)]
    v.at(192,64)
    v.free(resv)
    a.at(0,128)
    if not NV: k5_setup()
    for x,tg in wgroup(4): vm.op(x,tg)
    for _ in range(N1): x,tg=w5.pop(0); vm.op(x,tg)
    spo=s()
    def poll(lab):
        P,Dn=k.label(lab),k.label(lab+'D')
        k(f"""
s_mov_b32 {cnt}, 0
s_mov_b64 exec, 15
{P}:
buffer_load_dword {vf}, {vfl}, {Rws}, {spo} offen {PLM}
s_add_u32 {cnt}, {cnt}, 1
s_waitcnt vmcnt(0)
v_cmp_eq_u32 vcc, 0, {vf}
s_cbranch_vccz {Dn}
s_cmp_lt_u32 {cnt}, {SPIN:#x}
s_cbranch_scc1 {P}
{Dn}:
s_mov_b64 exec, -1
""")
        vm.ops=[]
    stok,tt4=s(),s()
    k(f"""
v_lshlrev_b32 {vfl}, 7, {lane}
s_lshl_b32 {spo}, {tb}, 4
s_lshl_b32 {t0}, {w}, 2
s_add_u32 {spo}, {spo}, {t0}
s_lshl_b32 {spo}, {spo}, 7
s_add_u32 {spo}, {spo}, {WS_FLG:#x}
s_lshl_b32 {tt4}, {tb}, 2
s_add_u32 {tt4}, {tt4}, {w}
s_lshl_b32 {stok}, {tt4}, 15
s_add_u32 {stok}, {stok}, {WS_H2F:#x}
""")
    if G16:
        stokB=s(); k(f"s_add_u32 {stokB}, {stok}, 16384")
    c_,r_,G_=v(),v(),v()
    if G16:
        k(f"""
v_lshrrev_b32 {r_}, 2, {lane}              ; 4q + r
v_mul_u32_u24 {vA[0]}, 224, {r_}
v_and_b32 {c_}, 3, {lane}
v_lshl_add_u32 {vA[0]}, {c_}, 3, {vA[0]}
""")
    else:
        k(f"""
v_and_b32 {c_}, 3, {lane}
v_bfe_u32 {r_}, {lane}, 2, 2
v_lshrrev_b32 {G_}, 4, {lane}
v_lshrrev_b32 {tv}, 1, {c_}
v_mul_u32_u24 {vA[0]}, {MAT}, {tv}
v_lshrrev_b32 {tv}, 1, {G_}
v_lshl_add_u32 {tv}, {tv}, 3, {r_}
v_mul_u32_u24 {tv}, 224, {tv}
v_add_u32 {vA[0]}, {vA[0]}, {tv}
v_and_b32 {tv}, 1, {c_}
v_lshl_add_u32 {vA[0]}, {tv}, 4, {vA[0]}
v_and_b32 {tv}, 1, {G_}
v_lshl_add_u32 {vA[0]}, {tv}, 3, {vA[0]}
""")
    for b in range(1,NB): k(f"v_add_u32 {vA[b]}, {b*CHUNK}, {vA[0]}")
    v.free(c_,r_,G_)
    def reads(c,kap,buf):
        out=[]
        for t7 in range(7):
            for e in range(2):
                off=((kap&1)*MAT+(kap>>1)*7168+e*3584+t7*32) if G16 else (kap*3584+e*896+t7*32)
                out.append(f"ds_read_b64_tr_b16 {fr[buf][t7][2*e:2*e+2]}, {vA[c%NB]} offset:{off}")
        return out
    sst=s()
    k(f"""
s_mul_i32 {sst}, {tt4}, 112
s_mul_i32 {t0}, {fb}, 7
s_add_u32 {sst}, {sst}, {t0}
s_lshl_b32 {sst}, {sst}, 10
s_add_u32 {sst}, {sst}, {WS_HHF:#x}
""")
    for x in reads(0,0,0): k(x)
    if G16 and RING:
        for x in reads(0,1,1): k(x)
    poll('POLLA')
    stamp('a',8); stamp('b',1)
    tl=[]
    if G16:
        for ks in range(16):
            for tt in range(2):
                sb_=stok if tt==0 else stokB
                post=f"\ns_add_u32 {sb_}, {sb_}, 4096" if ks&3==3 else ""
                tl.append((f"buffer_load_dwordx4 {tok[8*ks+4*tt:8*ks+4*tt+4]}, {vtok}, {Rws}, {sb_} offen offset:{(ks&3)*1024} {LDM}"+post, f"T{ks}_{tt}"))
    else:
      for c in range(8):
        for kap in range(4):
            post=f"\ns_add_u32 {stok}, {stok}, 4096" if kap==3 else ""
            tl.append((f"buffer_load_dwordx4 {tok[16*c+4*kap:16*c+4*kap+4]}, {vtok}, {Rws}, {stok} offen offset:{kap*1024} {LDM}"+post, f"T{c}{kap}"))
    for _ in range(TUP): x,tg=tl.pop(0); vm.op(x,tg)
    stamp('b',2)
    pend=[]; step=0
    nsteps=32
    w5late=w5[len(w5)-N2:] if N2 else []
    w5=w5[:len(w5)-N2]
    left=len(w5)
    sched={}
    first=V0; lastst=V1
    for q in range(left):
        st=first+(q*(lastst-first+1))//left
        sched[st]=sched.get(st,0)+1
    for c in range(8):
        for kap in range(4):
            buf=step&1
            last=(c==7 and kap==3)
            nc,nk=(c,kap+1) if kap<3 else (c+1,0)
            rd=[] if last else reads(nc,nk,buf^1)
            if G16 and RING:
                s2_=step+2
                rd=[] if s2_>=32 else reads(s2_>>2,s2_&3,buf)
            if kap==0 and c==1: stamp('b',3)
            if kap==0 and c==3: stamp('b',4)
            if kap==0 and c==5: stamp('b',5)
            ks=2*c+(kap>>1)
            ttags=(f"T{ks}_0",f"T{ks}_1") if G16 else (f"T{c}{kap}",)
            if G16 and RING:
                lg=0 if last else 14
                if kap==2 and c<7:
                    vm.wait(*ttags, f"W{c+1}", lgkm=lg)
                    k("s_barrier")
                    if c>=1 and c-1+NB<8: pend=pend+wgroup(c-1+NB)
                else: vm.wait(*ttags, lgkm=lg)
            elif kap==3 and c<7:
                k("s_waitcnt lgkmcnt(0)")
                vm.wait(*ttags, f"W{c+1}")
                k("s_barrier")
                if c+NB<8: pend=pend+wgroup(c+NB)
            else:
                k(f"s_waitcnt lgkmcnt({8 if not(G16 and RPG==2) else W0})")
                vm.wait(*ttags)
            extra=[]
            for _ in range(TPS):
                if tl: extra.append(tl.pop(0))
            for _ in range(sched.get(step,0)):
                x,tg=w5.pop(0)
                q=int(tg[1:])
                assert q<48 or step>=8, (q,step)
                extra.append((x,tg))
            ri=0
            if G16:
                mat_=kap&1
                for n in range(14):
                    t7,tt=n>>1,n&1
                    if RING: pass
                    elif RPG==1:
                        if n in (6,10) and not(kap==3 and c<7):
                            k(f"s_waitcnt lgkmcnt({(4 if n==6 else 0) if last else 10})")
                    elif W0 and n==10 and not(kap==3 and c<7):
                        k(f"s_waitcnt lgkmcnt({0 if last else 14})")
                    D_=acc[t7][8*mat_+4*tt:8*mat_+4*tt+4]
                    cin = 0 if step<2 else D_
                    k(f"{MFB} {D_}, {fr[buf][t7]}, {tok[8*ks+4*tt:8*ks+4*tt+4]}, {cin}")
                    if RING:
                        lim=2*t7+(2 if tt else 0) - RLAG
                        if n==13: lim=14
                        if ri<min(lim,len(rd)): k(rd[ri]); ri+=1
                        if n==13:
                            while ri<len(rd): k(rd[ri]); ri+=1
                    else:
                      for _ in range(RPG):
                        if ri<len(rd): k(rd[ri]); ri+=1
                    gp,ge=(GP,GE) if RPG==1 else (GP2,GE2)
                    if n in gp and pend: x,tg=pend.pop(0); vm.op(x,tg)
                    if (n in ge or (n in gp and not pend)) and extra: x,tg=extra.pop(0); vm.op(x,tg)
            else:
              for t7 in range(7):
                if t7==3 and not(kap==3 and c<7):
                    k(f"s_waitcnt lgkmcnt({0 if last else 9})")
                cin = 0 if step==0 else acc[t7]
                k(f"{MF} {acc[t7]}, {fr[buf][t7]}, {tok[16*c+4*kap:16*c+4*kap+4]}, {cin}")
                nrd=3 if t7<4 else 2
                for _ in range(nrd):
                    if ri<len(rd): k(rd[ri]); ri+=1
                if t7 in (1,3,5) and pend: x,tg=pend.pop(0); vm.op(x,tg)
                if (t7 in (0,2,4,6) or (t7 in (1,3,5) and not pend)) and extra: x,tg=extra.pop(0); vm.op(x,tg)
            assert ri==len(rd) and not extra
            step+=1
    assert not pend and not w5
    stamp('b',6); stamp('c',1)
    o=[fr[0][0],fr[0][1]]
    if G16:
        def e_mul(t7):
            A=acc[t7]; oo=o[t7&1]
            for r in range(8): k(f"v_mul_f32 {A[r]}, {A[r]}, {A[8+r]}")
            for p_ in range(4): k(f"v_cvt_pk_bf16_f32 {oo[p_]}, {A[2*p_]}, {A[2*p_+1]}")
        def e_st(t7):
            oo=o[t7&1]
            k(f"v_permlane16_swap_b32 {oo[0]}, {oo[2]}")
            k(f"v_permlane16_swap_b32 {oo[1]}, {oo[3]}")
            if t7==4: k(f"s_add_u32 {sst}, {sst}, 4096")
            vm.op(f"buffer_store_dwordx4 {oo}, {vtok}, {Rws}, {sst} offen offset:{(t7&3)*1024} {SM}",'st')
        for t7 in range(7):
            e_mul(t7); e_st(t7)
    else:
        for t7 in range(7):
            A=acc[t7]; oo=o[t7&1]
            for r in range(4):
                k(f"v_mul_f32 {A[r]}, {A[r]}, {A[4+r]}")
                k(f"v_mul_f32 {A[8+r]}, {A[8+r]}, {A[12+r]}")
            k(f"v_cvt_pk_bf16_f32 {oo[0]}, {A[0]}, {A[1]}")
            k(f"v_cvt_pk_bf16_f32 {oo[1]}, {A[2]}, {A[3]}")
            k(f"v_cvt_pk_bf16_f32 {oo[2]}, {A[8]}, {A[9]}")
            k(f"v_cvt_pk_bf16_f32 {oo[3]}, {A[10]}, {A[11]}")
            if t7==4: k(f"s_add_u32 {sst}, {sst}, 4096")
            vm.op(f"buffer_store_dwordx4 {oo}, {vtok}, {Rws}, {sst} offen offset:{(t7&3)*1024} {SM}",'st')
            if LOCAL and LB: vm.op(f"buffer_load_dwordx4 {fr[1][t7]}, {vtok}, {Rws}, {sst} offen offset:{(t7&3)*1024} {LBM}",'st')
    stamp('c',2)
    k(f"s_add_u32 {sfl}, {sfl}, {256*128}")
    v.free(*vd); v.free(*vA)
    RED=0; WST=64*272
    vx1,vout,vgb,vrr,vrw=v(),v(),v(),v(),v()
    tau,pos,u1=v(),v(),v()
    sx5,stok5=stok,sst
    stk2=s()
    k(f"""
v_lshrrev_b32 {tau}, 2, v0
s_lshl_b32 {t0}, {tb5}, 6
v_add_u32 {pos}, {t0}, {tau}
v_and_b32 {tv}, 3, v0
v_lshlrev_b32 {vgb}, 5, {tv}
s_lshl_b32 {t0}, {nb}, 7
v_add_u32 {vgb}, {t0}, {vgb}                    ; nb*128 + c*32
v_lshl_add_u32 {vx1}, {pos}, 10, {vgb}
v_bfe_u32 {u1}, {pos}, 8, 2
v_lshlrev_b32 {vout}, 9, {u1}                   ; 512*kap
v_bfe_u32 {u1}, {pos}, 6, 2
v_lshl_add_u32 {vout}, {u1}, 7, {vout}          ; +128 g
v_and_b32 {u1}, 3, {pos}
v_lshl_add_u32 {vout}, {u1}, 5, {vout}          ; +32 e
v_lshrrev_b32 {u1}, 10, {pos}
v_lshl_add_u32 {vout}, {u1}, 4, {vout}          ; +16 t
v_bfe_u32 {u1}, {pos}, 2, 4
v_add_u32 {vout}, {vout}, {u1}                  ; + i
v_lshl_add_u32 {vout}, {vout}, 10, {vgb}        ; s*1024 + nb*128 + c*32
v_lshlrev_b32 {vgb}, 1, {vgb}
v_add_u32 {vgb}, {L_MOD+6144}, {vgb}
v_mul_u32_u24 {vrr}, 272, {tau}
v_lshl_add_u32 {vrr}, {tv}, 6, {vrr}            ; tau*272 + c*64
s_mul_i32 {t0}, {w}, {WST}
v_and_b32 {tv}, 31, {lane}
v_mul_u32_u24 {vrw}, 272, {tv}
v_lshrrev_b32 {tv}, 5, {lane}
v_lshl_add_u32 {vrw}, {tv}, 4, {vrw}
v_add_u32 {vrw}, {t0}, {vrw}
s_lshr_b32 {spo}, {tb5}, 1
s_lshl_b32 {spo}, {spo}, 4
s_lshl_b32 {t0}, {w}, 2
s_add_u32 {spo}, {spo}, {t0}
s_lshl_b32 {spo}, {spo}, 7
s_add_u32 {spo}, {spo}, {WS_FLG+256*128:#x}
""")
    v.free(tau,pos,u1)
    publish(k.label('PUB'))
    stamp('c',3)
    for x,tg in w5late: vm.op(x,tg)
    k(f"""
s_mul_i32 {stok5}, {tb5}, {2*112*1024}
s_mul_i32 {t0}, {w}, {28*1024}
s_add_u32 {stok5}, {stok5}, {t0}
s_add_u32 {stok5}, {stok5}, {WS_HHF:#x}
s_add_u32 {stk2}, {stok5}, {112*1024}
s_mov_b32 {sx5}, {WS_X1R:#x}
""")
    acc5=[[acc[0],acc[1]],[acc[2],acc[3]]]
    pool=[tok[32+4*q:36+4*q] for q in range(24)]
    for t7 in (4,5,6): pool+=[acc[t7][4*q:4*q+4] for q in range(4)]
    for b in range(2): pool+=[fr[b][t7] for t7 in range(7)]
    pool=pool[:2*D5]
    assert len(pool)==2*D5
    x1e=Reg('v',fr[1][5].idx,8)
    poll('POLLB')
    stamp('c',4)
    def tload(j):
        sl=j%D5
        o_=(j&3)*1024
        out=[(f"buffer_load_dwordx4 {pool[2*sl]}, {vtok}, {Rws}, {stok5} offen offset:{o_} {LDM}",f"H{j}"),
             (f"buffer_load_dwordx4 {pool[2*sl+1]}, {vtok}, {Rws}, {stk2} offen offset:{o_} {LDM}"+
              (f"\ns_add_u32 {stok5}, {stok5}, 4096\ns_add_u32 {stk2}, {stk2}, 4096" if j&3==3 else ""),f"H{j}")]
        return out
    for j in range(U5):
        for x,tg in tload(j): vm.op(x,tg)
    stamp('c',5)
    x1l=[(f"buffer_load_dwordx4 {x1e[0:4]}, {vx1}, {Rws}, {sx5} offen {LDM}",'x1'),
         (f"buffer_load_dwordx4 {x1e[4:8]}, {vx1}, {Rws}, {sx5} offen offset:16 {LDM}",'x1')]
    for j in range(28):
        vm.wait(f"H{j}")
        if j==1: stamp('c',6)
        sl=j%D5
        ld=tload(j+U5) if j+U5<28 else (x1l if j+U5==28 else [])
        n=0
        for nu in range(2):
            for t_ in range(2):
                cin=0 if j==0 else acc5[nu][t_]
                k(f"{MF} {acc5[nu][t_]}, {Wf[2*j+nu]}, {pool[2*sl+t_]}, {cin}")
                if n in (0,2) and ld: x,tg=ld.pop(0); vm.op(x,tg)
                n+=1
    stamp('c',7)
    for t_ in range(2):
        for nu in range(2):
            for q in range(4):
                k(f"ds_write_b128 {vrw}, {acc5[nu][t_][4*q:4*q+4]} offset:{t_*32*272+nu*128+q*32}")
    Ro=s(4); srd(k,Ro,pout,2048*1024)
    gb=W2[0:16]
    for q in range(4): k(f"ds_read_b128 {gb[4*q:4*q+4]}, {vgb} offset:{16*q}")
    k("s_waitcnt lgkmcnt(0)")
    k("s_barrier")
    S=[acc[0],acc[1],acc[2],acc[3]]
    for ww in range(4):
        for q in range(4):
            k(f"ds_read_b128 {S[ww][4*q:4*q+4]}, {vrr} offset:{ww*WST+q*16}")
    k("s_waitcnt lgkmcnt(8)")
    for j in range(16): k(f"v_add_f32 {S[0][j]}, {S[0][j]}, {S[1][j]}")
    k("s_waitcnt lgkmcnt(0)")
    for j in range(16): k(f"v_add_f32 {S[2][j]}, {S[2][j]}, {S[3][j]}")
    for j in range(16): k(f"v_add_f32 {S[0][j]}, {S[0][j]}, {S[2][j]}")
    vm.wait('x1')
    xe=S[1]
    for p_ in range(8):
        k(f"v_lshlrev_b32 {xe[2*p_]}, 16, {x1e[p_]}")
        k(f"v_and_b32 {xe[2*p_+1]}, 0xffff0000, {x1e[p_]}")
    for j in range(16): k(f"v_fmac_f32 {xe[j]}, {gb[j]}, {S[0][j]}")
    for p_ in range(8): k(f"v_cvt_pk_bf16_f32 {x1e[p_]}, {xe[2*p_]}, {xe[2*p_+1]}")
    k(f"buffer_store_dwordx4 {x1e[0:4]}, {vout}, {Ro}, 0 offen")
    k(f"buffer_store_dwordx4 {x1e[4:8]}, {vout}, {Ro}, 0 offen offset:16")
    k.stamp_flush(kidx)
    k("s_endpgm")
    for x in spec: k(x)
    k(f"{END}:\ns_endpgm")
    code,desc=k.finish()
    return (k,code,desc)
```
